```python
import torch

def _softmax(x, axis=-1):
    return torch.softmax(x, dim=axis)
def _gelu(x):
    return torch.nn.functional.gelu(x, approximate="tanh")
def _silu(x):
    return torch.nn.functional.silu(x)
def _sigmoid(x):
    return torch.sigmoid(x)
def _layernorm(x, axis=-1, eps=1e-5):
    m = x.mean(dim=axis, keepdim=True)
    v = x.var(dim=axis, keepdim=True, unbiased=False)
    return (x - m) / torch.sqrt(v + eps)
def _scatter_add(tgt, idx, src, axis=0):
    return tgt.clone().index_add_(axis, idx, src)
def _segment_sum(src, seg, n):
    out = torch.zeros((n,) + src.shape[1:], dtype=src.dtype)
    return out.index_add_(0, seg, src)
def _pad(x, pw):
    flat = tuple(v for pair in reversed(pw) for v in pair)
    return torch.nn.functional.pad(x, flat)

kernel_name = 'standalone__moe_arch_mod__decode'

def setup_inputs():

    _w = (lambda a: (lambda t: t.to(torch.bfloat16) if t.is_floating_point() else t)(torch.as_tensor(a)))
    B, S, D, F, C = 8, 1, 1024, 3584, 1
    return {
        "x": _w((lambda *s: torch.randn(*s, dtype=torch.bfloat16) * 0.2)(B, S, D)),
        "w_r": _w((lambda *s: torch.randn(*s, dtype=torch.bfloat16) * 0.2)(D)),
        "w_gate": _w((lambda *s: torch.randn(*s, dtype=torch.bfloat16) * 0.1)(D, F)),
        "w_up": _w((lambda *s: torch.randn(*s, dtype=torch.bfloat16) * 0.1)(D, F)),
        "w_down": _w((lambda *s: torch.randn(*s, dtype=torch.bfloat16) * 0.1)(F, D)),
    }

def reference(x, w_r, w_gate, w_up, w_down):
    B, S, D = x.shape
    C = 1
    r = x @ w_r
    idx = torch.argsort(-r, axis=-1)[:, :C]
    idx_e = (lambda x, n, axis: torch.repeat_interleave(x, n, dim=axis))(idx.reshape(B, C, 1), D, axis=2)
    x_sel = (lambda x, i, axis: torch.take_along_dim(x, i, dim=axis))(x, idx_e, axis=1)
    g = _silu(x_sel @ w_gate)
    u = x_sel @ w_up
    y = (g * u) @ w_down
    r_sel = _sigmoid((lambda x, i, axis: torch.take_along_dim(x, i, dim=axis))(r, idx, axis=1))
    y = y * r_sel.reshape(B, C, 1)
    b_off = (torch.arange(B) * S).reshape(B, 1)
    flat_idx = (idx + b_off).reshape(B * C)
    zero = (x * 0.0).reshape(B * S, D)
    upd = _scatter_add(zero, flat_idx, y.reshape(B * C, D), axis=0)
    return x + upd.reshape(B, S, D)
```

```python
import sys
STAMPS = '--stamps' in sys.argv
NT1 = ' nt' if '--nt1' in sys.argv else ''
NT2 = ' nt' if '--nt2' in sys.argv else ''
NAME = 'standalone__moe_arch_mod__decode_kernel'
NWG = 224
LDS_D = 65536
LDS_RED = 98304
LDS_R = LDS_RED + 4096
LDS_TOTAL = LDS_R + 1024
HBASE = 4096
YBASE = 4096 + 131072
STAMPBASE = 2 << 20
WS_SIZE = 4 << 20
POLL_MAX = 1 << 16

o = []
def e(s): o.append('    ' + s)
def lab(s): o.append(s + ':')
nstamp = [0]
def stamp():
    if STAMPS:
        i = nstamp[0]; nstamp[0] += 1
        e(f's_memrealtime s[{60+2*i}:{61+2*i}]')

hdr = open('standalone__moe_arch_mod__decode.s.ref').read().split('\n')
for l in hdr:
    if l.startswith('; @launch'):
        o.append(f'; @launch grid=({NWG},1,1) block=(256,1,1) lds={LDS_TOTAL}')
        break
    o.append(l)
o += ['.amdgcn_target "amdgcn-amd-amdhsa--gfx950"', '.text', f'.globl {NAME}', '.p2align 8',
      f'.type {NAME},@function', f'{NAME}:']

SG, SU, SD, SX, SW, SO, SR = 4, 8, 12, 16, 20, 24, 28
TAG = 32
sT1, sKC, sNC, sWV, sTMP, sTMP2, sH, sH2, sY, sCNT, sFIN = 34, 35, 36, 37, 38, 39, 40, 41, 42, 43, 44
sMA, sMB = 46, 48
vL, vG, vX, vD, vT0, vT1, vT2, vRD1, vRD2, vL16, vXR, vOUT, vPUB = 1, 2, 3, 4, 5, 6, 7, 8, 9, 10, 11, 12, 13
vXF = 16
vRF = 32
vACC = 48
vW = 64
vR = 128
vP = 132
vGR = 144
vRACC = 152
vRS = 156
vY = 64
NV = 160

e(f's_cmp_ge_u32 s2, {NWG}')
e('s_cbranch_scc1 L_end')
stamp()
e(f's_load_dwordx2 s[{SG}:{SG+1}], s[0:1], 16')
e(f's_load_dwordx2 s[{SU}:{SU+1}], s[0:1], 24')
e(f's_load_dwordx2 s[{SX}:{SX+1}], s[0:1], 0')
e(f's_load_dwordx2 s[{SD}:{SD+1}], s[0:1], 32')
e(f's_load_dwordx2 s[{SW}:{SW+1}], s[0:1], 56')
e(f's_load_dwordx2 s[{SO}:{SO+1}], s[0:1], 40')
e(f's_load_dwordx2 s[{SR}:{SR+1}], s[0:1], 8')
e(f's_and_b32 s{sTMP}, s2, 7')
e(f's_mul_i32 s{sT1}, s{sTMP}, 28')
e(f's_lshr_b32 s{sTMP}, s2, 3')
e(f's_add_u32 s{sT1}, s{sT1}, s{sTMP}')
e(f's_lshr_b32 s{sKC}, s{sT1}, 4')
e(f's_and_b32 s{sNC}, s{sT1}, 15')
e(f'v_lshrrev_b32 v{vT0}, 6, v0')
e(f'v_and_b32 v{vL}, 63, v0')
e(f'v_readfirstlane_b32 s{sWV}, v{vT0}')
for s, sz in ((SG, 1024*3584*2), (SU, 1024*3584*2+1024), (SD, 3584*1024*2), (SX, 16384), (SW, WS_SIZE), (SO, 16384), (SR, 2048)):
    e(f's_mov_b32 s{s+2}, {sz}')
    e(f's_mov_b32 s{s+3}, 0x20000')
e(f'v_and_b32 v{vT1}, 24, v{vL}')
e(f'v_lshl_add_u32 v{vT1}, v{vT0}, 8, v{vT1}')
e(f'v_lshrrev_b32 v{vT2}, 5, v{vL}')
e(f'v_lshl_add_u32 v{vT1}, v{vT2}, 2, v{vT1}')
e(f'v_bfe_u32 v{vT2}, v{vL}, 1, 2')
e(f'v_add_u32 v{vT1}, v{vT1}, v{vT2}')
e(f'v_mul_u32_u24 v{vG}, 7168, v{vT1}')
e(f'v_and_b32 v{vT2}, 1, v{vL}')
e(f'v_lshl_add_u32 v{vG}, v{vT2}, 4, v{vG}')
e(f's_lshl_b32 s{sTMP}, s{sT1}, 5')
e(f'v_add_u32 v{vG}, s{sTMP}, v{vG}')
e(f'v_lshlrev_b32 v{vRD1}, 9, v{vT0}')
e(f'v_and_b32 v{vT2}, 8, v{vL}')
e(f'v_lshl_add_u32 v{vRD1}, v{vT2}, 3, v{vRD1}')
e(f'v_and_b32 v{vT2}, 48, v{vL}')
e(f'v_add_u32 v{vRD1}, v{vRD1}, v{vT2}')
e(f'v_and_b32 v{vT2}, 7, v{vL}')
e(f'v_lshl_add_u32 v{vX}, v{vT2}, 11, v{vRD1}')
e(f's_lshl_b32 m0, s{sWV}, 14')
e('s_waitcnt lgkmcnt(0)')
stamp()
e(f's_load_dwordx2 s[{TAG}:{TAG+1}], s[{SW}:{SW+1}], 0')
e(f's_sub_u32 s{SU}, s{SU}, 1024')
e(f's_subb_u32 s{SU+1}, s{SU+1}, 0')
def dma_step(s):
    par = s & 1
    so = s*32*7168 - par*2048
    if so == 0:
        sof = '0'
        if s and not par: e('s_addk_i32 m0, 4096'); e('s_nop 0')
    else:
        if not par: e('s_addk_i32 m0, 4096')
        e(f's_mov_b32 s{sTMP}, {so}')
        sof = f's{sTMP}'
    e(f'buffer_load_dwordx4 v{vG}, s[{SG}:{SG+3}], {sof} offen offset:{par*2048}{NT1} lds')
    e(f'buffer_load_dwordx4 v{vG}, s[{SU}:{SU+3}], {sof} offen offset:{par*2048+1024}{NT1} lds')
dma_step(0); dma_step(1)
for t in range(4):
    e(f'buffer_load_dwordx4 v[{vXF+4*t}:{vXF+4*t+3}], v{vX}, s[{SX}:{SX+3}], 0 offen offset:{128*t}')
for s in range(2, 8): dma_step(s)
e(f'v_lshrrev_b32 v{vT1}, 5, v{vL}')
e(f'v_bfe_u32 v{vT2}, v{vL}, 3, 2')
e(f'v_lshl_add_u32 v{vT1}, v{vT1}, 3, v{vT2}')
e(f'v_lshl_add_u32 v{vT1}, v{vT0}, 6, v{vT1}')
e(f'v_lshlrev_b32 v{vD}, 11, v{vT1}')
e(f'v_lshrrev_b32 v{vT2}, 4, v{vL}')
e(f'v_lshlrev_b32 v{vT2}, 1, v{vT2}')
e(f'v_sub_u32 v{vT2}, v{vL}, v{vT2}')
e(f'v_and_b32 v{vT2}, 7, v{vT2}')
e(f'v_lshl_add_u32 v{vD}, v{vT2}, 4, v{vD}')
e(f's_lshl_b32 s{sTMP}, s{sKC}, 19')
e(f's_lshl_b32 s{sTMP2}, s{sNC}, 7')
e(f's_add_u32 s{sTMP}, s{sTMP}, s{sTMP2}')
e(f'v_add_u32 v{vD}, s{sTMP}, v{vD}')
e(f's_lshl_b32 s{sTMP}, s{sWV}, 13')
e(f's_add_u32 m0, s{sTMP}, {LDS_D}')
for u in range(8):
    sp, gp, e4 = u >> 2, (u >> 1) & 1, u & 1
    imm = (u & 3) * 1024
    so = (32*sp + 16*gp + 4*e4) * 2048 - imm
    if u == 4: e('s_addk_i32 m0, 4096')
    if so == 0:
        sof = '0'; e('s_nop 0')
    else:
        e(f's_mov_b32 s{sTMP}, {so}'); sof = f's{sTMP}'
    e(f'buffer_load_dwordx4 v{vD}, s[{SD}:{SD+3}], {sof} offen offset:{imm}{NT2} lds')
for t in range(4):
    e(f'buffer_load_dwordx4 v[{vRF+4*t}:{vRF+4*t+3}], v{vRD1}, s[{SR}:{SR+3}], 0 offen offset:{128*t}')
e(f'v_and_b32 v{vT1}, 7, v{vL}')
e(f'v_lshlrev_b32 v{vOUT}, 11, v{vT1}')
e(f'v_lshrrev_b32 v{vT1}, 3, v{vL}')
e(f'v_lshl_add_u32 v{vOUT}, v{vT1}, 2, v{vOUT}')
e(f'v_lshl_add_u32 v{vOUT}, v{vT0}, 5, v{vOUT}')
e(f'v_add_u32 v{vOUT}, s{sTMP2}, v{vOUT}')
e(f'buffer_load_dword v{vXR}, v{vOUT}, s[{SX}:{SX+3}], 0 offen')
stamp()
e(f'v_lshlrev_b32 v{vL16}, 4, v{vL}')
e(f'v_lshlrev_b32 v{vRD1}, 3, v{vL}')
e(f'v_lshl_add_u32 v{vRD1}, v{vT0}, 14, v{vRD1}')
e(f'v_lshrrev_b32 v{vT1}, 5, v{vL}')
e(f'v_lshlrev_b32 v{vRD2}, 11, v{vT1}')
e(f'v_bfe_u32 v{vT1}, v{vL}, 2, 3')
e(f'v_lshl_add_u32 v{vRD2}, v{vT1}, 7, v{vRD2}')
e(f'v_and_b32 v{vT1}, 6, v{vT1}')
e(f'v_lshl_add_u32 v{vT1}, v{vT0}, 1, v{vT1}')
e(f'v_bfe_u32 v{vT2}, v{vL}, 1, 1')
e(f'v_add_u32 v{vT1}, v{vT1}, v{vT2}')
e(f'v_and_b32 v{vT1}, 7, v{vT1}')
e(f'v_lshl_add_u32 v{vRD2}, v{vT1}, 4, v{vRD2}')
e(f'v_and_b32 v{vT2}, 1, v{vL}')
e(f'v_lshl_add_u32 v{vRD2}, v{vT2}, 3, v{vRD2}')
e(f'v_add_u32 v{vRD2}, {LDS_D}, v{vRD2}')
e(f'v_bfe_u32 v{vT1}, v{vL}, 4, 1')
e(f'v_lshlrev_b32 v{vPUB}, 10, v{vT1}')
e(f'v_lshrrev_b32 v{vT1}, 5, v{vL}')
e(f'v_lshl_add_u32 v{vPUB}, v{vT1}, 8, v{vPUB}')
e(f'v_and_b32 v{vT1}, 7, v{vL}')
e(f'v_lshl_add_u32 v{vPUB}, v{vT1}, 4, v{vPUB}')
e(f's_lshl_b32 s{sH}, s{sKC}, 13')
e(f's_add_u32 s{sH}, s{sH}, {HBASE}')
e(f's_add_u32 s{sH2}, s{sH}, 4096')
e(f's_lshr_b32 s{sTMP}, s{sNC}, 2')
e(f's_lshl_b32 s{sTMP}, s{sTMP}, 11')
e(f's_and_b32 s{sTMP2}, s{sNC}, 1')
e(f's_lshl_b32 s{sTMP2}, s{sTMP2}, 9')
e(f's_add_u32 s{sTMP}, s{sTMP}, s{sTMP2}')
e(f's_and_b32 s{sTMP2}, s{sNC}, 2')
e(f's_lshl_b32 s{sTMP2}, s{sTMP2}, 6')
e(f's_add_u32 s{sTMP}, s{sTMP}, s{sTMP2}')
e(f'v_add_u32 v{vPUB}, s{sTMP}, v{vPUB}')
e(f's_mul_i32 s{sY}, s{sNC}, {14*4096}')
e(f's_lshl_b32 s{sTMP}, s{sWV}, 10')
e(f's_add_u32 s{sY}, s{sY}, s{sTMP}')
e(f's_add_u32 s{sY}, s{sY}, {YBASE}')
e(f's_sub_u32 s{sTMP}, s{sNC}, 14')
e(f's_cmp_lt_u32 s{sNC}, 14')
e(f's_cselect_b32 s{sFIN}, s{sNC}, s{sTMP}')
e(f's_mov_b32 s{sMA}, 0x000000ff')
e(f's_mov_b32 s{sMA+1}, 0x000000ff')
e(f's_mov_b32 s{sMB}, 0x00ff0000')
e(f's_mov_b32 s{sMB+1}, 0x00ff0000')
NL = 33
def reads(s):
    for m in range(2):
        base = vW + 8*s + 4*m
        off = (2*s + m) * 1024
        e(f'ds_read_b64_tr_b16 v[{base}:{base+1}], v{vRD1} offset:{off}')
        e(f'ds_read_b64_tr_b16 v[{base+2}:{base+3}], v{vRD1} offset:{off+512}')
def mfmas(s):
    t, par = s >> 1, s & 1
    for m in range(2):
        base = vW + 8*s + 4*m
        acc = vACC + 8*m + 4*par
        c = '0' if s < 2 else f'v[{acc}:{acc+3}]'
        e(f'v_mfma_f32_16x16x32_bf16 v[{acc}:{acc+3}], v[{base}:{base+3}], v[{vXF+4*t}:{vXF+4*t+3}], {c}')
e(f's_waitcnt vmcnt({NL-8}) lgkmcnt(0)')
stamp()
e(f's_mul_i32 s{TAG}, s{TAG}, 1664525')
e(f's_add_u32 s{TAG}, s{TAG}, 1013904223')
e(f's_mul_i32 s{TAG+1}, s{TAG+1}, 22695477')
e(f's_add_u32 s{TAG+1}, s{TAG+1}, 0x9e3779b1')
reads(0); reads(1)
e(f'v_mov_b32 v{vGR}, s{TAG}')
e(f'v_mov_b32 v{vGR+1}, s{TAG+1}')
e(f'v_mov_b32 v{vGR+4}, s{TAG}')
e(f'v_mov_b32 v{vGR+5}, s{TAG+1}')
e('s_waitcnt lgkmcnt(4)')
mfmas(0)
for s in range(2, 8):
    e(f's_waitcnt vmcnt({27-2*s})')
    reads(s)
    e('s_waitcnt lgkmcnt(4)')
    mfmas(s-1)
e('s_waitcnt lgkmcnt(0)')
mfmas(7)
stamp()
e(f's_lshl_b32 s{sTMP}, s{sWV}, 10')
e(f's_add_u32 s{sTMP}, s{sTMP}, {LDS_RED}')
e(f'v_add_u32 v{vT1}, s{sTMP}, v{vL16}')
e('s_nop 6')
gE, gO, uE, uO = vACC, vACC+4, vACC+8, vACC+12
for r in range(4):
    e(f'v_add_f32_dpp v{vR+r}, v{gO+r}, v{gE+r} row_ror:8 row_mask:0xf bank_mask:0x3')
for r in range(4):
    e(f'v_add_f32_dpp v{vR+r}, v{uE+r}, v{uO+r} row_ror:8 row_mask:0xf bank_mask:0xc')
e(f'ds_write_b128 v{vT1}, v[{vR}:{vR+3}]')
e('s_waitcnt lgkmcnt(0)')
e('s_barrier')
e(f's_cmp_lg_u32 s{sWV}, 0')
e('s_cbranch_scc1 L_nopub')
for w in range(1, 4):
    e(f'ds_read_b128 v[{vP+4*(w-1)}:{vP+4*(w-1)+3}], v{vT1} offset:{1024*w}')
e(f's_mov_b32 s{sTMP}, 0xbfb8aa3b')
e(f's_mov_b32 s{sTMP2}, 0xffff0000')
e('s_waitcnt lgkmcnt(0)')
for r in range(4):
    e(f'v_add_f32 v{vR+r}, v{vR+r}, v{vP+r}')
    e(f'v_add_f32 v{vP+4+r}, v{vP+4+r}, v{vP+8+r}')
for r in range(4):
    e(f'v_add_f32 v{vR+r}, v{vR+r}, v{vP+4+r}')
e(f'v_cvt_pk_bf16_f32 v{vP}, v{vR}, v{vR+1}')
e(f'v_cvt_pk_bf16_f32 v{vP+1}, v{vR+2}, v{vR+3}')
e(f'v_lshlrev_b32 v{vR}, 16, v{vP}')
e(f'v_and_b32 v{vR+1}, s{sTMP2}, v{vP}')
e(f'v_lshlrev_b32 v{vR+2}, 16, v{vP+1}')
e(f'v_and_b32 v{vR+3}, s{sTMP2}, v{vP+1}')
for r in range(4): e(f'v_mul_f32 v{vP+r}, s{sTMP}, v{vR+r}')
for r in range(4): e(f'v_exp_f32 v{vP+r}, v{vP+r}')
for r in range(4): e(f'v_add_f32 v{vP+r}, 1.0, v{vP+r}')
for r in range(4): e(f'v_rcp_f32 v{vP+r}, v{vP+r}')
for r in range(4): e(f'v_mul_f32 v{vP+r}, v{vP+r}, v{vR+r}')
e(f'v_cvt_pk_bf16_f32 v{vP+4}, v{vP}, v{vP+1}')
e(f'v_cvt_pk_bf16_f32 v{vP+5}, v{vP+2}, v{vP+3}')
e(f'v_lshlrev_b32 v{vP}, 16, v{vP+4}')
e(f'v_and_b32 v{vP+1}, s{sTMP2}, v{vP+4}')
e(f'v_lshlrev_b32 v{vP+2}, 16, v{vP+5}')
e(f'v_and_b32 v{vP+3}, s{sTMP2}, v{vP+5}')
for r in range(4):
    e(f'v_mul_f32_dpp v{vP+r}, v{vR+r}, v{vP+r} row_ror:8 row_mask:0xf bank_mask:0xf')
e(f'v_cvt_pk_bf16_f32 v{vGR+2}, v{vP}, v{vP+1}')
e(f'v_cvt_pk_bf16_f32 v{vGR+3}, v{vP+2}, v{vP+3}')
e(f's_mov_b64 exec, s[{sMA}:{sMA+1}]')
e(f'buffer_store_dwordx4 v[{vGR}:{vGR+3}], v{vPUB}, s[{SW}:{SW+3}], s{sH} offen sc1')
e(f's_mov_b64 exec, s[{sMB}:{sMB+1}]')
e(f'buffer_store_dwordx4 v[{vGR+2}:{vGR+5}], v{vPUB}, s[{SW}:{SW+3}], s{sH} offen sc1')
e('s_mov_b64 exec, -1')
e('s_waitcnt vmcnt(2)')
e('s_branch L_pubdone')
lab('L_nopub')
e('s_waitcnt vmcnt(0)')
lab('L_pubdone')
stamp()
e(f's_cmp_lg_u32 s{sKC}, s{sFIN}')
e('s_cbranch_scc1 L_nor')
for t in range(4):
    c = '0' if t == 0 else f'v[{vRACC}:{vRACC+3}]'
    e(f'v_mfma_f32_16x16x32_bf16 v[{vRACC}:{vRACC+3}], v[{vRF+4*t}:{vRF+4*t+3}], v[{vXF+4*t}:{vXF+4*t+3}], {c}')
e(f'v_lshlrev_b32 v{vT1}, 2, v0')
e(f'v_add_u32 v{vT1}, {LDS_R}, v{vT1}')
e('s_nop 6')
e(f'ds_write_b32 v{vT1}, v{vRACC}')
e('s_waitcnt lgkmcnt(0)')
lab('L_nor')
e('s_barrier')
vWD = vW
vH = vW + 32
for s in range(8):
    e(f'ds_read_b64_tr_b16 v[{vWD+4*s}:{vWD+4*s+1}], v{vRD2} offset:{s*4096}')
    e(f'ds_read_b64_tr_b16 v[{vWD+4*s+2}:{vWD+4*s+3}], v{vRD2} offset:{s*4096+1024}')
e(f's_mov_b32 s{sCNT}, {POLL_MAX}')
lab('L_poll1')
for i in range(8):
    so = sH if i < 4 else sH2
    e(f'buffer_load_dwordx4 v[{vH+4*i}:{vH+4*i+3}], v{vL16}, s[{SW}:{SW+3}], s{so} offen offset:{(i&3)*1024} sc1')
e(f's_sub_u32 s{sCNT}, s{sCNT}, 1')
e('s_cbranch_scc1 L_poll1_done')
e('s_waitcnt vmcnt(0)')
for t in range(4):
    e(f'v_cmpx_eq_u64 vcc, s[{TAG}:{TAG+1}], v[{vH+8*t}:{vH+8*t+1}]')
    e(f'v_cmpx_eq_u64 vcc, s[{TAG}:{TAG+1}], v[{vH+8*t+6}:{vH+8*t+7}]')
e('s_cmp_eq_u64 exec, -1')
e('s_mov_b64 exec, -1')
e('s_cbranch_scc0 L_poll1')
lab('L_poll1_done')
e('s_waitcnt vmcnt(0) lgkmcnt(0)')
stamp()
e('s_nop 1')
aE, aO = vACC, vACC + 4
for s in range(8):
    t, par = s >> 1, s & 1
    acc = aO if par else aE
    c = '0' if s < 2 else f'v[{acc}:{acc+3}]'
    e(f'v_mfma_f32_16x16x32_bf16 v[{acc}:{acc+3}], v[{vWD+4*s}:{vWD+4*s+3}], v[{vH+8*t+2}:{vH+8*t+5}], {c}')
e(f's_lshl_b32 s{sTMP}, s{sKC}, 12')
e(f's_add_u32 s{sTMP}, s{sTMP}, s{sY}')
e('s_nop 5')
for r in range(2):
    e(f'v_add_f32_dpp v{vGR+2+r}, v{aO+r}, v{aE+r} row_ror:8 row_mask:0xf bank_mask:0x3')
    e(f'v_add_f32_dpp v{vGR+2+r}, v{aE+2+r}, v{aO+2+r} row_ror:8 row_mask:0xf bank_mask:0xc')
e(f'buffer_store_dwordx4 v[{vGR+2}:{vGR+5}], v{vL16}, s[{SW}:{SW+3}], s{sTMP} offen sc1')
stamp()
e(f's_cmp_lg_u32 s{sKC}, s{sFIN}')
e('s_cbranch_scc1 L_fin_done')
e(f'v_and_b32 v{vT1}, 7, v{vL}')
e(f'v_lshlrev_b32 v{vT1}, 2, v{vT1}')
e(f'v_add_u32 v{vT1}, {LDS_R}, v{vT1}')
for w in range(4):
    e(f'ds_read2_b32 v[{vP+2*w}:{vP+2*w+1}], v{vT1} offset0:{64*w} offset1:{64*w+40}')
e(f's_mov_b32 s{sCNT}, {POLL_MAX}')
first = True
lab('L_poll2')
e(f's_mov_b32 s{sTMP}, s{sY}')
for k in range(14):
    e(f'buffer_load_dwordx4 v[{vY+4*k}:{vY+4*k+3}], v{vL16}, s[{SW}:{SW+3}], s{sTMP} offen sc1')
    if k < 13: e(f's_addk_i32 s{sTMP}, 4096')
e(f's_sub_u32 s{sCNT}, s{sCNT}, 1')
e('s_cbranch_scc1 L_poll2_done')
e('s_waitcnt vmcnt(0)')
for k in range(14):
    e(f'v_cmpx_eq_u64 vcc, s[{TAG}:{TAG+1}], v[{vY+4*k+2}:{vY+4*k+3}]')
e('s_cmp_eq_u64 exec, -1')
e('s_mov_b64 exec, -1')
e('s_cbranch_scc0 L_poll2')
lab('L_poll2_done')
e('s_waitcnt vmcnt(0) lgkmcnt(0)')
stamp()
e(f's_mov_b32 s{sTMP}, 0xbfb8aa3b')
e(f's_mov_b32 s{sTMP2}, 0xffff0000')
for w in range(4):
    e(f'v_add_f32 v{vP+2*w}, v{vP+2*w}, v{vP+2*w+1}')
e(f'v_add_f32 v{vP}, v{vP}, v{vP+2}')
e(f'v_add_f32 v{vP+4}, v{vP+4}, v{vP+6}')
e(f'v_add_f32 v{vP}, v{vP}, v{vP+4}')
e(f'v_cvt_pk_bf16_f32 v{vP}, v{vP}, v{vP}')
e(f'v_and_b32 v{vP}, s{sTMP2}, v{vP}')
e(f'v_mul_f32 v{vP}, s{sTMP}, v{vP}')
e(f'v_exp_f32 v{vP}, v{vP}')
def padd(a, b): e(f'v_pk_add_f32 v[{vY+4*a}:{vY+4*a+1}], v[{vY+4*a}:{vY+4*a+1}], v[{vY+4*b}:{vY+4*b+1}]')
for k in range(0, 14, 2): padd(k, k+1)
e(f'v_add_f32 v{vP}, 1.0, v{vP}')
e(f'v_rcp_f32 v{vP}, v{vP}')
padd(0, 2); padd(4, 6); padd(8, 10)
e(f'v_cvt_pk_bf16_f32 v{vP}, v{vP}, v{vP}')
padd(0, 4); padd(8, 12)
e(f'v_and_b32 v{vRS}, s{sTMP2}, v{vP}')
padd(0, 8)
e(f'v_cvt_pk_bf16_f32 v{vP}, v{vY}, v{vY+1}')
e(f'v_lshlrev_b32 v{vP+1}, 16, v{vP}')
e(f'v_and_b32 v{vP+2}, s{sTMP2}, v{vP}')
e(f'v_mul_f32 v{vP+1}, v{vP+1}, v{vRS}')
e(f'v_mul_f32 v{vP+2}, v{vP+2}, v{vRS}')
e(f'v_cvt_pk_bf16_f32 v{vP}, v{vP+1}, v{vP+2}')
e(f'v_lshlrev_b32 v{vP+1}, 16, v{vP}')
e(f'v_and_b32 v{vP+2}, s{sTMP2}, v{vP}')
e(f'v_lshlrev_b32 v{vP+3}, 16, v{vXR}')
e(f'v_and_b32 v{vP+4}, s{sTMP2}, v{vXR}')
e(f'v_fma_f32 v{vP+1}, v{vP+3}, 0, v{vP+1}')
e(f'v_fma_f32 v{vP+2}, v{vP+4}, 0, v{vP+2}')
e(f'v_add_f32 v{vP+1}, v{vP+1}, v{vP+3}')
e(f'v_add_f32 v{vP+2}, v{vP+2}, v{vP+4}')
e(f'v_cvt_pk_bf16_f32 v{vP}, v{vP+1}, v{vP+2}')
e(f'buffer_store_dword v{vP}, v{vOUT}, s[{SO}:{SO+3}], 0 offen')
e(f's_or_b32 s{sTMP}, s{sT1}, s{sWV}')
e('s_cbranch_scc1 L_fin_done')
e('s_mov_b64 exec, 1')
e(f'buffer_store_dwordx2 v[{vGR}:{vGR+1}], v{vL16}, s[{SW}:{SW+3}], 0 offen sc1')
e('s_mov_b64 exec, -1')
lab('L_fin_done')
if STAMPS:
    e('s_waitcnt vmcnt(0)')
    stamp()
    e('s_getreg_b32 s58, hwreg(HW_REG_XCC_ID)')
    e('s_getreg_b32 s59, hwreg(HW_REG_HW_ID)')
    e('s_waitcnt lgkmcnt(0)')
    n = nstamp[0]
    e('s_mov_b64 exec, 1')
    e(f's_lshl_b32 s{sTMP}, s2, 2')
    e(f's_add_u32 s{sTMP}, s{sTMP}, s{sWV}')
    e(f's_lshl_b32 s{sTMP}, s{sTMP}, 6')
    e(f's_add_u32 s{sTMP}, s{sTMP}, {STAMPBASE}')
    for i in range(n):
        e(f'v_mov_b32 v{vT1}, s{60+2*i}')
        e(f'buffer_store_dword v{vT1}, v{vL16}, s[{SW}:{SW+3}], s{sTMP} offen offset:{4*i}')
        e('s_nop 0')
    e(f'v_mov_b32 v{vT1}, s58')
    e(f'buffer_store_dword v{vT1}, v{vL16}, s[{SW}:{SW+3}], s{sTMP} offen offset:56')
    e(f'v_mov_b32 v{vT2}, s59')
    e(f'buffer_store_dword v{vT2}, v{vL16}, s[{SW}:{SW+3}], s{sTMP} offen offset:60')
lab('L_end')
e('s_endpgm')
o += ['.section .rodata,"a"', '.p2align 6', f'.amdhsa_kernel {NAME}',
      f'  .amdhsa_next_free_vgpr {NV}', '  .amdhsa_next_free_sgpr 96', f'  .amdhsa_accum_offset {NV}',
      '  .amdhsa_group_segment_fixed_size 0', '  .amdhsa_kernarg_size 64', '  .amdhsa_user_sgpr_count 2',
      '  .amdhsa_user_sgpr_kernarg_segment_ptr 1', '  .amdhsa_system_sgpr_workgroup_id_x 1',
      '  .amdhsa_float_denorm_mode_32 3',
      '.end_amdhsa_kernel']
print('\n'.join(o))
```

```python
import sys
opts = dict(a.split('=') if '=' in a else (a, '1') for a in sys.argv[1:])
STAMPS = 'stamps' in opts
NT1 = ' nt' if 'nt1' in opts else ''
NT2 = ' nt' if 'nt2' in opts else ''
NAME = 'standalone__moe_arch_mod__decode_kernel'
NWG = 256
LDS_D = 65536
LDS_H = 98304
LDS_TOTAL = LDS_H + 2048
PBASE = 4096
YBASE = 4096 + 56 * 16384
STAMPBASE = 3 << 20
WS_SIZE = 4 << 20
assert YBASE + 256 * 7168 <= STAMPBASE
POLL_MAX = 1 << 16
STAGES = eval(opts.get('stages', '[[0,1,2,3],[4,5,6,7],[8,9,10,11],[12,13],[14],[15]]'))

o = []
def e(s): o.append('    ' + s)
def lab(s): o.append(s + ':')
nstamp = [0]
def stamp():
    if STAMPS:
        i = nstamp[0]; nstamp[0] += 1
        e(f's_memrealtime s[{64+2*i}:{65+2*i}]')

hdr = open('standalone__moe_arch_mod__decode.s.ref').read().split('\n')
for l in hdr:
    if l.startswith('; @launch'):
        o.append(f'; @launch grid=({NWG},1,1) block=(256,1,1) lds={LDS_TOTAL}')
        break
    o.append(l)
o += ['.amdgcn_target "amdgcn-amd-amdhsa--gfx950"', '.text', f'.globl {NAME}', '.p2align 8',
      f'.type {NAME},@function', f'{NAME}:']

SM, SD, SX, SW, SO, SR = 4, 8, 12, 16, 20, 24
sTAG = 28
sEXP = 30
sTB = 32
sCT, sMEM, sC3, sWV, sTMP, sTMP2, sP, sCNT, sTASK, sROW0, sCOL0, sKK, sSEL0, sSEL1, sXCD, sSLOT = range(36, 52)
sLO, sHI = 52, 54
sT3 = 56
vL, vT0, vT1, vT2, vA, vB, vX, vD, vRD1, vRD2, vL16, vPUB1, vPUB2, vFF, vHW, vHR = range(1, 17)
vWV = 17; vOUT = 18; vXR = 19; vRS = 20; vFA = 21
vXF = 24
vACC = 56
vW = 64
vWD = 80
vG = 112
vH = 140
vRX = 156
vP = 172
NV = 184

e(f's_cmp_ge_u32 s2, {NWG}')
e('s_cbranch_scc1 L_end')
stamp()
e(f's_and_b32 s{sXCD}, s2, 7')
e(f's_lshr_b32 s{sSLOT}, s2, 3')
e(f's_and_b32 s{sTMP}, s2, 8')
e(f's_add_u32 s{sTMP}, s{sTMP}, 16')
e(f's_load_dwordx2 s[{SM}:{SM+1}], s[0:1], s{sTMP}')
e(f's_load_dwordx2 s[{SX}:{SX+1}], s[0:1], 0')
e(f's_load_dwordx2 s[{SD}:{SD+1}], s[0:1], 32')
e(f's_load_dwordx2 s[{SW}:{SW+1}], s[0:1], 56')
e(f's_load_dwordx2 s[{SO}:{SO+1}], s[0:1], 40')
e(f's_load_dwordx2 s[{SR}:{SR+1}], s[0:1], 8')
e(f'v_lshrrev_b32 v{vWV}, 6, v0')
e(f'v_and_b32 v{vL}, 63, v0')
e(f'v_readfirstlane_b32 s{sWV}, v{vWV}')
e(f's_lshr_b32 s{sTMP}, s{sSLOT}, 2')
e(f's_cmp_eq_u32 s{sXCD}, 7')
e('s_cbranch_scc1 L_x7')
e(f's_sub_u32 s{sTMP2}, s{sTMP}, 2')
e(f's_cmp_ge_i32 s{sTMP2}, 3')
e(f's_addc_u32 s{sTMP2}, s{sTMP2}, 0')
e(f's_cmp_lt_u32 s{sSLOT}, 8')
e(f's_cselect_b32 s{sTMP2}, 3, s{sTMP2}')
e(f's_cselect_b32 s{sC3}, 1, 0')
e(f's_lshl_b32 s{sCT}, s{sXCD}, 3')
e(f's_add_u32 s{sCT}, s{sCT}, s{sTMP2}')
e('s_branch L_dec')
lab('L_x7')
e(f's_cmp_ge_u32 s{sSLOT}, 28')
e('s_cbranch_scc1 L_end')
e(f's_lshl_b32 s{sCT}, s{sTMP}, 3')
e(f's_add_u32 s{sCT}, s{sCT}, 7')
e(f's_mov_b32 s{sC3}, 0')
lab('L_dec')
e(f's_lshl_b32 s{sTMP}, s{sC3}, 2')
e(f's_or_b32 s{sTMP}, s{sTMP}, 3')
e(f's_and_b32 s{sMEM}, s{sSLOT}, s{sTMP}')
e(f's_lshr_b32 s{sKK}, s{sMEM}, 1')
e(f's_lshl_b32 s{sTMP}, s{sKK}, 9')
e(f's_add_u32 s{sTMP}, s{sTMP}, 256')
e(f's_lshl_b32 s{sTMP2}, s{sKK}, 8')
e(f's_cmp_lg_u32 s{sC3}, 0')
e(f's_cselect_b32 s{sROW0}, s{sTMP2}, s{sTMP}')
for s, sz in ((SM, 1024*3584*2), (SD, 3584*1024*2), (SX, 16384), (SW, WS_SIZE), (SO, 16384), (SR, 2048)):
    e(f's_mov_b32 s{s+2}, {sz}')
    e(f's_mov_b32 s{s+3}, 0x20000')
e(f'v_lshrrev_b32 v{vT1}, 5, v{vL}')
e(f'v_bfe_u32 v{vT2}, v{vL}, 3, 2')
e(f'v_lshl_add_u32 v{vT0}, v{vT1}, 3, v{vT2}')
e(f'v_lshrrev_b32 v{vT2}, 4, v{vL}')
e(f'v_lshlrev_b32 v{vT2}, 1, v{vT2}')
e(f'v_sub_u32 v{vT2}, v{vL}, v{vT2}')
e(f'v_and_b32 v{vT2}, 7, v{vT2}')
e(f'v_lshlrev_b32 v{vT2}, 4, v{vT2}')
e(f's_lshr_b32 s{sTMP}, s{sWV}, 1')
e(f's_lshl_b32 s{sTMP}, s{sTMP}, 4')
e(f's_and_b32 s{sTMP2}, s{sWV}, 1')
e(f's_lshl_b32 s{sTMP2}, s{sTMP2}, 2')
e(f's_add_u32 s{sTMP}, s{sTMP}, s{sTMP2}')
e(f's_add_u32 s{sTMP}, s{sTMP}, s{sROW0}')
e(f's_mul_i32 s{sTMP}, s{sTMP}, 7168')
e(f's_lshl_b32 s{sTMP2}, s{sCT}, 7')
e(f's_add_u32 s{sTMP}, s{sTMP}, s{sTMP2}')
e(f'v_mul_u32_u24 v{vB}, 7168, v{vT0}')
e(f'v_add3_u32 v{vB}, v{vB}, v{vT2}, s{sTMP}')
e(f'v_subrev_u32 v{vA}, {256*7168}, v{vB}')
e(f'v_and_b32 v{vT1}, 7, v{vL}')
e(f'v_lshlrev_b32 v{vX}, 11, v{vT1}')
e(f'v_and_b32 v{vT1}, 8, v{vL}')
e(f'v_lshl_add_u32 v{vX}, v{vT1}, 3, v{vX}')
e(f'v_and_b32 v{vT1}, 48, v{vL}')
e(f's_lshl_b32 s{sTMP}, s{sROW0}, 1')
e(f'v_add3_u32 v{vX}, v{vX}, v{vT1}, s{sTMP}')
e(f'v_subrev_u32 v{vFA}, 512, v{vX}')
e(f's_lshl_b32 s{sT3}, s{sWV}, 14')
e(f's_mov_b32 m0, s{sT3}')
e(f's_cmp_lg_u32 s{sC3}, 0')
e('s_waitcnt lgkmcnt(0)')
stamp()
e(f's_load_dword s{sTAG}, s[{SW}:{SW+1}], 0')
e('s_cbranch_scc1 L_loadB')
def wload(s, v):
    s8 = s & 7
    imm = (s & 3) * 1024
    so = s8 * 32 * 7168 - imm
    if so == 0: sof = '0'
    else:
        e(f's_mov_b32 s{sTMP}, {so}'); sof = f's{sTMP}'
    e(f'buffer_load_dwordx4 v{v}, s[{SM}:{SM+3}], {sof} offen offset:{imm}{NT1} lds')
def xload(t):
    v = vFA if t < 4 else vX
    e(f'buffer_load_dwordx4 v[{vXF+4*t}:{vXF+4*t+3}], v{v}, s[{SX}:{SX+3}], 0 offen offset:{128*(t&3)}')
order = []
for s in range(4): wload(s, vA); order.append(('W', s))
for t in range(4): xload(t); order.append(('X', t))
e('s_addk_i32 m0, 4096')
for s in range(4, 8): wload(s, vA); order.append(('W', s))
lab('L_loadB')
e(f's_add_u32 m0, s{sT3}, 8192')
e('s_nop 0')
for s in range(8, 12): wload(s, vB); order.append(('W', s))
for t in range(4, 8): xload(t); order.append(('X', t))
e('s_addk_i32 m0, 4096')
for s in range(12, 16): wload(s, vB); order.append(('W', s))
e(f's_lshl_b32 s{sTMP}, s{sMEM}, 8')
e(f's_lshr_b32 s{sTMP}, s{sTMP}, s{sC3}')
e(f's_lshl_b32 s{sTMP2}, s{sWV}, 6')
e(f's_add_u32 s{sCOL0}, s{sTMP}, s{sTMP2}')
e(f's_lshl_b32 s{sTMP}, s{sCT}, 17')
e(f's_lshl_b32 s{sTMP2}, s{sCOL0}, 1')
e(f's_add_u32 s{sTMP}, s{sTMP}, s{sTMP2}')
e(f's_lshr_b32 s{sTMP2}, s{sWV}, 1')
e(f's_and_b32 s{sT3}, s{sTMP2}, s{sC3}')
e(f's_cselect_b32 s{sTMP}, 0x10000000, s{sTMP}')
e(f'v_lshlrev_b32 v{vD}, 11, v{vT0}')
e(f'v_add3_u32 v{vD}, v{vD}, v{vT2}, s{sTMP}')
e(f's_lshl_b32 s{sTMP}, s{sWV}, 13')
e(f's_add_u32 m0, s{sTMP}, {LDS_D}')
for u in range(8):
    sp, gp, e4 = u >> 2, (u >> 1) & 1, u & 1
    imm = (u & 3) * 1024
    so = (32*sp + 16*gp + 4*e4) * 2048 - imm
    if u == 4: e('s_addk_i32 m0, 4096')
    if so == 0:
        sof = '0'; e('s_nop 0')
    else:
        e(f's_mov_b32 s{sTMP}, {so}'); sof = f's{sTMP}'
    e(f'buffer_load_dwordx4 v{vD}, s[{SD}:{SD+3}], {sof} offen offset:{imm}{NT2} lds')
    order.append(('D', u))
e(f'v_lshlrev_b32 v{vL16}, 4, v{vL}')
e(f's_lshl_b32 s{sTMP}, s2, 3')
e(f's_add_u32 s{sTMP}, s{sTMP}, 231')
e(f's_cmp_eq_u32 s{sWV}, 0')
e(f's_cselect_b32 s{sTASK}, s2, s{sTMP}')
e(f's_and_b32 s{sTMP}, s{sTASK}, 7')
e(f's_lshl_b32 s{sTMP}, s{sTMP}, 11')
e(f'buffer_load_dwordx4 v[{vRX}:{vRX+3}], v{vL16}, s[{SX}:{SX+3}], s{sTMP} offen')
e(f'buffer_load_dwordx4 v[{vRX+4}:{vRX+7}], v{vL16}, s[{SX}:{SX+3}], s{sTMP} offen offset:1024')
e(f'buffer_load_dwordx4 v[{vRX+8}:{vRX+11}], v{vL16}, s[{SR}:{SR+3}], 0 offen')
e(f'buffer_load_dwordx4 v[{vRX+12}:{vRX+15}], v{vL16}, s[{SR}:{SR+3}], 0 offen offset:1024')
e(f's_lshr_b32 s{sTMP2}, s{sTASK}, 3')
e(f's_and_b32 s{sTMP2}, s{sTMP2}, 31')
e(f's_lshl_b32 s{sTMP2}, s{sTMP2}, 6')
e(f's_add_u32 s{sTMP}, s{sTMP}, s{sTMP2}')
e(f'v_and_b32 v{vT1}, 7, v{vL}')
e(f'v_lshlrev_b32 v{vOUT}, 3, v{vT1}')
e(f'v_lshrrev_b32 v{vT1}, 4, v{vL}')
e(f'v_lshl_add_u32 v{vOUT}, v{vT1}, 1, v{vOUT}')
e(f'v_add_u32 v{vOUT}, s{sTMP}, v{vOUT}')
e(f'buffer_load_ushort v{vXR}, v{vOUT}, s[{SX}:{SX+3}], 0 offen')
order += [('F', i) for i in range(5)]
NL = len(order)
stamp()
e(f'v_bfe_u32 v{vT1}, v{vL}, 2, 3')
e(f'v_lshlrev_b32 v{vT0}, 7, v{vT1}')
e(f'v_and_b32 v{vT2}, 1, v{vL}')
e(f'v_lshl_add_u32 v{vT0}, v{vT2}, 3, v{vT0}')
e(f'v_and_b32 v{vT1}, 6, v{vT1}')
e(f'v_bfe_u32 v{vT2}, v{vL}, 1, 1')
e(f'v_add_u32 v{vT1}, v{vT1}, v{vT2}')
e(f'v_lshl_add_u32 v{vT2}, v{vWV}, 1, v{vT1}')
e(f'v_and_b32 v{vT2}, 7, v{vT2}')
e(f'v_lshl_add_u32 v{vRD1}, v{vT2}, 4, v{vT0}')
e(f'v_lshrrev_b32 v{vT2}, 5, v{vL}')
e(f'v_lshl_add_u32 v{vRD1}, v{vT2}, 15, v{vRD1}')
e(f'v_lshl_add_u32 v{vRD2}, v{vT2}, 11, v{vT0}')
e(f'v_lshl_add_u32 v{vRD2}, v{vWV}, 13, v{vRD2}')
e(f'v_add_u32 v{vRD2}, {LDS_D}, v{vRD2}')
for st in range(4):
    e(f'v_add_u32 v{vT2}, {2*st}, v{vT1}')
    e(f'v_and_b32 v{vT2}, 7, v{vT2}')
    e(f'v_lshl_add_u32 v{vP+8+st}, v{vT2}, 4, v{vRD2}')
e(f's_lshl_b32 s{sP}, s{sCT}, 14')
e(f's_lshl_b32 s{sTMP}, s{sWV}, 10')
e(f's_add_u32 s{sP}, s{sP}, s{sTMP}')
e(f's_add_u32 s{sP}, s{sP}, {PBASE}')
e(f's_lshl_b32 s{sTMP}, s{sKK}, 12')
e(f's_and_b32 s{sTMP2}, s{sMEM}, 1')
e(f's_lshl_b32 s{sTMP2}, s{sTMP2}, 7')
e(f's_add_u32 s{sTMP}, s{sTMP}, s{sTMP2}')
e(f'v_add_u32 v{vPUB1}, s{sTMP}, v{vL16}')
e(f'v_and_b32 v{vT1}, 7, v{vL}')
e(f'v_mul_u32_u24 v{vPUB2}, 7168, v{vT1}')
e(f'v_and_b32 v{vT2}, 8, v{vL}')
e(f'v_lshl_add_u32 v{vPUB2}, v{vT2}, 3, v{vPUB2}')
e(f'v_and_b32 v{vT2}, 48, v{vL}')
e(f's_mul_i32 s{sTMP}, s{sCOL0}, {8*7168//32}')
e(f's_lshl_b32 s{sTMP2}, s{sCT}, 7')
e(f's_add_u32 s{sTMP}, s{sTMP}, s{sTMP2}')
e(f's_add_u32 s{sTMP}, s{sTMP}, {YBASE}')
e(f'v_add3_u32 v{vPUB2}, v{vPUB2}, v{vT2}, s{sTMP}')
e(f'v_mul_u32_u24 v{vHR}, 144, v{vT1}')
e(f'v_add_u32 v{vHR}, {LDS_H}, v{vHR}')
e(f'v_lshl_add_u32 v{vHW}, v{vWV}, 5, v{vHR}')
e(f'v_add_u32 v{vHR}, v{vHR}, v{vT2}')
e(f'v_lshrrev_b32 v{vT2}, 1, v{vT2}')
e(f'v_add_u32 v{vHW}, v{vHW}, v{vT2}')
e(f'v_mov_b32 v{vFF}, 0xff')
for i in range(8): e(f'v_mov_b32 v{vACC+i}, 0')
for i in range(16): e(f'v_mov_b32 v{vH+i}, 0')
e(f's_mov_b32 s{sLO}, 0x00ff00ff'); e(f's_mov_b32 s{sLO+1}, 0x00ff00ff')
e(f's_not_b64 s[{sHI}:{sHI+1}], s[{sLO}:{sLO+1}]')
e(f's_mov_b32 s{sSEL0}, 0x0c0c0400')
e('s_waitcnt lgkmcnt(0)')
e(f's_mul_i32 s{sTAG}, s{sTAG}, 1664525')
e(f's_add_u32 s{sTAG}, s{sTAG}, 1013904223')
e(f's_and_b32 s{sEXP}, s{sTAG}, 0xffff')
e(f's_lshr_b32 s{sEXP+1}, s{sTAG}, 16')
e(f's_mov_b32 s{sTB}, s{sTAG}')
e(f's_lshr_b32 s{sTB+1}, s{sTAG}, 8')
e(f's_lshr_b32 s{sTB+2}, s{sTAG}, 16')
e(f's_lshr_b32 s{sTB+3}, s{sTAG}, 24')
e(f's_cmp_lg_u32 s{sC3}, 0')
e('s_cbranch_scc1 L_compB')
def need(stage):
    idx = -1
    for s in stage:
        idx = max(idx, order.index(('W', s)), order.index(('X', s >> 1)))
    return NL - 1 - idx
first = True
for stage in STAGES:
    if stage[0] == 8: lab('L_compB')
    e(f's_waitcnt vmcnt({need(stage)})')
    e('s_barrier')
    if stage[0] == 8: stamp()
    for i, s in enumerate(stage):
        b = vW + 4*i
        e(f'ds_read_b64_tr_b16 v[{b}:{b+1}], v{vRD1} offset:{s*1024}')
        e(f'ds_read_b64_tr_b16 v[{b+2}:{b+3}], v{vRD1} offset:{16384+s*1024}')
    for i, s in enumerate(stage):
        b = vW + 4*i
        e(f's_waitcnt lgkmcnt({2*(len(stage)-1-i)})')
        acc = vACC + 4*(s & 1); t = s >> 1
        e(f'v_mfma_f32_16x16x32_bf16 v[{acc}:{acc+3}], v[{b}:{b+3}], v[{vXF+4*t}:{vXF+4*t+3}], v[{acc}:{acc+3}]')
stamp()
e(f's_mov_b32 s{sCNT}, {POLL_MAX}')
e(f's_add_u32 s{sTMP2}, s{sP}, 4096')
e('s_nop 5')
for r in range(4):
    e(f'v_add_f32_dpp v{vP+r}, v{vACC+4+r}, v{vACC+r} row_ror:8 row_mask:0xf bank_mask:0xf')
for r in range(4):
    e(f'v_bfi_b32 v{vP+r}, v{vFF}, s{sTB+r}, v{vP+r}')
e(f's_mov_b64 exec, s[{sLO}:{sLO+1}]')
e(f'buffer_store_dwordx4 v[{vP}:{vP+3}], v{vPUB1}, s[{SW}:{SW+3}], s{sP} offen sc1')
e('s_mov_b64 exec, -1')
stamp()
e('s_waitcnt vmcnt(6)')
for st in range(4):
    for s in range(2):
        b = vWD + 8*st + 4*s
        e(f'ds_read_b64_tr_b16 v[{b}:{b+1}], v{vP+8+st} offset:{s*4096}')
        e(f'ds_read_b64_tr_b16 v[{b+2}:{b+3}], v{vP+8+st} offset:{s*4096+1024}')
stamp()
def check(g):
    e(f'v_perm_b32 v{vP+4}, v{g+1}, v{g}, s{sSEL0}')
    e(f'v_perm_b32 v{vP+5}, v{g+3}, v{g+2}, s{sSEL0}')
    e(f'v_cmpx_eq_u64 vcc, s[{sEXP}:{sEXP+1}], v[{vP+4}:{vP+5}]')
lab('L_poll1')
e(f'buffer_load_dwordx4 v[{vG}:{vG+3}], v{vL16}, s[{SW}:{SW+3}], s{sP} offen sc1')
e(f'buffer_load_dwordx4 v[{vG+4}:{vG+7}], v{vL16}, s[{SW}:{SW+3}], s{sTMP2} offen sc1')
e(f's_cmp_lg_u32 s{sC3}, 0')
e('s_cbranch_scc0 L_poll1n')
e(f's_add_u32 s{sTMP}, s{sP}, 8192')
e(f'buffer_load_dwordx4 v[{vG+8}:{vG+11}], v{vL16}, s[{SW}:{SW+3}], s{sTMP} offen sc1')
e(f's_add_u32 s{sTMP}, s{sP}, 12288')
e(f'buffer_load_dwordx4 v[{vG+12}:{vG+15}], v{vL16}, s[{SW}:{SW+3}], s{sTMP} offen sc1')
e('s_waitcnt vmcnt(0)')
check(vG+8); check(vG+12)
lab('L_poll1n')
e(f's_sub_u32 s{sCNT}, s{sCNT}, 1')
e('s_cbranch_scc1 L_poll1_done')
e('s_waitcnt vmcnt(0)')
check(vG); check(vG+4)
e('s_cmp_eq_u64 exec, -1')
e('s_mov_b64 exec, -1')
e('s_cbranch_scc0 L_poll1')
lab('L_poll1_done')
e('s_mov_b64 exec, -1')
e('s_waitcnt vmcnt(0)')
stamp()
e(f'v_pk_add_f32 v[{vG}:{vG+1}], v[{vG}:{vG+1}], v[{vG+4}:{vG+5}]')
e(f'v_pk_add_f32 v[{vG+2}:{vG+3}], v[{vG+2}:{vG+3}], v[{vG+6}:{vG+7}]')
e(f's_cmp_lg_u32 s{sC3}, 0')
e('s_cbranch_scc0 L_act')
e(f'v_pk_add_f32 v[{vG+8}:{vG+9}], v[{vG+8}:{vG+9}], v[{vG+12}:{vG+13}]')
e(f'v_pk_add_f32 v[{vG+10}:{vG+11}], v[{vG+10}:{vG+11}], v[{vG+14}:{vG+15}]')
e(f'v_pk_add_f32 v[{vG}:{vG+1}], v[{vG}:{vG+1}], v[{vG+8}:{vG+9}]')
e(f'v_pk_add_f32 v[{vG+2}:{vG+3}], v[{vG+2}:{vG+3}], v[{vG+10}:{vG+11}]')
lab('L_act')
e(f's_mov_b32 s{sTMP}, 0xbfb8aa3b')
e(f's_mov_b32 s{sTMP2}, 0xffff0000')
R = vG; P = vP
e(f'v_cvt_pk_bf16_f32 v{P}, v{R}, v{R+1}')
e(f'v_cvt_pk_bf16_f32 v{P+1}, v{R+2}, v{R+3}')
e(f'v_lshlrev_b32 v{R}, 16, v{P}')
e(f'v_and_b32 v{R+1}, s{sTMP2}, v{P}')
e(f'v_lshlrev_b32 v{R+2}, 16, v{P+1}')
e(f'v_and_b32 v{R+3}, s{sTMP2}, v{P+1}')
for r in range(4): e(f'v_mul_f32 v{P+r}, s{sTMP}, v{R+r}')
for r in range(4): e(f'v_exp_f32 v{P+r}, v{P+r}')
for r in range(4): e(f'v_add_f32 v{P+r}, 1.0, v{P+r}')
for r in range(4): e(f'v_rcp_f32 v{P+r}, v{P+r}')
for r in range(4): e(f'v_mul_f32 v{P+r}, v{P+r}, v{R+r}')
e(f'v_cvt_pk_bf16_f32 v{P+4}, v{P}, v{P+1}')
e(f'v_cvt_pk_bf16_f32 v{P+5}, v{P+2}, v{P+3}')
e(f'v_lshlrev_b32 v{P}, 16, v{P+4}')
e(f'v_and_b32 v{P+1}, s{sTMP2}, v{P+4}')
e(f'v_lshlrev_b32 v{P+2}, 16, v{P+5}')
e(f'v_and_b32 v{P+3}, s{sTMP2}, v{P+5}')
for r in range(4):
    e(f'v_mul_f32_dpp v{P+r}, v{R+r}, v{P+r} row_ror:8 row_mask:0xf bank_mask:0xf')
e(f'v_cvt_pk_bf16_f32 v{P+4}, v{P}, v{P+1}')
e(f'v_cvt_pk_bf16_f32 v{P+5}, v{P+2}, v{P+3}')
e(f's_mov_b64 exec, s[{sLO}:{sLO+1}]')
e(f'ds_write_b64 v{vHW}, v[{P+4}:{P+5}]')
e('s_waitcnt lgkmcnt(0)')
e('s_barrier')
e(f'ds_read_b128 v[{vH}:{vH+3}], v{vHR}')
e(f'ds_read_b128 v[{vH+4}:{vH+7}], v{vHR} offset:64')
e(f's_mov_b64 exec, s[{sHI}:{sHI+1}]')
e(f'ds_read_b128 v[{vH+8}:{vH+11}], v{vHR}')
e(f'ds_read_b128 v[{vH+12}:{vH+15}], v{vHR} offset:64')
e('s_mov_b64 exec, -1')
e(f's_cmp_lg_u32 s{sT3}, 0')
e('s_cbranch_scc1 L_nop2')
for k in range(4):
    half, s = k >> 1, k & 1
    e(f's_waitcnt lgkmcnt({3-k})')
    for a in range(2):
        st = 2*a + half
        b = vWD + 8*st + 4*s
        acc = vACC + 4*a
        c = '0' if k == 0 else f'v[{acc}:{acc+3}]'
        e(f'v_mfma_f32_16x16x32_bf16 v[{acc}:{acc+3}], v[{b}:{b+3}], v[{vH+4*k}:{vH+4*k+3}], {c}')
e(f's_mov_b32 s{sTMP}, {8*7168}')
e('s_nop 5')
for r in range(4):
    e(f'v_bfi_b32 v{vACC+r}, v{vFF}, s{sTB+r}, v{vACC+r}')
e(f'buffer_store_dwordx4 v[{vACC}:{vACC+3}], v{vPUB2}, s[{SW}:{SW+3}], 0 offen sc1')
for r in range(4):
    e(f'v_bfi_b32 v{vACC+4+r}, v{vFF}, s{sTB+r}, v{vACC+4+r}')
e(f'buffer_store_dwordx4 v[{vACC+4}:{vACC+7}], v{vPUB2}, s[{SW}:{SW+3}], s{sTMP} offen sc1')
lab('L_nop2')
stamp()
e(f's_cmp_gt_u32 s{sWV}, 1')
e('s_cbranch_scc1 L_fin_done')
e(f's_cmp_ge_u32 s{sTASK}, 256')
e('s_cbranch_scc1 L_fin_done')
e(f's_mul_i32 s{sP}, s{sTASK}, 7168')
e(f's_add_u32 s{sP}, s{sP}, {YBASE}')
e(f's_add_u32 s{sTMP2}, s{sP}, 4096')
def poll2_loads():
    for i in range(7):
        so = sP if i < 4 else sTMP2
        e(f'buffer_load_dwordx4 v[{vG+4*i}:{vG+4*i+3}], v{vL16}, s[{SW}:{SW+3}], s{so} offen offset:{(i&3)*1024} sc1')
poll2_loads()
e(f'v_mov_b32 v{vRS}, 0')
for i in range(8):
    e(f'v_dot2c_f32_bf16 v{vRS}, v{vRX+i}, v{vRX+8+i}')
e('s_nop 2')
for sh in (1, 2, 4, 8):
    e(f'v_add_f32_dpp v{vRS}, v{vRS}, v{vRS} row_ror:{sh} row_mask:0xf bank_mask:0xf')
    e('s_nop 1')
e(f'v_mov_b32 v{vT1}, v{vRS}')
e('s_nop 1')
e(f'v_permlane16_swap_b32 v{vRS}, v{vT1}')
e(f'v_add_f32 v{vRS}, v{vRS}, v{vT1}')
e(f'v_mov_b32 v{vT1}, v{vRS}')
e('s_nop 1')
e(f'v_permlane32_swap_b32 v{vRS}, v{vT1}')
e(f'v_add_f32 v{vRS}, v{vRS}, v{vT1}')
e(f'v_cvt_pk_bf16_f32 v{vRS}, v{vRS}, v{vRS}')
e(f'v_lshlrev_b32 v{vRS}, 16, v{vRS}')
e(f'v_mul_f32 v{vRS}, 0xbfb8aa3b, v{vRS}')
e(f'v_exp_f32 v{vRS}, v{vRS}')
e('s_nop 0')
e(f'v_add_f32 v{vRS}, 1.0, v{vRS}')
e(f'v_rcp_f32 v{vRS}, v{vRS}')
e(f'v_lshlrev_b32 v{vXR}, 16, v{vXR}')
e(f'v_cvt_pk_bf16_f32 v{vRS}, v{vRS}, v{vRS}')
e(f'v_lshlrev_b32 v{vRS}, 16, v{vRS}')
e(f's_mov_b32 s{sCNT}, {POLL_MAX}')
e('s_branch L_poll2w')
lab('L_poll2')
poll2_loads()
lab('L_poll2w')
e(f's_sub_u32 s{sCNT}, s{sCNT}, 1')
e('s_cbranch_scc1 L_poll2_done')
for i in range(7):
    e(f's_waitcnt vmcnt({6-i})')
    check(vG + 4*i)
e('s_cmp_eq_u64 exec, -1')
e('s_mov_b64 exec, -1')
e('s_cbranch_scc0 L_poll2')
lab('L_poll2_done')
e('s_waitcnt vmcnt(0)')
stamp()
def padd(a, b):
    e(f'v_pk_add_f32 v[{vG+4*a}:{vG+4*a+1}], v[{vG+4*a}:{vG+4*a+1}], v[{vG+4*b}:{vG+4*b+1}]')
    e(f'v_pk_add_f32 v[{vG+4*a+2}:{vG+4*a+3}], v[{vG+4*a+2}:{vG+4*a+3}], v[{vG+4*b+2}:{vG+4*b+3}]')
padd(0, 1); padd(2, 3); padd(4, 5); padd(0, 2); padd(4, 6); padd(0, 4)
e('s_nop 1')
e(f'v_permlane32_swap_b32 v{vG}, v{vG+2}')
e(f'v_permlane32_swap_b32 v{vG+1}, v{vG+3}')
e(f'v_add_f32 v{vG}, v{vG}, v{vG+2}')
e(f'v_add_f32 v{vG+1}, v{vG+1}, v{vG+3}')
e('s_nop 1')
e(f'v_permlane16_swap_b32 v{vG}, v{vG+1}')
e(f'v_add_f32 v{vG}, v{vG}, v{vG+1}')
e('s_nop 1')
e(f'v_add_f32_dpp v{vG}, v{vG}, v{vG} row_ror:8 row_mask:0xf bank_mask:0xf')
e(f'v_cvt_pk_bf16_f32 v{vG}, v{vG}, v{vG}')
e(f'v_lshlrev_b32 v{vG}, 16, v{vG}')
e(f'v_mul_f32 v{vG}, v{vG}, v{vRS}')
e(f'v_cvt_pk_bf16_f32 v{vG}, v{vG}, v{vG}')
e(f'v_lshlrev_b32 v{vG}, 16, v{vG}')
e(f'v_fma_f32 v{vG}, v{vXR}, 0, v{vG}')
e(f'v_add_f32 v{vG}, v{vG}, v{vXR}')
e(f'v_cvt_pk_bf16_f32 v{vG}, v{vG}, v{vG}')
e(f's_mov_b64 exec, s[{sLO}:{sLO+1}]')
e(f'buffer_store_short v{vG}, v{vOUT}, s[{SO}:{SO+3}], 0 offen')
e(f's_cmp_lg_u32 s{sTASK}, 0')
e('s_cbranch_scc1 L_fin_done')
e('s_mov_b64 exec, 1')
e(f'v_mov_b32 v{vT1}, s{sTAG}')
e(f'buffer_store_dword v{vT1}, v{vL16}, s[{SW}:{SW+3}], 0 offen sc1')
lab('L_fin_done')
if STAMPS:
    e('s_waitcnt vmcnt(0)')
    stamp()
    e('s_getreg_b32 s62, hwreg(HW_REG_XCC_ID)')
    e('s_waitcnt lgkmcnt(0)')
    n = nstamp[0]
    e('s_mov_b64 exec, 1')
    e(f's_lshl_b32 s{sTMP}, s2, 2')
    e(f's_add_u32 s{sTMP}, s{sTMP}, s{sWV}')
    e(f's_lshl_b32 s{sTMP}, s{sTMP}, 6')
    e(f's_add_u32 s{sTMP}, s{sTMP}, {STAMPBASE}')
    for i in range(n):
        e(f'v_mov_b32 v{vT1}, s{64+2*i}')
        e(f'buffer_store_dword v{vT1}, v{vL16}, s[{SW}:{SW+3}], s{sTMP} offen offset:{4*i}')
        e('s_nop 0')
    e(f'v_mov_b32 v{vT1}, s62')
    e(f'buffer_store_dword v{vT1}, v{vL16}, s[{SW}:{SW+3}], s{sTMP} offen offset:56')
lab('L_end')
e('s_endpgm')
o += ['.section .rodata,"a"', '.p2align 6', f'.amdhsa_kernel {NAME}',
      f'  .amdhsa_next_free_vgpr {NV}', '  .amdhsa_next_free_sgpr 96', f'  .amdhsa_accum_offset {NV}',
      '  .amdhsa_group_segment_fixed_size 0', '  .amdhsa_kernarg_size 64', '  .amdhsa_user_sgpr_count 2',
      '  .amdhsa_user_sgpr_kernarg_segment_ptr 1', '  .amdhsa_system_sgpr_workgroup_id_x 1',
      '  .amdhsa_float_denorm_mode_32 3',
      '.end_amdhsa_kernel']
print('\n'.join(o))
```

```python
import sys
opts = dict(a.split('=') if '=' in a else (a, '1') for a in sys.argv[1:])
STAMPS = 'stamps' in opts
NT1 = '' if 'nont1' in opts else ' nt'
NT2 = '' if 'nont2' in opts else ' nt'
SC = ' ' + opts.get('sc', 'sc1').replace('+', ' ')
NAME = 'standalone__moe_arch_mod__decode_kernel'
NWG = 256
LDS_D = 65536
LDS_X = 98304
LDS_H = LDS_X + 8192
LDS_TOTAL = LDS_H + 2048
RBASE = 1024
PBASE = 4096
YBASE = 4096 + 56 * 16384
STAMPBASE = 3 << 20
WS_SIZE = 4 << 20
assert YBASE + 256 * 7168 <= STAMPBASE
POLL_MAX = 1 << 16
STAGES = eval(opts.get('stages', '[[0,1,2,3],[4,5,6,7],[8,9,10,11],[12,13],[14],[15]]'))
PRO = int(opts.get('pro', 10))

o = []
def e(s): o.append('    ' + s)
def lab(s): o.append(s + ':')
nstamp = [0]
def stamp(i=None):
    if STAMPS:
        if i is None:
            i = nstamp[0]
        nstamp[0] = max(nstamp[0], i + 1)
        e(f's_memrealtime s[{64+2*i}:{65+2*i}]')

hdr = open('standalone__moe_arch_mod__decode.s.ref').read().split('\n')
for l in hdr:
    if l.startswith('; @launch'):
        o.append(f'; @launch grid=({NWG},1,1) block=(256,1,1) lds={LDS_TOTAL}')
        break
    o.append(l)
o += ['.amdgcn_target "amdgcn-amd-amdhsa--gfx950"', '.text', f'.globl {NAME}', '.p2align 8',
      f'.type {NAME},@function', f'{NAME}:']

SM, SD, SX, SW, SO, SR = 4, 8, 12, 16, 20, 24
sTAG = 28
sEXP = 30
sTB = 32
sCT, sMEM, sC3, sWV, sTMP, sTMP2, sP, sCNT, sTASK, sROW0, sCOL0, sKK, sSEL0, sMW, sXCD, sSLOT = range(36, 52)
sLO, sHI = 52, 54
sT3, sMD, sMX = 56, 57, 58
vL, vT0, vT1, vT2, vA, vB, vX, vD, vRD1, vRD2, vL16, vPUB1, vPUB2, vFF, vHW, vHR = range(1, 17)
vWV = 17; vOUT = 18; vXR = 19; vRS = 20; vXL = 21; vRA = 22
vXF = 24
vACC = 32
vW = 40
vWD = 56
vG = 88
vH = 120
vP = 136
vRX = 56
NV = 148

def common_tag():
    e(f's_mul_i32 s{sTAG}, s{sTAG}, 1664525')
    e(f's_add_u32 s{sTAG}, s{sTAG}, 1013904223')
    e(f's_and_b32 s{sEXP}, s{sTAG}, 0xffff')
    e(f's_lshr_b32 s{sEXP+1}, s{sTAG}, 16')
    e(f's_mov_b32 s{sTB}, s{sTAG}')
    e(f's_lshr_b32 s{sTB+1}, s{sTAG}, 8')
    e(f's_lshr_b32 s{sTB+2}, s{sTAG}, 16')
    e(f's_lshr_b32 s{sTB+3}, s{sTAG}, 24')

e(f's_cmp_ge_u32 s2, {NWG}')
e('s_cbranch_scc1 L_end')
stamp(0)
e(f's_and_b32 s{sTMP}, s2, 8')
e(f's_add_u32 s{sTMP}, s{sTMP}, 16')
e(f's_load_dwordx2 s[{SM}:{SM+1}], s[0:1], s{sTMP}')
e(f's_load_dwordx2 s[{SX}:{SX+1}], s[0:1], 0')
e(f's_load_dwordx2 s[{SD}:{SD+1}], s[0:1], 32')
e(f's_load_dwordx2 s[{SW}:{SW+1}], s[0:1], 56')
e(f's_load_dwordx2 s[{SO}:{SO+1}], s[0:1], 40')
e(f's_load_dwordx2 s[{SR}:{SR+1}], s[0:1], 8')
e(f's_and_b32 s{sXCD}, s2, 7')
e(f's_lshr_b32 s{sSLOT}, s2, 3')
e(f'v_lshrrev_b32 v{vWV}, 6, v0')
e(f'v_and_b32 v{vL}, 63, v0')
e(f'v_readfirstlane_b32 s{sWV}, v{vWV}')
for s, sz in ((SM, 1024*3584*2), (SD, 3584*1024*2), (SX, 16384), (SW, WS_SIZE), (SO, 16384), (SR, 2048)):
    e(f's_mov_b32 s{s+2}, {sz}')
    e(f's_mov_b32 s{s+3}, 0x20000')
e(f'v_lshlrev_b32 v{vL16}, 4, v{vL}')
e(f's_mov_b32 s{sLO}, 0x00ff00ff'); e(f's_mov_b32 s{sLO+1}, 0x00ff00ff')
e(f's_mov_b32 s{sSEL0}, 0x0c0c0400')
e(f'v_mov_b32 v{vFF}, 0xff')
e(f's_lshl_b32 s{sTASK}, s{sXCD}, 5')
e(f's_add_u32 s{sTASK}, s{sTASK}, s{sSLOT}')
e(f's_lshr_b32 s{sTMP}, s{sSLOT}, 2')
e(f's_cmp_eq_u32 s{sXCD}, 7')
e('s_cbranch_scc1 L_x7')
e(f's_sub_u32 s{sTMP2}, s{sTMP}, 2')
e(f's_cmp_ge_i32 s{sTMP2}, 3')
e(f's_addc_u32 s{sTMP2}, s{sTMP2}, 0')
e(f's_cmp_lt_u32 s{sSLOT}, 8')
e(f's_cselect_b32 s{sTMP2}, 3, s{sTMP2}')
e(f's_cselect_b32 s{sC3}, 1, 0')
e(f's_lshl_b32 s{sCT}, s{sXCD}, 3')
e(f's_add_u32 s{sCT}, s{sCT}, s{sTMP2}')
e('s_branch L_dec')
lab('L_x7')
e(f's_cmp_ge_u32 s{sSLOT}, 28')
e('s_cbranch_scc1 L_router')
e(f's_lshl_b32 s{sCT}, s{sTMP}, 3')
e(f's_add_u32 s{sCT}, s{sCT}, 7')
e(f's_mov_b32 s{sC3}, 0')
lab('L_dec')
e(f's_lshl_b32 s{sTMP}, s{sC3}, 2')
e(f's_or_b32 s{sTMP}, s{sTMP}, 3')
e(f's_and_b32 s{sMEM}, s{sSLOT}, s{sTMP}')
e(f's_lshr_b32 s{sKK}, s{sMEM}, 1')
e(f's_lshl_b32 s{sTMP}, s{sKK}, 9')
e(f's_add_u32 s{sTMP}, s{sTMP}, 256')
e(f's_lshl_b32 s{sTMP2}, s{sKK}, 8')
e(f's_cmp_lg_u32 s{sC3}, 0')
e(f's_cselect_b32 s{sROW0}, s{sTMP2}, s{sTMP}')
e(f'v_lshrrev_b32 v{vT1}, 5, v{vL}')
e(f'v_bfe_u32 v{vT2}, v{vL}, 3, 2')
e(f'v_lshl_add_u32 v{vT0}, v{vT1}, 3, v{vT2}')
e(f'v_lshrrev_b32 v{vT2}, 4, v{vL}')
e(f'v_lshlrev_b32 v{vT2}, 1, v{vT2}')
e(f'v_sub_u32 v{vT2}, v{vL}, v{vT2}')
e(f'v_and_b32 v{vT2}, 7, v{vT2}')
e(f'v_lshlrev_b32 v{vT2}, 4, v{vT2}')
e(f's_lshr_b32 s{sTMP}, s{sWV}, 1')
e(f's_lshl_b32 s{sTMP}, s{sTMP}, 4')
e(f's_and_b32 s{sTMP2}, s{sWV}, 1')
e(f's_lshl_b32 s{sTMP2}, s{sTMP2}, 2')
e(f's_add_u32 s{sTMP}, s{sTMP}, s{sTMP2}')
e(f's_add_u32 s{sTMP}, s{sTMP}, s{sROW0}')
e(f's_mul_i32 s{sTMP}, s{sTMP}, 7168')
e(f's_lshl_b32 s{sTMP2}, s{sCT}, 7')
e(f's_add_u32 s{sTMP}, s{sTMP}, s{sTMP2}')
e(f'v_mul_u32_u24 v{vB}, 7168, v{vT0}')
e(f'v_add3_u32 v{vB}, v{vB}, v{vT2}, s{sTMP}')
e(f'v_subrev_u32 v{vA}, {256*7168}, v{vB}')
e(f'v_and_b32 v{vT1}, 7, v{vL}')
e(f'v_lshlrev_b32 v{vX}, 11, v{vT1}')
e(f'v_and_b32 v{vT1}, 8, v{vL}')
e(f'v_lshl_add_u32 v{vX}, v{vT1}, 3, v{vX}')
e(f'v_and_b32 v{vT1}, 48, v{vL}')
e(f's_lshl_b32 s{sTMP}, s{sROW0}, 1')
e(f's_lshl_b32 s{sTMP2}, s{sWV}, 7')
e(f's_add_u32 s{sTMP}, s{sTMP}, s{sTMP2}')
e(f'v_add3_u32 v{vX}, v{vX}, v{vT1}, s{sTMP}')
e(f'v_subrev_u32 v{vXL}, 512, v{vX}')
e(f's_lshl_b32 s{sTMP}, s{sMEM}, 8')
e(f's_lshr_b32 s{sTMP}, s{sTMP}, s{sC3}')
e(f's_lshl_b32 s{sTMP2}, s{sWV}, 6')
e(f's_add_u32 s{sCOL0}, s{sTMP}, s{sTMP2}')
e(f's_lshl_b32 s{sTMP}, s{sCT}, 17')
e(f's_lshl_b32 s{sTMP2}, s{sCOL0}, 1')
e(f's_add_u32 s{sTMP}, s{sTMP}, s{sTMP2}')
e(f's_lshr_b32 s{sTMP2}, s{sWV}, 1')
e(f's_and_b32 s{sT3}, s{sTMP2}, s{sC3}')
e(f's_cselect_b32 s{sTMP}, 0x10000000, s{sTMP}')
e(f'v_lshlrev_b32 v{vD}, 11, v{vT0}')
e(f'v_add3_u32 v{vD}, v{vD}, v{vT2}, s{sTMP}')
e(f's_lshl_b32 s{sMW}, s{sWV}, 14')
e(f's_lshl_b32 s{sMD}, s{sWV}, 13')
e(f's_add_u32 s{sMD}, s{sMD}, {LDS_D}')
e(f's_lshl_b32 s{sMX}, s{sWV}, 10')
e(f's_add_u32 s{sMX}, s{sMX}, {LDS_X}')

cur_m0 = [None]
def set_m0(key, expr_reg, add):
    if cur_m0[0] == (key, add): return False
    cur_m0[0] = (key, add)
    if add: e(f's_add_u32 m0, s{expr_reg}, {add}')
    else: e(f's_mov_b32 m0, s{expr_reg}')
    return True
def issue(item):
    k, i = item
    if k == 'W':
        ch = set_m0('W', sMW, (i >> 2) * 4096)
        imm = (i & 3) * 1024
        so = (i & 7) * 32 * 7168 - imm
        v, srd, nt = (vA if i < 8 else vB), SM, NT1
    elif k == 'D':
        ch = set_m0('D', sMD, (i >> 2) * 4096)
        sp, gp, e4 = i >> 2, (i >> 1) & 1, i & 1
        imm = (i & 3) * 1024
        so = (32*sp + 16*gp + 4*e4) * 2048 - imm
        v, srd, nt = vD, SD, NT2
    else:
        ch = set_m0('X', sMX, i * 4096)
        imm = 0; so = 0
        v, srd, nt = (vXL if i == 0 else vX), SX, ''
    if so == 0:
        sof = '0'
        if ch: e('s_nop 0')
    else:
        e(f's_mov_b32 s{sTMP}, {so}'); sof = f's{sTMP}'
    e(f'buffer_load_dwordx4 v{v}, s[{srd}:{srd+3}], {sof} offen offset:{imm}{nt} lds')

stream = [('W', s) for s in range(16)] + [('D', u) for u in range(8)]
sched = []; pos = PRO
for st in STAGES:
    n = len(st)
    sched.append(stream[pos:pos+n]); pos = min(pos + n, len(stream))
assert pos == len(stream), pos
e(f's_mov_b32 m0, s{sMW}'); cur_m0[0] = ('W', 0)
e(f's_cmp_lg_u32 s{sC3}, 0')
e('s_waitcnt lgkmcnt(0)')
stamp(1)
e(f's_load_dword s{sTAG}, s[{SW}:{SW+1}], 0')
e('s_cbranch_scc1 L_pro3')
issued = [('W', 0), ('X', 0), ('X', 1)] + stream[1:PRO]
for it in issued: issue(it)
e('s_branch L_pre')
lab('L_pro3')
iB = [i for i, st in enumerate(STAGES) if st[0] == 8][0]
upto = stream[:PRO] + [x for sc_ in sched[:iB] for x in sc_]
c3list = [('W', 8), ('X', 1)] + [x for x in upto if not (x[0] == 'W' and x[1] <= 8)]
cur_m0[0] = None
for it in c3list: issue(it)
lab('L_pre')
cur_m0[0] = None
stamp(2)
e(f'v_bfe_u32 v{vT1}, v{vL}, 2, 3')
e(f'v_lshlrev_b32 v{vT0}, 7, v{vT1}')
e(f'v_and_b32 v{vT2}, 1, v{vL}')
e(f'v_lshl_add_u32 v{vT0}, v{vT2}, 3, v{vT0}')
e(f'v_and_b32 v{vT1}, 6, v{vT1}')
e(f'v_bfe_u32 v{vT2}, v{vL}, 1, 1')
e(f'v_add_u32 v{vT1}, v{vT1}, v{vT2}')
e(f'v_lshl_add_u32 v{vT2}, v{vWV}, 1, v{vT1}')
e(f'v_and_b32 v{vT2}, 7, v{vT2}')
e(f'v_lshl_add_u32 v{vRD1}, v{vT2}, 4, v{vT0}')
e(f'v_lshrrev_b32 v{vT2}, 5, v{vL}')
e(f'v_lshl_add_u32 v{vRD1}, v{vT2}, 15, v{vRD1}')
e(f'v_lshl_add_u32 v{vRD2}, v{vT2}, 11, v{vT0}')
e(f'v_add_u32 v{vRD2}, s{sMD}, v{vRD2}')
for st in range(4):
    e(f'v_add_u32 v{vT2}, {2*st}, v{vT1}')
    e(f'v_and_b32 v{vT2}, 7, v{vT2}')
    e(f'v_lshl_add_u32 v{vP+8+st}, v{vT2}, 4, v{vRD2}')
e(f'v_add_u32 v{vXL}, {LDS_X}, v{vL16}')
e(f's_lshl_b32 s{sP}, s{sCT}, 14')
e(f's_lshl_b32 s{sTMP}, s{sWV}, 10')
e(f's_add_u32 s{sP}, s{sP}, s{sTMP}')
e(f's_add_u32 s{sP}, s{sP}, {PBASE}')
e(f's_lshl_b32 s{sTMP}, s{sKK}, 12')
e(f's_and_b32 s{sTMP2}, s{sMEM}, 1')
e(f's_lshl_b32 s{sTMP2}, s{sTMP2}, 7')
e(f's_add_u32 s{sTMP}, s{sTMP}, s{sTMP2}')
e(f'v_add_u32 v{vPUB1}, s{sTMP}, v{vL16}')
e(f'v_and_b32 v{vT1}, 7, v{vL}')
e(f'v_lshrrev_b32 v{vT2}, 4, v{vL}')
e(f'v_bfe_u32 v{vT0}, v{vL}, 3, 1')
e(f'v_lshl_add_u32 v{vT0}, v{vT0}, 2, v{vT2}')
e(f'v_mul_u32_u24 v{vPUB2}, 7168, v{vT0}')
e(f'v_lshl_add_u32 v{vPUB2}, v{vT1}, 4, v{vPUB2}')
e(f's_mul_i32 s{sTMP}, s{sCOL0}, {7168//4}')
e(f's_lshl_b32 s{sTMP2}, s{sCT}, 7')
e(f's_add_u32 s{sTMP}, s{sTMP}, s{sTMP2}')
e(f's_add_u32 s{sTMP}, s{sTMP}, {YBASE}')
e(f'v_add_u32 v{vPUB2}, s{sTMP}, v{vPUB2}')
e(f'v_mul_u32_u24 v{vHR}, 144, v{vT1}')
e(f'v_add_u32 v{vHR}, {LDS_H}, v{vHR}')
e(f'v_lshl_add_u32 v{vHW}, v{vWV}, 5, v{vHR}')
e(f'v_lshl_add_u32 v{vHW}, v{vT2}, 3, v{vHW}')
e(f'v_lshl_add_u32 v{vHR}, v{vT2}, 4, v{vHR}')
for i in range(8): e(f'v_mov_b32 v{vACC+i}, 0')
for i in range(16): e(f'v_mov_b32 v{vH+i}, 0')
e(f's_not_b64 s[{sHI}:{sHI+1}], s[{sLO}:{sLO+1}]')
e('s_waitcnt lgkmcnt(0)')
common_tag()
e(f's_cmp_lg_u32 s{sC3}, 0')
e('s_cbranch_scc1 L_compB')
for si, stage in enumerate(STAGES):
    if stage[0] == 8: lab('L_compB'); cur_m0[0] = None
    idx = issued.index(('W', stage[-1]))
    e(f's_waitcnt vmcnt({len(issued)-1-idx})')
    for it in sched[si]: issue(it); issued.append(it)
    e('s_barrier')
    if stage[0] == 8: stamp(3)
    ts = sorted(set(s >> 1 for s in stage))
    nrd = 0
    for t in ts:
        if (2*t) in stage:
            e(f'ds_read_b128 v[{vXF+4*(t&1)}:{vXF+4*(t&1)+3}], v{vXL} offset:{t*1024}')
    for i, s in enumerate(stage):
        b = vW + 4*i
        e(f'ds_read_b64_tr_b16 v[{b}:{b+1}], v{vRD1} offset:{s*1024}')
        e(f'ds_read_b64_tr_b16 v[{b+2}:{b+3}], v{vRD1} offset:{16384+s*1024}')
    for i, s in enumerate(stage):
        b = vW + 4*i
        e(f's_waitcnt lgkmcnt({2*(len(stage)-1-i)})')
        acc = vACC + 4*(s & 1); t = s >> 1
        xf = vXF + 4*(t & 1)
        e(f'v_mfma_f32_16x16x32_bf16 v[{acc}:{acc+3}], v[{b}:{b+3}], v[{xf}:{xf+3}], v[{acc}:{acc+3}]')
stamp(4)
e(f's_mov_b32 s{sCNT}, {POLL_MAX}')
e(f's_add_u32 s{sTMP2}, s{sP}, 4096')
e('s_nop 5')
for r in range(4):
    e(f'v_add_f32_dpp v{vP+r}, v{vACC+4+r}, v{vACC+r} row_ror:8 row_mask:0xf bank_mask:0xf')
for r in range(4):
    e(f'v_bfi_b32 v{vP+r}, v{vFF}, s{sTB+r}, v{vP+r}')
e(f's_mov_b64 exec, s[{sLO}:{sLO+1}]')
e(f'buffer_store_dwordx4 v[{vP}:{vP+3}], v{vPUB1}, s[{SW}:{SW+3}], s{sP} offen{SC}')
e('s_mov_b64 exec, -1')
stamp(5)
e('s_waitcnt vmcnt(1)')
for st in range(4):
    for s in range(2):
        b = vWD + 8*st + 4*s
        e(f'ds_read_b64_tr_b16 v[{b}:{b+1}], v{vP+8+st} offset:{s*4096}')
        e(f'ds_read_b64_tr_b16 v[{b+2}:{b+3}], v{vP+8+st} offset:{s*4096+1024}')
stamp(6)
def check(g):
    e(f'v_perm_b32 v{vP+4}, v{g+1}, v{g}, s{sSEL0}')
    e(f'v_perm_b32 v{vP+5}, v{g+3}, v{g+2}, s{sSEL0}')
    e(f'v_cmpx_eq_u64 vcc, s[{sEXP}:{sEXP+1}], v[{vP+4}:{vP+5}]')
lab('L_poll1')
e(f'buffer_load_dwordx4 v[{vG}:{vG+3}], v{vL16}, s[{SW}:{SW+3}], s{sP} offen{SC}')
e(f'buffer_load_dwordx4 v[{vG+4}:{vG+7}], v{vL16}, s[{SW}:{SW+3}], s{sTMP2} offen{SC}')
e(f's_cmp_lg_u32 s{sC3}, 0')
e('s_cbranch_scc0 L_poll1n')
e(f's_add_u32 s{sTMP}, s{sP}, 8192')
e(f'buffer_load_dwordx4 v[{vG+8}:{vG+11}], v{vL16}, s[{SW}:{SW+3}], s{sTMP} offen{SC}')
e(f's_add_u32 s{sTMP}, s{sP}, 12288')
e(f'buffer_load_dwordx4 v[{vG+12}:{vG+15}], v{vL16}, s[{SW}:{SW+3}], s{sTMP} offen{SC}')
e('s_waitcnt vmcnt(0)')
check(vG+8); check(vG+12)
lab('L_poll1n')
e(f's_sub_u32 s{sCNT}, s{sCNT}, 1')
e('s_cbranch_scc1 L_poll1_done')
e('s_waitcnt vmcnt(0)')
check(vG); check(vG+4)
e('s_cmp_eq_u64 exec, -1')
e('s_mov_b64 exec, -1')
e('s_cbranch_scc0 L_poll1')
lab('L_poll1_done')
e('s_mov_b64 exec, -1')
e('s_waitcnt vmcnt(0)')
stamp(7)
e(f'v_pk_add_f32 v[{vG}:{vG+1}], v[{vG}:{vG+1}], v[{vG+4}:{vG+5}]')
e(f'v_pk_add_f32 v[{vG+2}:{vG+3}], v[{vG+2}:{vG+3}], v[{vG+6}:{vG+7}]')
e(f's_cmp_lg_u32 s{sC3}, 0')
e('s_cbranch_scc0 L_act')
e(f'v_pk_add_f32 v[{vG+8}:{vG+9}], v[{vG+8}:{vG+9}], v[{vG+12}:{vG+13}]')
e(f'v_pk_add_f32 v[{vG+10}:{vG+11}], v[{vG+10}:{vG+11}], v[{vG+14}:{vG+15}]')
e(f'v_pk_add_f32 v[{vG}:{vG+1}], v[{vG}:{vG+1}], v[{vG+8}:{vG+9}]')
e(f'v_pk_add_f32 v[{vG+2}:{vG+3}], v[{vG+2}:{vG+3}], v[{vG+10}:{vG+11}]')
lab('L_act')
e(f's_mov_b32 s{sTMP}, 0xbfb8aa3b')
e(f's_mov_b32 s{sTMP2}, 0xffff0000')
R = vG; P = vP
e(f'v_cvt_pk_bf16_f32 v{P}, v{R}, v{R+1}')
e(f'v_cvt_pk_bf16_f32 v{P+1}, v{R+2}, v{R+3}')
e(f'v_lshlrev_b32 v{R}, 16, v{P}')
e(f'v_and_b32 v{R+1}, s{sTMP2}, v{P}')
e(f'v_lshlrev_b32 v{R+2}, 16, v{P+1}')
e(f'v_and_b32 v{R+3}, s{sTMP2}, v{P+1}')
for r in range(4): e(f'v_mul_f32 v{P+r}, s{sTMP}, v{R+r}')
for r in range(4): e(f'v_exp_f32 v{P+r}, v{P+r}')
for r in range(4): e(f'v_add_f32 v{P+r}, 1.0, v{P+r}')
for r in range(4): e(f'v_rcp_f32 v{P+r}, v{P+r}')
for r in range(4): e(f'v_mul_f32 v{P+r}, v{P+r}, v{R+r}')
e(f'v_cvt_pk_bf16_f32 v{P+4}, v{P}, v{P+1}')
e(f'v_cvt_pk_bf16_f32 v{P+5}, v{P+2}, v{P+3}')
e(f'v_lshlrev_b32 v{P}, 16, v{P+4}')
e(f'v_and_b32 v{P+1}, s{sTMP2}, v{P+4}')
e(f'v_lshlrev_b32 v{P+2}, 16, v{P+5}')
e(f'v_and_b32 v{P+3}, s{sTMP2}, v{P+5}')
for r in range(4):
    e(f'v_mul_f32_dpp v{P+r}, v{R+r}, v{P+r} row_ror:8 row_mask:0xf bank_mask:0xf')
e(f'v_cvt_pk_bf16_f32 v{P+4}, v{P}, v{P+1}')
e(f'v_cvt_pk_bf16_f32 v{P+5}, v{P+2}, v{P+3}')
e(f's_mov_b64 exec, s[{sLO}:{sLO+1}]')
e(f'ds_write_b64 v{vHW}, v[{P+4}:{P+5}]')
e('s_waitcnt lgkmcnt(0)')
e('s_barrier')
e(f'ds_read_b128 v[{vH}:{vH+3}], v{vHR}')
e(f'ds_read_b128 v[{vH+4}:{vH+7}], v{vHR} offset:64')
e(f's_mov_b64 exec, s[{sHI}:{sHI+1}]')
e(f'ds_read_b128 v[{vH+8}:{vH+11}], v{vHR}')
e(f'ds_read_b128 v[{vH+12}:{vH+15}], v{vHR} offset:64')
e('s_mov_b64 exec, -1')
e(f's_cmp_lg_u32 s{sT3}, 0')
e('s_cbranch_scc1 L_nop2')
for k in range(4):
    half, s = k >> 1, k & 1
    e(f's_waitcnt lgkmcnt({3-k})')
    for a in range(2):
        st = 2*a + half
        b = vWD + 8*st + 4*s
        acc = vACC + 4*a
        c = '0' if k == 0 else f'v[{acc}:{acc+3}]'
        e(f'v_mfma_f32_16x16x32_bf16 v[{acc}:{acc+3}], v[{b}:{b+3}], v[{vH+4*k}:{vH+4*k+3}], {c}')
e(f's_mov_b32 s{sTMP}, {8*7168}')
e('s_nop 5')
for r in range(4):
    e(f'v_bfi_b32 v{vACC+r}, v{vFF}, s{sTB+r}, v{vACC+r}')
e(f'buffer_store_dwordx4 v[{vACC}:{vACC+3}], v{vPUB2}, s[{SW}:{SW+3}], 0 offen{SC}')
for r in range(4):
    e(f'v_bfi_b32 v{vACC+4+r}, v{vFF}, s{sTB+r}, v{vACC+4+r}')
e(f'buffer_store_dwordx4 v[{vACC+4}:{vACC+7}], v{vPUB2}, s[{SW}:{SW+3}], s{sTMP} offen{SC}')
lab('L_nop2')
stamp(8)
e(f's_cmp_lg_u32 s{sWV}, 0')
e('s_cbranch_scc1 L_fin_done')
e(f's_mul_i32 s{sP}, s{sTASK}, 7168')
e(f's_add_u32 s{sP}, s{sP}, {YBASE}')
e(f's_add_u32 s{sTMP2}, s{sP}, 4096')
e(f'v_and_b32 v{vT1}, 7, v{vL}')
e(f'v_lshlrev_b32 v{vRA}, 4, v{vT1}')
e(f'v_lshlrev_b32 v{vOUT}, 11, v{vT1}')
e(f'v_lshrrev_b32 v{vT1}, 4, v{vL}')
e(f'v_lshl_add_u32 v{vOUT}, v{vT1}, 1, v{vOUT}')
e(f's_lshl_b32 s{sTMP}, s{sTASK}, 3')
e(f'v_add_u32 v{vOUT}, s{sTMP}, v{vOUT}')
e(f'buffer_load_ushort v{vXR}, v{vOUT}, s[{SX}:{SX+3}], 0 offen')
e(f's_mov_b32 s{sCNT}, {POLL_MAX}')
lab('L_poll2')
e(f'buffer_load_dwordx4 v[{vG+28}:{vG+31}], v{vRA}, s[{SW}:{SW+3}], 0 offen offset:{RBASE}{SC}')
for i in range(7):
    so = sP if i < 4 else sTMP2
    e(f'buffer_load_dwordx4 v[{vG+4*i}:{vG+4*i+3}], v{vL16}, s[{SW}:{SW+3}], s{so} offen offset:{(i&3)*1024}{SC}')
e(f's_sub_u32 s{sCNT}, s{sCNT}, 1')
e('s_cbranch_scc1 L_poll2_done')
e('s_waitcnt vmcnt(7)')
check(vG + 28)
for i in range(7):
    e(f's_waitcnt vmcnt({6-i})')
    check(vG + 4*i)
e('s_cmp_eq_u64 exec, -1')
e('s_mov_b64 exec, -1')
e('s_cbranch_scc0 L_poll2')
lab('L_poll2_done')
e('s_waitcnt vmcnt(0)')
stamp(9)
def padd(a, b):
    e(f'v_pk_add_f32 v[{vG+4*a}:{vG+4*a+1}], v[{vG+4*a}:{vG+4*a+1}], v[{vG+4*b}:{vG+4*b+1}]')
    e(f'v_pk_add_f32 v[{vG+4*a+2}:{vG+4*a+3}], v[{vG+4*a+2}:{vG+4*a+3}], v[{vG+4*b+2}:{vG+4*b+3}]')
padd(0, 1); padd(2, 3); padd(4, 5); padd(0, 2); padd(4, 6); padd(0, 4)
e(f'v_and_b32 v{vRS}, 0xffff0000, v{vG+28}')
e(f'v_lshlrev_b32 v{vXR}, 16, v{vXR}')
e(f'v_permlane32_swap_b32 v{vG}, v{vG+2}')
e(f'v_permlane32_swap_b32 v{vG+1}, v{vG+3}')
e(f'v_add_f32 v{vG}, v{vG}, v{vG+2}')
e(f'v_add_f32 v{vG+1}, v{vG+1}, v{vG+3}')
e('s_nop 1')
e(f'v_permlane16_swap_b32 v{vG}, v{vG+1}')
e(f'v_add_f32 v{vG}, v{vG}, v{vG+1}')
e('s_nop 1')
e(f'v_add_f32_dpp v{vG}, v{vG}, v{vG} row_ror:8 row_mask:0xf bank_mask:0xf')
e(f'v_cvt_pk_bf16_f32 v{vG}, v{vG}, v{vG}')
e(f'v_lshlrev_b32 v{vG}, 16, v{vG}')
e(f'v_mul_f32 v{vG}, v{vG}, v{vRS}')
e(f'v_cvt_pk_bf16_f32 v{vG}, v{vG}, v{vG}')
e(f'v_lshlrev_b32 v{vG}, 16, v{vG}')
e(f'v_fma_f32 v{vG}, v{vXR}, 0, v{vG}')
e(f'v_add_f32 v{vG}, v{vG}, v{vXR}')
e(f'v_cvt_pk_bf16_f32 v{vG}, v{vG}, v{vG}')
e(f's_mov_b64 exec, s[{sLO}:{sLO+1}]')
e(f'buffer_store_short v{vG}, v{vOUT}, s[{SO}:{SO+3}], 0 offen')
e(f's_cmp_lg_u32 s{sTASK}, 0')
e('s_cbranch_scc1 L_fin_done')
e('s_mov_b64 exec, 1')
e(f'v_mov_b32 v{vT1}, s{sTAG}')
e(f'buffer_store_dword v{vT1}, v{vL16}, s[{SW}:{SW+3}], 0 offen sc1')
lab('L_fin_done')
if STAMPS:
    e('s_waitcnt vmcnt(0)')
    stamp(10)
    e('s_getreg_b32 s62, hwreg(HW_REG_XCC_ID)')
    e('s_waitcnt lgkmcnt(0)')
    n = nstamp[0]
    e('s_mov_b64 exec, 1')
    e(f's_lshl_b32 s{sTMP}, s2, 2')
    e(f's_add_u32 s{sTMP}, s{sTMP}, s{sWV}')
    e(f's_lshl_b32 s{sTMP}, s{sTMP}, 6')
    e(f's_add_u32 s{sTMP}, s{sTMP}, {STAMPBASE}')
    for i in range(n):
        e(f'v_mov_b32 v{vT1}, s{64+2*i}')
        e(f'buffer_store_dword v{vT1}, v{vL16}, s[{SW}:{SW+3}], s{sTMP} offen offset:{4*i}')
        e('s_nop 0')
    e(f'v_mov_b32 v{vT1}, s62')
    e(f'buffer_store_dword v{vT1}, v{vL16}, s[{SW}:{SW+3}], s{sTMP} offen offset:56')
if 'dbg' in opts:
    e('s_load_dwordx2 s[88:89], s[0:1], 48')
    e('s_mov_b32 s90, 256'); e('s_mov_b32 s91, 0x20000')
    e('s_waitcnt lgkmcnt(0)')
    e(f's_cmp_lg_u32 s{sWV}, 0')
    e('s_cbranch_scc1 L_end')
    e(f's_cmp_eq_u32 s{sXCD}, 7')
    e('s_cbranch_scc1 L_end')
    for i in range(nstamp[0]):
        e(f'v_mov_b32 v{vT1}, s{64+2*i}')
        e(f'buffer_atomic_umax v{vT1}, v{vL16}, s[88:91], 0 offen offset:{4*i}')
        e('s_nop 1')
    e('s_not_b32 s64, s64')
    e(f'v_mov_b32 v{vT1}, s64')
    e(f'buffer_atomic_umax v{vT1}, v{vL16}, s[88:91], 0 offen offset:60')
lab('L_end')
e('s_endpgm')
lab('L_router')
e(f's_cmp_gt_u32 s{sWV}, 1')
e('s_cbranch_scc1 L_end')
e(f's_sub_u32 s{sTMP}, s{sSLOT}, 28')
e(f's_lshl_b32 s{sTMP}, s{sTMP}, 1')
e(f's_add_u32 s{sKK}, s{sTMP}, s{sWV}')
e(f's_lshl_b32 s{sTMP}, s{sKK}, 11')
e('s_waitcnt lgkmcnt(0)')
e(f's_load_dword s{sTAG}, s[{SW}:{SW+1}], 0')
e(f'buffer_load_dwordx4 v[{vRX}:{vRX+3}], v{vL16}, s[{SX}:{SX+3}], s{sTMP} offen')
e(f'buffer_load_dwordx4 v[{vRX+4}:{vRX+7}], v{vL16}, s[{SX}:{SX+3}], s{sTMP} offen offset:1024')
e(f'buffer_load_dwordx4 v[{vRX+8}:{vRX+11}], v{vL16}, s[{SR}:{SR+3}], 0 offen')
e(f'buffer_load_dwordx4 v[{vRX+12}:{vRX+15}], v{vL16}, s[{SR}:{SR+3}], 0 offen offset:1024')
e(f'v_mov_b32 v{vRS}, 0')
e('s_waitcnt vmcnt(0) lgkmcnt(0)')
common_tag()
for i in range(8):
    e(f'v_dot2c_f32_bf16 v{vRS}, v{vRX+i}, v{vRX+8+i}')
e('s_nop 2')
for sh in (1, 2, 4, 8):
    e(f'v_add_f32_dpp v{vRS}, v{vRS}, v{vRS} row_ror:{sh} row_mask:0xf bank_mask:0xf')
    e('s_nop 1')
e(f'v_mov_b32 v{vT1}, v{vRS}')
e('s_nop 1')
e(f'v_permlane16_swap_b32 v{vRS}, v{vT1}')
e(f'v_add_f32 v{vRS}, v{vRS}, v{vT1}')
e(f'v_mov_b32 v{vT1}, v{vRS}')
e('s_nop 1')
e(f'v_permlane32_swap_b32 v{vRS}, v{vT1}')
e(f'v_add_f32 v{vRS}, v{vRS}, v{vT1}')
e(f'v_cvt_pk_bf16_f32 v{vRS}, v{vRS}, v{vRS}')
e(f'v_lshlrev_b32 v{vRS}, 16, v{vRS}')
e(f'v_mul_f32 v{vRS}, 0xbfb8aa3b, v{vRS}')
e(f'v_exp_f32 v{vRS}, v{vRS}')
e('s_nop 0')
e(f'v_add_f32 v{vRS}, 1.0, v{vRS}')
e(f'v_rcp_f32 v{vRS}, v{vRS}')
e('s_nop 0')
e(f'v_cvt_pk_bf16_f32 v{vRS}, v{vRS}, v{vRS}')
e(f'v_bfi_b32 v{vP}, v{vFF}, s{sTB}, v{vRS}')
for r in range(1, 4): e(f'v_mov_b32 v{vP+r}, s{sTB+r}')
e(f's_lshl_b32 s{sTMP}, s{sKK}, 4')
e('s_mov_b64 exec, 1')
e(f'buffer_store_dwordx4 v[{vP}:{vP+3}], v{vL16}, s[{SW}:{SW+3}], s{sTMP} offen offset:{RBASE}{SC}')
e('s_mov_b64 exec, -1')
e('s_branch L_nop2')
o += ['.section .rodata,"a"', '.p2align 6', f'.amdhsa_kernel {NAME}',
      f'  .amdhsa_next_free_vgpr {NV}', '  .amdhsa_next_free_sgpr 96', f'  .amdhsa_accum_offset {NV}',
      '  .amdhsa_group_segment_fixed_size 0', '  .amdhsa_kernarg_size 64', '  .amdhsa_user_sgpr_count 2',
      '  .amdhsa_user_sgpr_kernarg_segment_ptr 1', '  .amdhsa_system_sgpr_workgroup_id_x 1',
      '  .amdhsa_float_denorm_mode_32 3',
      '.end_amdhsa_kernel']
print('\n'.join(o))
```

```python
import sys
opts = dict(a.split('=') if '=' in a else (a, '1') for a in sys.argv[1:])
STAMPS = 'stamps' in opts
NT1 = '' if 'nont1' in opts else ' nt'
NT2 = '' if 'nont2' in opts else ' nt'
SC = ' ' + opts.get('sc', 'sc1').replace('+', ' ')
NAME = 'standalone__moe_arch_mod__decode_kernel'
NWG = 256
LDS_D = 65536
LDS_X = 98304
LDS_H = LDS_X + 8192
LDS_TOTAL = LDS_H + 2048
RBASE = 1024
PBASE = 4096
YBASE = 4096 + 56 * 16384
STAMPBASE = 3 << 20
WS_SIZE = 4 << 20
assert YBASE + 256 * 7168 <= STAMPBASE
POLL_MAX = 1 << 16
STAGES = eval(opts.get('stages', '[[0,1,2,3],[4,5,6,7],[8,9,10,11],[12,13],[14],[15]]'))
PRO = int(opts.get('pro', 10))

o = []
def e(s): o.append('    ' + s)
def lab(s): o.append(s + ':')
nstamp = [0]
def stamp(i=None):
    if STAMPS:
        if i is None:
            i = nstamp[0]
        nstamp[0] = max(nstamp[0], i + 1)
        e(f's_memrealtime s[{64+2*i}:{65+2*i}]')

hdr = open('standalone__moe_arch_mod__decode.s.ref').read().split('\n')
for l in hdr:
    if l.startswith('; @launch'):
        o.append(f'; @launch grid=({NWG},1,1) block=(256,1,1) lds={LDS_TOTAL}')
        break
    o.append(l)
o += ['.amdgcn_target "amdgcn-amd-amdhsa--gfx950"', '.text', f'.globl {NAME}', '.p2align 8',
      f'.type {NAME},@function', f'{NAME}:']

SM, SD, SX, SW, SO, SR = 4, 8, 12, 16, 20, 24
sTAG = 28
sEXP = 30
sTB = 32
sCT, sMEM, sC3, sWV, sTMP, sTMP2, sP, sCNT, sTASK, sROW0, sCOL0, sKK, sSEL0, sMW, sXCD, sSLOT = range(36, 52)
sLO, sHI = 52, 54
sT3, sMD, sMX = 56, 57, 58
vL, vT0, vT1, vT2, vA, vB, vX, vD, vRD1, vRD2, vL16, vPUB1, vPUB2, vFF, vHW, vHR = range(1, 17)
vWV = 17; vOUT = 18; vXR = 19; vRS = 20; vXL = 21; vRA = 22
vXF = 24
vACC = 32
vW = 40
vWD = 56
vG = 88
vH = 120
vP = 136
vRX = 56
NV = 148

def common_tag():
    e(f's_mul_i32 s{sTAG}, s{sTAG}, 1664525')
    e(f's_add_u32 s{sTAG}, s{sTAG}, 1013904223')
    e(f's_and_b32 s{sEXP}, s{sTAG}, 0xffff')
    e(f's_lshr_b32 s{sEXP+1}, s{sTAG}, 16')
    e(f's_mov_b32 s{sTB}, s{sTAG}')
    e(f's_lshr_b32 s{sTB+1}, s{sTAG}, 8')
    e(f's_lshr_b32 s{sTB+2}, s{sTAG}, 16')
    e(f's_lshr_b32 s{sTB+3}, s{sTAG}, 24')

e(f's_cmp_ge_u32 s2, {NWG}')
e('s_cbranch_scc1 L_end')
stamp(0)
e(f's_and_b32 s{sTMP}, s2, 8')
e(f's_add_u32 s{sTMP}, s{sTMP}, 16')
e(f's_load_dwordx2 s[{SM}:{SM+1}], s[0:1], s{sTMP}')
e(f's_load_dwordx2 s[{SX}:{SX+1}], s[0:1], 0')
e(f's_load_dwordx2 s[{SD}:{SD+1}], s[0:1], 32')
e(f's_load_dwordx2 s[{SW}:{SW+1}], s[0:1], 56')
e(f's_load_dwordx2 s[{SO}:{SO+1}], s[0:1], 40')
e(f's_load_dwordx2 s[{SR}:{SR+1}], s[0:1], 8')
e(f's_and_b32 s{sXCD}, s2, 7')
e(f's_lshr_b32 s{sSLOT}, s2, 3')
e(f'v_lshrrev_b32 v{vWV}, 6, v0')
e(f'v_and_b32 v{vL}, 63, v0')
e(f'v_readfirstlane_b32 s{sWV}, v{vWV}')
for s, sz in ((SM, 1024*3584*2), (SD, 3584*1024*2), (SX, 16384), (SW, WS_SIZE), (SO, 16384), (SR, 2048)):
    e(f's_mov_b32 s{s+2}, {sz}')
    e(f's_mov_b32 s{s+3}, 0x20000')
e(f'v_lshlrev_b32 v{vL16}, 4, v{vL}')
e(f's_mov_b32 s{sLO}, 0x00ff00ff'); e(f's_mov_b32 s{sLO+1}, 0x00ff00ff')
e(f's_mov_b32 s{sSEL0}, 0x0c0c0400')
e(f'v_mov_b32 v{vFF}, 0xff')
e(f's_lshl_b32 s{sTASK}, s{sXCD}, 5')
e(f's_add_u32 s{sTASK}, s{sTASK}, s{sSLOT}')
e(f's_lshr_b32 s{sTMP}, s{sSLOT}, 2')
e(f's_cmp_eq_u32 s{sXCD}, 7')
e('s_cbranch_scc1 L_x7')
e(f's_sub_u32 s{sTMP2}, s{sTMP}, 2')
e(f's_cmp_ge_i32 s{sTMP2}, 3')
e(f's_addc_u32 s{sTMP2}, s{sTMP2}, 0')
e(f's_cmp_lt_u32 s{sSLOT}, 8')
e(f's_cselect_b32 s{sTMP2}, 3, s{sTMP2}')
e(f's_cselect_b32 s{sC3}, 1, 0')
e(f's_lshl_b32 s{sCT}, s{sXCD}, 3')
e(f's_add_u32 s{sCT}, s{sCT}, s{sTMP2}')
e('s_branch L_dec')
lab('L_x7')
e(f's_cmp_ge_u32 s{sSLOT}, 28')
e('s_cbranch_scc1 L_router')
e(f's_lshl_b32 s{sCT}, s{sTMP}, 3')
e(f's_add_u32 s{sCT}, s{sCT}, 7')
e(f's_mov_b32 s{sC3}, 0')
lab('L_dec')
e(f's_lshl_b32 s{sTMP}, s{sC3}, 2')
e(f's_or_b32 s{sTMP}, s{sTMP}, 3')
e(f's_and_b32 s{sMEM}, s{sSLOT}, s{sTMP}')
e(f's_lshr_b32 s{sKK}, s{sMEM}, 1')
e(f's_lshl_b32 s{sTMP}, s{sKK}, 9')
e(f's_add_u32 s{sTMP}, s{sTMP}, 256')
e(f's_lshl_b32 s{sTMP2}, s{sKK}, 8')
e(f's_cmp_lg_u32 s{sC3}, 0')
e(f's_cselect_b32 s{sROW0}, s{sTMP2}, s{sTMP}')
e(f'v_lshrrev_b32 v{vT1}, 5, v{vL}')
e(f'v_bfe_u32 v{vT2}, v{vL}, 3, 2')
e(f'v_lshl_add_u32 v{vT0}, v{vT1}, 3, v{vT2}')
e(f'v_lshrrev_b32 v{vT2}, 4, v{vL}')
e(f'v_lshlrev_b32 v{vT2}, 1, v{vT2}')
e(f'v_sub_u32 v{vT2}, v{vL}, v{vT2}')
e(f'v_and_b32 v{vT2}, 7, v{vT2}')
e(f'v_lshlrev_b32 v{vT2}, 4, v{vT2}')
e(f's_lshr_b32 s{sTMP}, s{sWV}, 1')
e(f's_lshl_b32 s{sTMP}, s{sTMP}, 4')
e(f's_and_b32 s{sTMP2}, s{sWV}, 1')
e(f's_lshl_b32 s{sTMP2}, s{sTMP2}, 2')
e(f's_add_u32 s{sTMP}, s{sTMP}, s{sTMP2}')
e(f's_add_u32 s{sTMP}, s{sTMP}, s{sROW0}')
e(f's_mul_i32 s{sTMP}, s{sTMP}, 7168')
e(f's_lshl_b32 s{sTMP2}, s{sCT}, 7')
e(f's_add_u32 s{sTMP}, s{sTMP}, s{sTMP2}')
e(f'v_mul_u32_u24 v{vB}, 7168, v{vT0}')
e(f'v_add3_u32 v{vB}, v{vB}, v{vT2}, s{sTMP}')
e(f'v_subrev_u32 v{vA}, {256*7168}, v{vB}')
e(f'v_and_b32 v{vT1}, 7, v{vL}')
e(f'v_lshlrev_b32 v{vX}, 11, v{vT1}')
e(f'v_and_b32 v{vT1}, 8, v{vL}')
e(f'v_lshl_add_u32 v{vX}, v{vT1}, 3, v{vX}')
e(f'v_and_b32 v{vT1}, 48, v{vL}')
e(f's_lshl_b32 s{sTMP}, s{sROW0}, 1')
e(f's_lshl_b32 s{sTMP2}, s{sWV}, 7')
e(f's_add_u32 s{sTMP}, s{sTMP}, s{sTMP2}')
e(f'v_add3_u32 v{vX}, v{vX}, v{vT1}, s{sTMP}')
e(f'v_subrev_u32 v{vXL}, 512, v{vX}')
e(f's_lshl_b32 s{sTMP}, s{sMEM}, 8')
e(f's_lshr_b32 s{sTMP}, s{sTMP}, s{sC3}')
e(f's_lshl_b32 s{sTMP2}, s{sWV}, 6')
e(f's_add_u32 s{sCOL0}, s{sTMP}, s{sTMP2}')
e(f's_lshl_b32 s{sTMP}, s{sCT}, 17')
e(f's_lshl_b32 s{sTMP2}, s{sCOL0}, 1')
e(f's_add_u32 s{sTMP}, s{sTMP}, s{sTMP2}')
e(f's_lshr_b32 s{sTMP2}, s{sWV}, 1')
e(f's_and_b32 s{sT3}, s{sTMP2}, s{sC3}')
e(f's_cselect_b32 s{sTMP}, 0x10000000, s{sTMP}')
e(f'v_lshlrev_b32 v{vD}, 11, v{vT0}')
e(f'v_add3_u32 v{vD}, v{vD}, v{vT2}, s{sTMP}')
e(f's_lshl_b32 s{sMW}, s{sWV}, 14')
e(f's_lshl_b32 s{sMD}, s{sWV}, 13')
e(f's_add_u32 s{sMD}, s{sMD}, {LDS_D}')
e(f's_lshl_b32 s{sMX}, s{sWV}, 10')
e(f's_add_u32 s{sMX}, s{sMX}, {LDS_X}')

cur_m0 = [None]
def set_m0(key, expr_reg, add):
    if cur_m0[0] == (key, add): return False
    cur_m0[0] = (key, add)
    if add: e(f's_add_u32 m0, s{expr_reg}, {add}')
    else: e(f's_mov_b32 m0, s{expr_reg}')
    return True
def issue(item):
    k, i = item
    if k == 'W':
        ch = set_m0('W', sMW, (i >> 2) * 4096)
        imm = (i & 3) * 1024
        so = (i & 7) * 32 * 7168 - imm
        v, srd, nt = (vA if i < 8 else vB), SM, NT1
    elif k == 'D':
        ch = set_m0('D', sMD, (i >> 2) * 4096)
        sp, gp, e4 = i >> 2, (i >> 1) & 1, i & 1
        imm = (i & 3) * 1024
        so = (32*sp + 16*gp + 4*e4) * 2048 - imm
        v, srd, nt = vD, SD, NT2
    else:
        ch = set_m0('X', sMX, i * 4096)
        imm = 0; so = 0
        v, srd, nt = (vXL if i == 0 else vX), SX, ''
    if so == 0:
        sof = '0'
        if ch: e('s_nop 0')
    else:
        e(f's_mov_b32 s{sTMP}, {so}'); sof = f's{sTMP}'
    e(f'buffer_load_dwordx4 v{v}, s[{srd}:{srd+3}], {sof} offen offset:{imm}{nt} lds')

stream = [('W', s) for s in range(16)] + [('D', u) for u in range(8)]
sched = []; pos = PRO
for st in STAGES:
    n = len(st)
    sched.append(stream[pos:pos+n]); pos = min(pos + n, len(stream))
assert pos == len(stream), pos
e(f's_mov_b32 m0, s{sMW}'); cur_m0[0] = ('W', 0)
e(f's_cmp_lg_u32 s{sC3}, 0')
e('s_waitcnt lgkmcnt(0)')
stamp(1)
e(f's_load_dword s{sTAG}, s[{SW}:{SW+1}], 0')
e('s_cbranch_scc1 L_pro3')
issued = [('W', 0), ('X', 0), ('X', 1)] + stream[1:PRO]
for it in issued: issue(it)
e('s_branch L_pre')
lab('L_pro3')
iB = [i for i, st in enumerate(STAGES) if st[0] == 8][0]
upto = stream[:PRO] + [x for sc_ in sched[:iB] for x in sc_]
c3list = [('W', 8), ('X', 1)] + [x for x in upto if not (x[0] == 'W' and x[1] <= 8)]
cur_m0[0] = None
for it in c3list: issue(it)
lab('L_pre')
cur_m0[0] = None
stamp(2)
e(f'v_bfe_u32 v{vT1}, v{vL}, 2, 3')
e(f'v_lshlrev_b32 v{vT0}, 7, v{vT1}')
e(f'v_and_b32 v{vT2}, 1, v{vL}')
e(f'v_lshl_add_u32 v{vT0}, v{vT2}, 3, v{vT0}')
e(f'v_and_b32 v{vT1}, 6, v{vT1}')
e(f'v_bfe_u32 v{vT2}, v{vL}, 1, 1')
e(f'v_add_u32 v{vT1}, v{vT1}, v{vT2}')
e(f'v_lshl_add_u32 v{vT2}, v{vWV}, 1, v{vT1}')
e(f'v_and_b32 v{vT2}, 7, v{vT2}')
e(f'v_lshl_add_u32 v{vRD1}, v{vT2}, 4, v{vT0}')
e(f'v_lshrrev_b32 v{vT2}, 5, v{vL}')
e(f'v_lshl_add_u32 v{vRD1}, v{vT2}, 15, v{vRD1}')
e(f'v_lshl_add_u32 v{vRD2}, v{vT2}, 11, v{vT0}')
e(f'v_add_u32 v{vRD2}, s{sMD}, v{vRD2}')
for st in range(4):
    e(f'v_add_u32 v{vT2}, {2*st}, v{vT1}')
    e(f'v_and_b32 v{vT2}, 7, v{vT2}')
    e(f'v_lshl_add_u32 v{vP+8+st}, v{vT2}, 4, v{vRD2}')
e(f'v_add_u32 v{vXL}, {LDS_X}, v{vL16}')
e(f's_lshl_b32 s{sP}, s{sCT}, 14')
e(f's_lshl_b32 s{sTMP}, s{sWV}, 10')
e(f's_add_u32 s{sP}, s{sP}, s{sTMP}')
e(f's_add_u32 s{sP}, s{sP}, {PBASE}')
e(f's_lshl_b32 s{sTMP}, s{sKK}, 12')
e(f's_and_b32 s{sTMP2}, s{sMEM}, 1')
e(f's_lshl_b32 s{sTMP2}, s{sTMP2}, 7')
e(f's_add_u32 s{sTMP}, s{sTMP}, s{sTMP2}')
e(f'v_add_u32 v{vPUB1}, s{sTMP}, v{vL16}')
e(f'v_and_b32 v{vT1}, 7, v{vL}')
e(f'v_lshrrev_b32 v{vT2}, 4, v{vL}')
e(f'v_bfe_u32 v{vT0}, v{vL}, 3, 1')
e(f'v_lshl_add_u32 v{vT0}, v{vT0}, 2, v{vT2}')
e(f'v_mul_u32_u24 v{vPUB2}, 7168, v{vT0}')
e(f'v_lshl_add_u32 v{vPUB2}, v{vT1}, 4, v{vPUB2}')
e(f's_mul_i32 s{sTMP}, s{sCOL0}, {7168//4}')
e(f's_lshl_b32 s{sTMP2}, s{sCT}, 7')
e(f's_add_u32 s{sTMP}, s{sTMP}, s{sTMP2}')
e(f's_add_u32 s{sTMP}, s{sTMP}, {YBASE}')
e(f'v_add_u32 v{vPUB2}, s{sTMP}, v{vPUB2}')
e(f'v_mul_u32_u24 v{vHR}, 144, v{vT1}')
e(f'v_add_u32 v{vHR}, {LDS_H}, v{vHR}')
e(f'v_lshl_add_u32 v{vHW}, v{vWV}, 5, v{vHR}')
e(f'v_lshl_add_u32 v{vHW}, v{vT2}, 3, v{vHW}')
e(f'v_lshl_add_u32 v{vHR}, v{vT2}, 4, v{vHR}')
for i in range(8): e(f'v_mov_b32 v{vACC+i}, 0')
for i in range(16): e(f'v_mov_b32 v{vH+i}, 0')
e(f's_not_b64 s[{sHI}:{sHI+1}], s[{sLO}:{sLO+1}]')
e('s_waitcnt lgkmcnt(0)')
common_tag()
e(f's_cmp_lg_u32 s{sC3}, 0')
e('s_cbranch_scc1 L_compB')
for si, stage in enumerate(STAGES):
    if stage[0] == 8: lab('L_compB'); cur_m0[0] = None
    idx = issued.index(('W', stage[-1]))
    e(f's_waitcnt vmcnt({len(issued)-1-idx})')
    for it in sched[si]: issue(it); issued.append(it)
    e('s_barrier')
    if stage[0] == 8: stamp(3)
    ts = sorted(set(s >> 1 for s in stage))
    nrd = 0
    for t in ts:
        if (2*t) in stage:
            e(f'ds_read_b128 v[{vXF+4*(t&1)}:{vXF+4*(t&1)+3}], v{vXL} offset:{t*1024}')
    for i, s in enumerate(stage):
        b = vW + 4*i
        e(f'ds_read_b64_tr_b16 v[{b}:{b+1}], v{vRD1} offset:{s*1024}')
        e(f'ds_read_b64_tr_b16 v[{b+2}:{b+3}], v{vRD1} offset:{16384+s*1024}')
    for i, s in enumerate(stage):
        b = vW + 4*i
        e(f's_waitcnt lgkmcnt({2*(len(stage)-1-i)})')
        acc = vACC + 4*(s & 1); t = s >> 1
        xf = vXF + 4*(t & 1)
        e(f'v_mfma_f32_16x16x32_bf16 v[{acc}:{acc+3}], v[{b}:{b+3}], v[{xf}:{xf+3}], v[{acc}:{acc+3}]')
stamp(4)
e(f's_mov_b32 s{sCNT}, {POLL_MAX}')
e(f's_add_u32 s{sTMP2}, s{sP}, 4096')
e('s_nop 5')
for r in range(4):
    e(f'v_add_f32_dpp v{vP+r}, v{vACC+4+r}, v{vACC+r} row_ror:8 row_mask:0xf bank_mask:0xf')
for r in range(4):
    e(f'v_bfi_b32 v{vP+r}, v{vFF}, s{sTB+r}, v{vP+r}')
e(f's_mov_b64 exec, s[{sLO}:{sLO+1}]')
e(f'buffer_store_dwordx4 v[{vP}:{vP+3}], v{vPUB1}, s[{SW}:{SW+3}], s{sP} offen{SC}')
e('s_mov_b64 exec, -1')
stamp(5)
e('s_waitcnt vmcnt(1)')
for st in range(4):
    for s in range(2):
        b = vWD + 8*st + 4*s
        e(f'ds_read_b64_tr_b16 v[{b}:{b+1}], v{vP+8+st} offset:{s*4096}')
        e(f'ds_read_b64_tr_b16 v[{b+2}:{b+3}], v{vP+8+st} offset:{s*4096+1024}')
stamp(6)
def check(g):
    e(f'v_perm_b32 v{vP+4}, v{g+1}, v{g}, s{sSEL0}')
    e(f'v_perm_b32 v{vP+5}, v{g+3}, v{g+2}, s{sSEL0}')
    e(f'v_cmpx_eq_u64 vcc, s[{sEXP}:{sEXP+1}], v[{vP+4}:{vP+5}]')
lab('L_poll1')
e(f'buffer_load_dwordx4 v[{vG}:{vG+3}], v{vL16}, s[{SW}:{SW+3}], s{sP} offen{SC}')
e(f'buffer_load_dwordx4 v[{vG+4}:{vG+7}], v{vL16}, s[{SW}:{SW+3}], s{sTMP2} offen{SC}')
e(f's_cmp_lg_u32 s{sC3}, 0')
e('s_cbranch_scc0 L_poll1n')
e(f's_add_u32 s{sTMP}, s{sP}, 8192')
e(f'buffer_load_dwordx4 v[{vG+8}:{vG+11}], v{vL16}, s[{SW}:{SW+3}], s{sTMP} offen{SC}')
e(f's_add_u32 s{sTMP}, s{sP}, 12288')
e(f'buffer_load_dwordx4 v[{vG+12}:{vG+15}], v{vL16}, s[{SW}:{SW+3}], s{sTMP} offen{SC}')
e('s_waitcnt vmcnt(0)')
check(vG+8); check(vG+12)
lab('L_poll1n')
e(f's_sub_u32 s{sCNT}, s{sCNT}, 1')
e('s_cbranch_scc1 L_poll1_done')
e('s_waitcnt vmcnt(0)')
check(vG); check(vG+4)
e('s_cmp_eq_u64 exec, -1')
e('s_mov_b64 exec, -1')
e('s_cbranch_scc0 L_poll1')
lab('L_poll1_done')
e('s_mov_b64 exec, -1')
e('s_waitcnt vmcnt(0)')
stamp(7)
e(f'v_pk_add_f32 v[{vG}:{vG+1}], v[{vG}:{vG+1}], v[{vG+4}:{vG+5}]')
e(f'v_pk_add_f32 v[{vG+2}:{vG+3}], v[{vG+2}:{vG+3}], v[{vG+6}:{vG+7}]')
e(f's_cmp_lg_u32 s{sC3}, 0')
e('s_cbranch_scc0 L_act')
e(f'v_pk_add_f32 v[{vG+8}:{vG+9}], v[{vG+8}:{vG+9}], v[{vG+12}:{vG+13}]')
e(f'v_pk_add_f32 v[{vG+10}:{vG+11}], v[{vG+10}:{vG+11}], v[{vG+14}:{vG+15}]')
e(f'v_pk_add_f32 v[{vG}:{vG+1}], v[{vG}:{vG+1}], v[{vG+8}:{vG+9}]')
e(f'v_pk_add_f32 v[{vG+2}:{vG+3}], v[{vG+2}:{vG+3}], v[{vG+10}:{vG+11}]')
lab('L_act')
e(f's_mov_b32 s{sTMP}, 0xbfb8aa3b')
e(f's_mov_b32 s{sTMP2}, 0xffff0000')
R = vG; P = vP
e(f'v_cvt_pk_bf16_f32 v{P}, v{R}, v{R+1}')
e(f'v_cvt_pk_bf16_f32 v{P+1}, v{R+2}, v{R+3}')
e(f'v_lshlrev_b32 v{R}, 16, v{P}')
e(f'v_and_b32 v{R+1}, s{sTMP2}, v{P}')
e(f'v_lshlrev_b32 v{R+2}, 16, v{P+1}')
e(f'v_and_b32 v{R+3}, s{sTMP2}, v{P+1}')
for r in range(4): e(f'v_mul_f32 v{P+r}, s{sTMP}, v{R+r}')
for r in range(4): e(f'v_exp_f32 v{P+r}, v{P+r}')
for r in range(4): e(f'v_add_f32 v{P+r}, 1.0, v{P+r}')
for r in range(4): e(f'v_rcp_f32 v{P+r}, v{P+r}')
for r in range(4): e(f'v_mul_f32 v{P+r}, v{P+r}, v{R+r}')
e(f'v_cvt_pk_bf16_f32 v{P+4}, v{P}, v{P+1}')
e(f'v_cvt_pk_bf16_f32 v{P+5}, v{P+2}, v{P+3}')
e(f'v_lshlrev_b32 v{P}, 16, v{P+4}')
e(f'v_and_b32 v{P+1}, s{sTMP2}, v{P+4}')
e(f'v_lshlrev_b32 v{P+2}, 16, v{P+5}')
e(f'v_and_b32 v{P+3}, s{sTMP2}, v{P+5}')
for r in range(4):
    e(f'v_mul_f32_dpp v{P+r}, v{R+r}, v{P+r} row_ror:8 row_mask:0xf bank_mask:0xf')
e(f'v_cvt_pk_bf16_f32 v{P+4}, v{P}, v{P+1}')
e(f'v_cvt_pk_bf16_f32 v{P+5}, v{P+2}, v{P+3}')
e(f's_mov_b64 exec, s[{sLO}:{sLO+1}]')
e(f'ds_write_b64 v{vHW}, v[{P+4}:{P+5}]')
e('s_waitcnt lgkmcnt(0)')
e('s_barrier')
e(f'ds_read_b128 v[{vH}:{vH+3}], v{vHR}')
e(f'ds_read_b128 v[{vH+4}:{vH+7}], v{vHR} offset:64')
e(f's_mov_b64 exec, s[{sHI}:{sHI+1}]')
e(f'ds_read_b128 v[{vH+8}:{vH+11}], v{vHR}')
e(f'ds_read_b128 v[{vH+12}:{vH+15}], v{vHR} offset:64')
e('s_mov_b64 exec, -1')
e(f's_cmp_lg_u32 s{sT3}, 0')
e('s_cbranch_scc1 L_nop2')
for k in range(4):
    half, s = k >> 1, k & 1
    e(f's_waitcnt lgkmcnt({3-k})')
    for a in range(2):
        st = 2*a + half
        b = vWD + 8*st + 4*s
        acc = vACC + 4*a
        c = '0' if k == 0 else f'v[{acc}:{acc+3}]'
        e(f'v_mfma_f32_16x16x32_bf16 v[{acc}:{acc+3}], v[{b}:{b+3}], v[{vH+4*k}:{vH+4*k+3}], {c}')
e(f's_mov_b32 s{sTMP}, {8*7168}')
e('s_nop 5')
for r in range(4):
    e(f'v_bfi_b32 v{vACC+r}, v{vFF}, s{sTB+r}, v{vACC+r}')
e(f'buffer_store_dwordx4 v[{vACC}:{vACC+3}], v{vPUB2}, s[{SW}:{SW+3}], 0 offen{SC}')
for r in range(4):
    e(f'v_bfi_b32 v{vACC+4+r}, v{vFF}, s{sTB+r}, v{vACC+4+r}')
e(f'buffer_store_dwordx4 v[{vACC+4}:{vACC+7}], v{vPUB2}, s[{SW}:{SW+3}], s{sTMP} offen{SC}')
lab('L_nop2')
stamp(8)
e(f's_cmp_lg_u32 s{sWV}, 0')
e('s_cbranch_scc1 L_fin_done')
e(f's_mul_i32 s{sP}, s{sTASK}, 7168')
e(f's_add_u32 s{sP}, s{sP}, {YBASE}')
e(f's_add_u32 s{sTMP2}, s{sP}, 4096')
e(f'v_and_b32 v{vT1}, 7, v{vL}')
e(f'v_lshlrev_b32 v{vRA}, 4, v{vT1}')
e(f'v_lshlrev_b32 v{vOUT}, 11, v{vT1}')
e(f'v_lshrrev_b32 v{vT1}, 4, v{vL}')
e(f'v_lshl_add_u32 v{vOUT}, v{vT1}, 1, v{vOUT}')
e(f's_lshl_b32 s{sTMP}, s{sTASK}, 3')
e(f'v_add_u32 v{vOUT}, s{sTMP}, v{vOUT}')
e(f'buffer_load_ushort v{vXR}, v{vOUT}, s[{SX}:{SX+3}], 0 offen')
e(f's_mov_b32 s{sCNT}, {POLL_MAX}')
lab('L_poll2')
e(f'buffer_load_dwordx4 v[{vG+28}:{vG+31}], v{vRA}, s[{SW}:{SW+3}], 0 offen offset:{RBASE}{SC}')
for i in range(7):
    so = sP if i < 4 else sTMP2
    e(f'buffer_load_dwordx4 v[{vG+4*i}:{vG+4*i+3}], v{vL16}, s[{SW}:{SW+3}], s{so} offen offset:{(i&3)*1024}{SC}')
e(f's_sub_u32 s{sCNT}, s{sCNT}, 1')
e('s_cbranch_scc1 L_poll2_done')
e('s_waitcnt vmcnt(7)')
check(vG + 28)
for i in range(7):
    e(f's_waitcnt vmcnt({6-i})')
    check(vG + 4*i)
e('s_cmp_eq_u64 exec, -1')
e('s_mov_b64 exec, -1')
e('s_cbranch_scc0 L_poll2')
lab('L_poll2_done')
e('s_waitcnt vmcnt(0)')
stamp(9)
def padd(a, b):
    e(f'v_pk_add_f32 v[{vG+4*a}:{vG+4*a+1}], v[{vG+4*a}:{vG+4*a+1}], v[{vG+4*b}:{vG+4*b+1}]')
    e(f'v_pk_add_f32 v[{vG+4*a+2}:{vG+4*a+3}], v[{vG+4*a+2}:{vG+4*a+3}], v[{vG+4*b+2}:{vG+4*b+3}]')
padd(0, 1); padd(2, 3); padd(4, 5); padd(0, 2); padd(4, 6); padd(0, 4)
e(f'v_and_b32 v{vRS}, 0xffff0000, v{vG+28}')
e(f'v_lshlrev_b32 v{vXR}, 16, v{vXR}')
e(f'v_permlane32_swap_b32 v{vG}, v{vG+2}')
e(f'v_permlane32_swap_b32 v{vG+1}, v{vG+3}')
e(f'v_add_f32 v{vG}, v{vG}, v{vG+2}')
e(f'v_add_f32 v{vG+1}, v{vG+1}, v{vG+3}')
e('s_nop 1')
e(f'v_permlane16_swap_b32 v{vG}, v{vG+1}')
e(f'v_add_f32 v{vG}, v{vG}, v{vG+1}')
e('s_nop 1')
e(f'v_add_f32_dpp v{vG}, v{vG}, v{vG} row_ror:8 row_mask:0xf bank_mask:0xf')
e(f'v_cvt_pk_bf16_f32 v{vG}, v{vG}, v{vG}')
e(f'v_lshlrev_b32 v{vG}, 16, v{vG}')
e(f'v_mul_f32 v{vG}, v{vG}, v{vRS}')
e(f'v_cvt_pk_bf16_f32 v{vG}, v{vG}, v{vG}')
e(f'v_lshlrev_b32 v{vG}, 16, v{vG}')
e(f'v_fma_f32 v{vG}, v{vXR}, 0, v{vG}')
e(f'v_add_f32 v{vG}, v{vG}, v{vXR}')
e(f'v_cvt_pk_bf16_f32 v{vG}, v{vG}, v{vG}')
e(f's_mov_b64 exec, s[{sLO}:{sLO+1}]')
e(f'buffer_store_short v{vG}, v{vOUT}, s[{SO}:{SO+3}], 0 offen')
e(f's_cmp_lg_u32 s{sTASK}, 0')
e('s_cbranch_scc1 L_fin_done')
e('s_mov_b64 exec, 1')
e(f'v_mov_b32 v{vT1}, s{sTAG}')
e(f'buffer_store_dword v{vT1}, v{vL16}, s[{SW}:{SW+3}], 0 offen sc1')
lab('L_fin_done')
if 'echo' in opts:
    i_, j_ = map(int, opts['echo'].split(','))
    e('s_waitcnt vmcnt(0)')
    stamp(10)
    e(f's_cmp_lg_u32 s{sWV}, 0')
    e('s_cbranch_scc1 L_end')
    e(f's_cmp_lg_u32 s2, {opts.get("ewg", 68)}')
    e('s_cbranch_scc1 L_end')
    e('s_waitcnt lgkmcnt(0)')
    e(f's_sub_u32 s88, s{64+2*i_}, s{64+2*j_}')
    e(f's_mul_i32 s88, s88, {opts.get("ek", 2)}')
    e('s_min_u32 s88, s88, 20000')
    lab('L_echo')
    e('s_memrealtime s[90:91]')
    e('s_waitcnt lgkmcnt(0)')
    e('s_sub_u32 s90, s90, s84')
    e('s_cmp_lt_u32 s90, s88')
    e('s_cbranch_scc1 L_echo')
if STAMPS and 'echo' not in opts:
    e('s_waitcnt vmcnt(0)')
    stamp(10)
    e('s_getreg_b32 s62, hwreg(HW_REG_XCC_ID)')
    e('s_waitcnt lgkmcnt(0)')
    n = nstamp[0]
    e('s_mov_b64 exec, 1')
    e(f's_lshl_b32 s{sTMP}, s2, 2')
    e(f's_add_u32 s{sTMP}, s{sTMP}, s{sWV}')
    e(f's_lshl_b32 s{sTMP}, s{sTMP}, 6')
    e(f's_add_u32 s{sTMP}, s{sTMP}, {STAMPBASE}')
    for i in range(n):
        e(f'v_mov_b32 v{vT1}, s{64+2*i}')
        e(f'buffer_store_dword v{vT1}, v{vL16}, s[{SW}:{SW+3}], s{sTMP} offen offset:{4*i}')
        e('s_nop 0')
    e(f'v_mov_b32 v{vT1}, s62')
    e(f'buffer_store_dword v{vT1}, v{vL16}, s[{SW}:{SW+3}], s{sTMP} offen offset:56')
if 'dbg' in opts:
    e('s_load_dwordx2 s[88:89], s[0:1], 48')
    e('s_mov_b32 s90, 256'); e('s_mov_b32 s91, 0x20000')
    e('s_waitcnt lgkmcnt(0)')
    e(f's_cmp_lg_u32 s{sWV}, 0')
    e('s_cbranch_scc1 L_end')
    e(f's_cmp_eq_u32 s{sXCD}, 7')
    e('s_cbranch_scc1 L_end')
    for i in range(nstamp[0]):
        e(f'v_mov_b32 v{vT1}, s{64+2*i}')
        e(f'buffer_atomic_umax v{vT1}, v{vL16}, s[88:91], 0 offen offset:{4*i}')
        e('s_nop 1')
    e('s_not_b32 s64, s64')
    e(f'v_mov_b32 v{vT1}, s64')
    e(f'buffer_atomic_umax v{vT1}, v{vL16}, s[88:91], 0 offen offset:60')
lab('L_end')
e('s_endpgm')
lab('L_router')
e(f's_cmp_gt_u32 s{sWV}, 1')
e('s_cbranch_scc1 L_end')
e(f's_sub_u32 s{sTMP}, s{sSLOT}, 28')
e(f's_lshl_b32 s{sTMP}, s{sTMP}, 1')
e(f's_add_u32 s{sKK}, s{sTMP}, s{sWV}')
e(f's_lshl_b32 s{sTMP}, s{sKK}, 11')
e('s_waitcnt lgkmcnt(0)')
e(f's_load_dword s{sTAG}, s[{SW}:{SW+1}], 0')
e(f'buffer_load_dwordx4 v[{vRX}:{vRX+3}], v{vL16}, s[{SX}:{SX+3}], s{sTMP} offen')
e(f'buffer_load_dwordx4 v[{vRX+4}:{vRX+7}], v{vL16}, s[{SX}:{SX+3}], s{sTMP} offen offset:1024')
e(f'buffer_load_dwordx4 v[{vRX+8}:{vRX+11}], v{vL16}, s[{SR}:{SR+3}], 0 offen')
e(f'buffer_load_dwordx4 v[{vRX+12}:{vRX+15}], v{vL16}, s[{SR}:{SR+3}], 0 offen offset:1024')
e(f'v_mov_b32 v{vRS}, 0')
e('s_waitcnt vmcnt(0) lgkmcnt(0)')
common_tag()
for i in range(8):
    e(f'v_dot2c_f32_bf16 v{vRS}, v{vRX+i}, v{vRX+8+i}')
e('s_nop 2')
for sh in (1, 2, 4, 8):
    e(f'v_add_f32_dpp v{vRS}, v{vRS}, v{vRS} row_ror:{sh} row_mask:0xf bank_mask:0xf')
    e('s_nop 1')
e(f'v_mov_b32 v{vT1}, v{vRS}')
e('s_nop 1')
e(f'v_permlane16_swap_b32 v{vRS}, v{vT1}')
e(f'v_add_f32 v{vRS}, v{vRS}, v{vT1}')
e(f'v_mov_b32 v{vT1}, v{vRS}')
e('s_nop 1')
e(f'v_permlane32_swap_b32 v{vRS}, v{vT1}')
e(f'v_add_f32 v{vRS}, v{vRS}, v{vT1}')
e(f'v_cvt_pk_bf16_f32 v{vRS}, v{vRS}, v{vRS}')
e(f'v_lshlrev_b32 v{vRS}, 16, v{vRS}')
e(f'v_mul_f32 v{vRS}, 0xbfb8aa3b, v{vRS}')
e(f'v_exp_f32 v{vRS}, v{vRS}')
e('s_nop 0')
e(f'v_add_f32 v{vRS}, 1.0, v{vRS}')
e(f'v_rcp_f32 v{vRS}, v{vRS}')
e('s_nop 0')
e(f'v_cvt_pk_bf16_f32 v{vRS}, v{vRS}, v{vRS}')
e(f'v_bfi_b32 v{vP}, v{vFF}, s{sTB}, v{vRS}')
for r in range(1, 4): e(f'v_mov_b32 v{vP+r}, s{sTB+r}')
e(f's_lshl_b32 s{sTMP}, s{sKK}, 4')
e('s_mov_b64 exec, 1')
e(f'buffer_store_dwordx4 v[{vP}:{vP+3}], v{vL16}, s[{SW}:{SW+3}], s{sTMP} offen offset:{RBASE}{SC}')
e('s_mov_b64 exec, -1')
e('s_branch L_nop2')
o += ['.section .rodata,"a"', '.p2align 6', f'.amdhsa_kernel {NAME}',
      f'  .amdhsa_next_free_vgpr {NV}', '  .amdhsa_next_free_sgpr 96', f'  .amdhsa_accum_offset {NV}',
      '  .amdhsa_group_segment_fixed_size 0', '  .amdhsa_kernarg_size 64', '  .amdhsa_user_sgpr_count 2',
      '  .amdhsa_user_sgpr_kernarg_segment_ptr 1', '  .amdhsa_system_sgpr_workgroup_id_x 1',
      '  .amdhsa_float_denorm_mode_32 3',
      '.end_amdhsa_kernel']
print('\n'.join(o))
```

```python
import sys
opts = dict(a.split('=') if '=' in a else (a, '1') for a in sys.argv[1:])
STAMPS = 'stamps' in opts
NT1 = '' if 'nont1' in opts else ' nt'
NT2 = '' if 'nont2' in opts else ' nt'
SC = ' ' + opts.get('sc', 'sc1').replace('+', ' ')
NAME = 'standalone__moe_arch_mod__decode_kernel'
NWG = 256
LDS_D = 65536
LDS_X = 98304
LDS_H = LDS_X + 8192
LDS_TOTAL = LDS_H + 2048
RBASE = 1024
PBASE = 4096
YBASE = 4096 + 56 * 16384
STAMPBASE = 3 << 20
WS_SIZE = 4 << 20
assert YBASE + 256 * 7168 <= STAMPBASE
POLL_MAX = 1 << 16
STAGES = eval(opts.get('stages', '[[0,1,2,3],[4,5,6,7],[8,9,10,11],[12,13],[14],[15]]'))
PRO = int(opts.get('pro', 10))

o = []
def e(s): o.append('    ' + s)
def lab(s): o.append(s + ':')
nstamp = [0]
def stamp(i=None):
    if STAMPS:
        if i is None:
            i = nstamp[0]
        nstamp[0] = max(nstamp[0], i + 1)
        e(f's_memrealtime s[{64+2*i}:{65+2*i}]')

hdr = open('standalone__moe_arch_mod__decode.s.ref').read().split('\n')
for l in hdr:
    if l.startswith('; @launch'):
        o.append(f'; @launch grid=({NWG},1,1) block=(256,1,1) lds={LDS_TOTAL}')
        break
    o.append(l)
o += ['.amdgcn_target "amdgcn-amd-amdhsa--gfx950"', '.text', f'.globl {NAME}', '.p2align 8',
      f'.type {NAME},@function', f'{NAME}:']

SM, SD, SX, SW, SO, SR = 4, 8, 12, 16, 20, 24
sTAG = 28
sEXP = 30
sTB = 32
sCT, sMEM, sC3, sWV, sTMP, sTMP2, sP, sCNT, sTASK, sROW0, sCOL0, sKK, sSEL0, sMW, sXCD, sSLOT = range(36, 52)
sLO, sHI = 52, 54
sT3, sMD, sMX = 56, 57, 58
vL, vT0, vT1, vT2, vA, vB, vX, vD, vRD1, vRD2, vL16, vPUB1, vPUB2, vFF, vHW, vHR = range(1, 17)
vWV = 17; vOUT = 18; vXR = 19; vRS = 20; vXL = 21; vRA = 22
vXF = 24
vACC = 32
vW = 40
vWD = 56
vG = 88
vH = 120
vP = 136
vRX = 56
NV = 148

def common_tag():
    e(f's_mul_i32 s{sTAG}, s{sTAG}, 1664525')
    e(f's_add_u32 s{sTAG}, s{sTAG}, 1013904223')
    e(f's_and_b32 s{sEXP}, s{sTAG}, 0xffff')
    e(f's_lshr_b32 s{sEXP+1}, s{sTAG}, 16')
    e(f's_mov_b32 s{sTB}, s{sTAG}')
    e(f's_lshr_b32 s{sTB+1}, s{sTAG}, 8')
    e(f's_lshr_b32 s{sTB+2}, s{sTAG}, 16')
    e(f's_lshr_b32 s{sTB+3}, s{sTAG}, 24')

e(f's_cmp_ge_u32 s2, {NWG}')
e('s_cbranch_scc1 L_end')
stamp(0)
e(f's_and_b32 s{sTMP}, s2, 8')
e(f's_add_u32 s{sTMP}, s{sTMP}, 16')
e(f's_load_dwordx2 s[{SM}:{SM+1}], s[0:1], s{sTMP}')
e(f's_load_dwordx2 s[{SX}:{SX+1}], s[0:1], 0')
e(f's_load_dwordx2 s[{SD}:{SD+1}], s[0:1], 32')
e(f's_load_dwordx2 s[{SW}:{SW+1}], s[0:1], 56')
e(f's_load_dwordx2 s[{SO}:{SO+1}], s[0:1], 40')
e(f's_load_dwordx2 s[{SR}:{SR+1}], s[0:1], 8')
e(f's_and_b32 s{sXCD}, s2, 7')
e(f's_lshr_b32 s{sSLOT}, s2, 3')
e(f'v_lshrrev_b32 v{vWV}, 6, v0')
e(f'v_and_b32 v{vL}, 63, v0')
e(f'v_readfirstlane_b32 s{sWV}, v{vWV}')
for s, sz in ((SM, 1024*3584*2), (SD, 3584*1024*2), (SX, 16384), (SW, WS_SIZE), (SO, 16384), (SR, 2048)):
    e(f's_mov_b32 s{s+2}, {sz}')
    e(f's_mov_b32 s{s+3}, 0x20000')
e(f'v_lshlrev_b32 v{vL16}, 4, v{vL}')
e(f's_mov_b32 s{sLO}, 0x00ff00ff'); e(f's_mov_b32 s{sLO+1}, 0x00ff00ff')
e(f's_mov_b32 s{sSEL0}, 0x0c0c0400')
e(f'v_mov_b32 v{vFF}, 0xff')
e(f's_lshl_b32 s{sTASK}, s{sXCD}, 5')
e(f's_add_u32 s{sTASK}, s{sTASK}, s{sSLOT}')
e(f's_lshr_b32 s{sTMP}, s{sSLOT}, 2')
e(f's_cmp_eq_u32 s{sXCD}, 7')
e('s_cbranch_scc1 L_x7')
e(f's_sub_u32 s{sTMP2}, s{sTMP}, 2')
e(f's_cmp_ge_i32 s{sTMP2}, 3')
e(f's_addc_u32 s{sTMP2}, s{sTMP2}, 0')
e(f's_cmp_lt_u32 s{sSLOT}, 8')
e(f's_cselect_b32 s{sTMP2}, 3, s{sTMP2}')
e(f's_cselect_b32 s{sC3}, 1, 0')
e(f's_lshl_b32 s{sCT}, s{sXCD}, 3')
e(f's_add_u32 s{sCT}, s{sCT}, s{sTMP2}')
e('s_branch L_dec')
lab('L_x7')
e(f's_cmp_ge_u32 s{sSLOT}, 28')
e('s_cbranch_scc1 L_router')
e(f's_lshl_b32 s{sCT}, s{sTMP}, 3')
e(f's_add_u32 s{sCT}, s{sCT}, 7')
e(f's_mov_b32 s{sC3}, 0')
lab('L_dec')
e(f's_lshl_b32 s{sTMP}, s{sC3}, 2')
e(f's_or_b32 s{sTMP}, s{sTMP}, 3')
e(f's_and_b32 s{sMEM}, s{sSLOT}, s{sTMP}')
e(f's_lshr_b32 s{sKK}, s{sMEM}, 1')
e(f's_lshl_b32 s{sTMP}, s{sKK}, 9')
e(f's_add_u32 s{sTMP}, s{sTMP}, 256')
e(f's_lshl_b32 s{sTMP2}, s{sKK}, 8')
e(f's_cmp_lg_u32 s{sC3}, 0')
e(f's_cselect_b32 s{sROW0}, s{sTMP2}, s{sTMP}')
e(f'v_lshrrev_b32 v{vT1}, 5, v{vL}')
e(f'v_bfe_u32 v{vT2}, v{vL}, 3, 2')
e(f'v_lshl_add_u32 v{vT0}, v{vT1}, 3, v{vT2}')
e(f'v_lshrrev_b32 v{vT2}, 4, v{vL}')
e(f'v_lshlrev_b32 v{vT2}, 1, v{vT2}')
e(f'v_sub_u32 v{vT2}, v{vL}, v{vT2}')
e(f'v_and_b32 v{vT2}, 7, v{vT2}')
e(f'v_lshlrev_b32 v{vT2}, 4, v{vT2}')
e(f's_lshr_b32 s{sTMP}, s{sWV}, 1')
e(f's_lshl_b32 s{sTMP}, s{sTMP}, 4')
e(f's_and_b32 s{sTMP2}, s{sWV}, 1')
e(f's_lshl_b32 s{sTMP2}, s{sTMP2}, 2')
e(f's_add_u32 s{sTMP}, s{sTMP}, s{sTMP2}')
e(f's_add_u32 s{sTMP}, s{sTMP}, s{sROW0}')
e(f's_mul_i32 s{sTMP}, s{sTMP}, 7168')
e(f's_lshl_b32 s{sTMP2}, s{sCT}, 7')
e(f's_add_u32 s{sTMP}, s{sTMP}, s{sTMP2}')
e(f'v_mul_u32_u24 v{vB}, 7168, v{vT0}')
e(f'v_add3_u32 v{vB}, v{vB}, v{vT2}, s{sTMP}')
e(f'v_subrev_u32 v{vA}, {256*7168}, v{vB}')
e(f'v_and_b32 v{vT1}, 7, v{vL}')
e(f'v_lshlrev_b32 v{vX}, 11, v{vT1}')
e(f'v_and_b32 v{vT1}, 8, v{vL}')
e(f'v_lshl_add_u32 v{vX}, v{vT1}, 3, v{vX}')
e(f'v_and_b32 v{vT1}, 48, v{vL}')
e(f's_lshl_b32 s{sTMP}, s{sROW0}, 1')
e(f's_lshl_b32 s{sTMP2}, s{sWV}, 7')
e(f's_add_u32 s{sTMP}, s{sTMP}, s{sTMP2}')
e(f'v_add3_u32 v{vX}, v{vX}, v{vT1}, s{sTMP}')
e(f'v_subrev_u32 v{vXL}, 512, v{vX}')
e(f's_lshl_b32 s{sTMP}, s{sMEM}, 8')
e(f's_lshr_b32 s{sTMP}, s{sTMP}, s{sC3}')
e(f's_lshl_b32 s{sTMP2}, s{sWV}, 6')
e(f's_add_u32 s{sCOL0}, s{sTMP}, s{sTMP2}')
e(f's_lshl_b32 s{sTMP}, s{sCT}, 17')
e(f's_lshl_b32 s{sTMP2}, s{sCOL0}, 1')
e(f's_add_u32 s{sTMP}, s{sTMP}, s{sTMP2}')
e(f's_lshr_b32 s{sTMP2}, s{sWV}, 1')
e(f's_and_b32 s{sT3}, s{sTMP2}, s{sC3}')
e(f's_cselect_b32 s{sTMP}, 0x10000000, s{sTMP}')
e(f'v_lshlrev_b32 v{vD}, 11, v{vT0}')
e(f'v_add3_u32 v{vD}, v{vD}, v{vT2}, s{sTMP}')
e(f's_lshl_b32 s{sMW}, s{sWV}, 14')
e(f's_lshl_b32 s{sMD}, s{sWV}, 13')
e(f's_add_u32 s{sMD}, s{sMD}, {LDS_D}')
e(f's_lshl_b32 s{sMX}, s{sWV}, 10')
e(f's_add_u32 s{sMX}, s{sMX}, {LDS_X}')

cur_m0 = [None]
def set_m0(key, expr_reg, add):
    if cur_m0[0] == (key, add): return False
    cur_m0[0] = (key, add)
    if add: e(f's_add_u32 m0, s{expr_reg}, {add}')
    else: e(f's_mov_b32 m0, s{expr_reg}')
    return True
def issue(item):
    k, i = item
    if k == 'W':
        ch = set_m0('W', sMW, (i >> 2) * 4096)
        imm = (i & 3) * 1024
        so = (i & 7) * 32 * 7168 - imm
        v, srd, nt = (vA if i < 8 else vB), SM, NT1
    elif k == 'D':
        ch = set_m0('D', sMD, (i >> 2) * 4096)
        sp, gp, e4 = i >> 2, (i >> 1) & 1, i & 1
        imm = (i & 3) * 1024
        so = (32*sp + 16*gp + 4*e4) * 2048 - imm
        v, srd, nt = vD, SD, NT2
    else:
        ch = set_m0('X', sMX, i * 4096)
        imm = 0; so = 0
        v, srd, nt = (vXL if i == 0 else vX), SX, ''
    if so == 0:
        sof = '0'
        if ch: e('s_nop 0')
    else:
        e(f's_mov_b32 s{sTMP}, {so}'); sof = f's{sTMP}'
    e(f'buffer_load_dwordx4 v{v}, s[{srd}:{srd+3}], {sof} offen offset:{imm}{nt} lds')

stream = [('W', s) for s in range(16)] + [('D', u) for u in range(8)]
sched = []; pos = PRO
for st in STAGES:
    n = len(st)
    sched.append(stream[pos:pos+n]); pos = min(pos + n, len(stream))
assert pos == len(stream), pos
e(f's_mov_b32 m0, s{sMW}'); cur_m0[0] = ('W', 0)
e(f's_cmp_lg_u32 s{sC3}, 0')
e('s_waitcnt lgkmcnt(0)')
stamp(1)
e(f's_load_dword s{sTAG}, s[{SW}:{SW+1}], 0')
e('s_cbranch_scc1 L_pro3')
issued = [('W', 0), ('X', 0), ('X', 1)] + stream[1:PRO]
for it in issued: issue(it)
e('s_branch L_pre')
lab('L_pro3')
iB = [i for i, st in enumerate(STAGES) if st[0] == 8][0]
upto = stream[:PRO] + [x for sc_ in sched[:iB] for x in sc_]
c3list = [('W', 8), ('X', 1)] + [x for x in upto if not (x[0] == 'W' and x[1] <= 8)]
cur_m0[0] = None
for it in c3list: issue(it)
lab('L_pre')
cur_m0[0] = None
stamp(2)
e(f'v_bfe_u32 v{vT1}, v{vL}, 2, 3')
e(f'v_lshlrev_b32 v{vT0}, 7, v{vT1}')
e(f'v_and_b32 v{vT2}, 1, v{vL}')
e(f'v_lshl_add_u32 v{vT0}, v{vT2}, 3, v{vT0}')
e(f'v_and_b32 v{vT1}, 6, v{vT1}')
e(f'v_bfe_u32 v{vT2}, v{vL}, 1, 1')
e(f'v_add_u32 v{vT1}, v{vT1}, v{vT2}')
e(f'v_lshl_add_u32 v{vT2}, v{vWV}, 1, v{vT1}')
e(f'v_and_b32 v{vT2}, 7, v{vT2}')
e(f'v_lshl_add_u32 v{vRD1}, v{vT2}, 4, v{vT0}')
e(f'v_lshrrev_b32 v{vT2}, 5, v{vL}')
e(f'v_lshl_add_u32 v{vRD1}, v{vT2}, 15, v{vRD1}')
e(f'v_lshl_add_u32 v{vRD2}, v{vT2}, 11, v{vT0}')
e(f'v_add_u32 v{vRD2}, s{sMD}, v{vRD2}')
for st in range(4):
    e(f'v_add_u32 v{vT2}, {2*st}, v{vT1}')
    e(f'v_and_b32 v{vT2}, 7, v{vT2}')
    e(f'v_lshl_add_u32 v{vP+8+st}, v{vT2}, 4, v{vRD2}')
e(f'v_add_u32 v{vXL}, {LDS_X}, v{vL16}')
e(f's_lshl_b32 s{sP}, s{sCT}, 14')
e(f's_lshl_b32 s{sTMP}, s{sWV}, 10')
e(f's_add_u32 s{sP}, s{sP}, s{sTMP}')
e(f's_add_u32 s{sP}, s{sP}, {PBASE}')
e(f's_lshl_b32 s{sTMP}, s{sKK}, 12')
e(f's_and_b32 s{sTMP2}, s{sMEM}, 1')
e(f's_lshl_b32 s{sTMP2}, s{sTMP2}, 7')
e(f's_add_u32 s{sTMP}, s{sTMP}, s{sTMP2}')
e(f'v_add_u32 v{vPUB1}, s{sTMP}, v{vL16}')
e(f'v_and_b32 v{vT1}, 7, v{vL}')
e(f'v_lshrrev_b32 v{vT2}, 4, v{vL}')
e(f'v_bfe_u32 v{vT0}, v{vL}, 3, 1')
e(f'v_lshl_add_u32 v{vT0}, v{vT0}, 2, v{vT2}')
e(f'v_mul_u32_u24 v{vPUB2}, 7168, v{vT0}')
e(f'v_lshl_add_u32 v{vPUB2}, v{vT1}, 4, v{vPUB2}')
e(f's_mul_i32 s{sTMP}, s{sCOL0}, {7168//4}')
e(f's_lshl_b32 s{sTMP2}, s{sCT}, 7')
e(f's_add_u32 s{sTMP}, s{sTMP}, s{sTMP2}')
e(f's_add_u32 s{sTMP}, s{sTMP}, {YBASE}')
e(f'v_add_u32 v{vPUB2}, s{sTMP}, v{vPUB2}')
e(f'v_mul_u32_u24 v{vHR}, 144, v{vT1}')
e(f'v_add_u32 v{vHR}, {LDS_H}, v{vHR}')
e(f'v_lshl_add_u32 v{vHW}, v{vWV}, 5, v{vHR}')
e(f'v_lshl_add_u32 v{vHW}, v{vT2}, 3, v{vHW}')
e(f'v_lshl_add_u32 v{vHR}, v{vT2}, 4, v{vHR}')
for i in range(8): e(f'v_mov_b32 v{vACC+i}, 0')
for i in range(16): e(f'v_mov_b32 v{vH+i}, 0')
e(f's_not_b64 s[{sHI}:{sHI+1}], s[{sLO}:{sLO+1}]')
e('s_waitcnt lgkmcnt(0)')
common_tag()
e(f's_cmp_lg_u32 s{sC3}, 0')
e('s_cbranch_scc1 L_compB')
for si, stage in enumerate(STAGES):
    if stage[0] == 8: lab('L_compB'); cur_m0[0] = None
    idx = issued.index(('W', stage[-1]))
    e(f's_waitcnt vmcnt({len(issued)-1-idx})')
    for it in sched[si]: issue(it); issued.append(it)
    e('s_barrier')
    if stage[0] == 8: stamp(3)
    ts = sorted(set(s >> 1 for s in stage))
    nrd = 0
    for t in ts:
        if (2*t) in stage:
            e(f'ds_read_b128 v[{vXF+4*(t&1)}:{vXF+4*(t&1)+3}], v{vXL} offset:{t*1024}')
    for i, s in enumerate(stage):
        b = vW + 4*i
        e(f'ds_read_b64_tr_b16 v[{b}:{b+1}], v{vRD1} offset:{s*1024}')
        e(f'ds_read_b64_tr_b16 v[{b+2}:{b+3}], v{vRD1} offset:{16384+s*1024}')
    for i, s in enumerate(stage):
        b = vW + 4*i
        e(f's_waitcnt lgkmcnt({2*(len(stage)-1-i)})')
        acc = vACC + 4*(s & 1); t = s >> 1
        xf = vXF + 4*(t & 1)
        e(f'v_mfma_f32_16x16x32_bf16 v[{acc}:{acc+3}], v[{b}:{b+3}], v[{xf}:{xf+3}], v[{acc}:{acc+3}]')
stamp(4)
e(f's_mov_b32 s{sCNT}, {POLL_MAX}')
e(f's_add_u32 s{sTMP2}, s{sP}, 4096')
e('s_nop 5')
for r in range(4):
    e(f'v_add_f32_dpp v{vP+r}, v{vACC+4+r}, v{vACC+r} row_ror:8 row_mask:0xf bank_mask:0xf')
for r in range(4):
    e(f'v_bfi_b32 v{vP+r}, v{vFF}, s{sTB+r}, v{vP+r}')
e(f's_mov_b64 exec, s[{sLO}:{sLO+1}]')
e(f'buffer_store_dwordx4 v[{vP}:{vP+3}], v{vPUB1}, s[{SW}:{SW+3}], s{sP} offen{SC}')
e('s_mov_b64 exec, -1')
stamp(5)
e('s_waitcnt vmcnt(1)')
for st in range(4):
    for s in range(2):
        b = vWD + 8*st + 4*s
        e(f'ds_read_b64_tr_b16 v[{b}:{b+1}], v{vP+8+st} offset:{s*4096}')
        e(f'ds_read_b64_tr_b16 v[{b+2}:{b+3}], v{vP+8+st} offset:{s*4096+1024}')
stamp(6)
def check(g):
    e(f'v_perm_b32 v{vP+4}, v{g+1}, v{g}, s{sSEL0}')
    e(f'v_perm_b32 v{vP+5}, v{g+3}, v{g+2}, s{sSEL0}')
    e(f'v_cmpx_eq_u64 vcc, s[{sEXP}:{sEXP+1}], v[{vP+4}:{vP+5}]')
lab('L_poll1')
e(f'buffer_load_dwordx4 v[{vG}:{vG+3}], v{vL16}, s[{SW}:{SW+3}], s{sP} offen{SC}')
e(f'buffer_load_dwordx4 v[{vG+4}:{vG+7}], v{vL16}, s[{SW}:{SW+3}], s{sTMP2} offen{SC}')
e(f's_cmp_lg_u32 s{sC3}, 0')
e('s_cbranch_scc0 L_poll1n')
e(f's_add_u32 s{sTMP}, s{sP}, 8192')
e(f'buffer_load_dwordx4 v[{vG+8}:{vG+11}], v{vL16}, s[{SW}:{SW+3}], s{sTMP} offen{SC}')
e(f's_add_u32 s{sTMP}, s{sP}, 12288')
e(f'buffer_load_dwordx4 v[{vG+12}:{vG+15}], v{vL16}, s[{SW}:{SW+3}], s{sTMP} offen{SC}')
e('s_waitcnt vmcnt(0)')
check(vG+8); check(vG+12)
lab('L_poll1n')
e(f's_sub_u32 s{sCNT}, s{sCNT}, 1')
e('s_cbranch_scc1 L_poll1_done')
e('s_waitcnt vmcnt(0)')
check(vG); check(vG+4)
e('s_cmp_eq_u64 exec, -1')
e('s_mov_b64 exec, -1')
e('s_cbranch_scc0 L_poll1')
lab('L_poll1_done')
e('s_mov_b64 exec, -1')
e('s_waitcnt vmcnt(0)')
stamp(7)
e(f'v_pk_add_f32 v[{vG}:{vG+1}], v[{vG}:{vG+1}], v[{vG+4}:{vG+5}]')
e(f'v_pk_add_f32 v[{vG+2}:{vG+3}], v[{vG+2}:{vG+3}], v[{vG+6}:{vG+7}]')
e(f's_cmp_lg_u32 s{sC3}, 0')
e('s_cbranch_scc0 L_act')
e(f'v_pk_add_f32 v[{vG+8}:{vG+9}], v[{vG+8}:{vG+9}], v[{vG+12}:{vG+13}]')
e(f'v_pk_add_f32 v[{vG+10}:{vG+11}], v[{vG+10}:{vG+11}], v[{vG+14}:{vG+15}]')
e(f'v_pk_add_f32 v[{vG}:{vG+1}], v[{vG}:{vG+1}], v[{vG+8}:{vG+9}]')
e(f'v_pk_add_f32 v[{vG+2}:{vG+3}], v[{vG+2}:{vG+3}], v[{vG+10}:{vG+11}]')
lab('L_act')
e(f's_mov_b32 s{sTMP}, 0xbfb8aa3b')
e(f's_mov_b32 s{sTMP2}, 0xffff0000')
R = vG; P = vP
e(f'v_cvt_pk_bf16_f32 v{P}, v{R}, v{R+1}')
e(f'v_cvt_pk_bf16_f32 v{P+1}, v{R+2}, v{R+3}')
e(f'v_lshlrev_b32 v{R}, 16, v{P}')
e(f'v_and_b32 v{R+1}, s{sTMP2}, v{P}')
e(f'v_lshlrev_b32 v{R+2}, 16, v{P+1}')
e(f'v_and_b32 v{R+3}, s{sTMP2}, v{P+1}')
for r in range(4): e(f'v_mul_f32 v{P+r}, s{sTMP}, v{R+r}')
for r in range(4): e(f'v_exp_f32 v{P+r}, v{P+r}')
for r in range(4): e(f'v_add_f32 v{P+r}, 1.0, v{P+r}')
for r in range(4): e(f'v_rcp_f32 v{P+r}, v{P+r}')
for r in range(4): e(f'v_mul_f32 v{P+r}, v{P+r}, v{R+r}')
e(f'v_cvt_pk_bf16_f32 v{P+4}, v{P}, v{P+1}')
e(f'v_cvt_pk_bf16_f32 v{P+5}, v{P+2}, v{P+3}')
e(f'v_lshlrev_b32 v{P}, 16, v{P+4}')
e(f'v_and_b32 v{P+1}, s{sTMP2}, v{P+4}')
e(f'v_lshlrev_b32 v{P+2}, 16, v{P+5}')
e(f'v_and_b32 v{P+3}, s{sTMP2}, v{P+5}')
for r in range(4):
    e(f'v_mul_f32_dpp v{P+r}, v{R+r}, v{P+r} row_ror:8 row_mask:0xf bank_mask:0xf')
e(f'v_cvt_pk_bf16_f32 v{P+4}, v{P}, v{P+1}')
e(f'v_cvt_pk_bf16_f32 v{P+5}, v{P+2}, v{P+3}')
e(f's_mov_b64 exec, s[{sLO}:{sLO+1}]')
e(f'ds_write_b64 v{vHW}, v[{P+4}:{P+5}]')
e('s_waitcnt lgkmcnt(0)')
e('s_barrier')
e(f'ds_read_b128 v[{vH}:{vH+3}], v{vHR}')
e(f'ds_read_b128 v[{vH+4}:{vH+7}], v{vHR} offset:64')
e(f's_mov_b64 exec, s[{sHI}:{sHI+1}]')
e(f'ds_read_b128 v[{vH+8}:{vH+11}], v{vHR}')
e(f'ds_read_b128 v[{vH+12}:{vH+15}], v{vHR} offset:64')
e('s_mov_b64 exec, -1')
e(f's_cmp_lg_u32 s{sT3}, 0')
e('s_cbranch_scc1 L_nop2')
for k in range(4):
    half, s = k >> 1, k & 1
    e(f's_waitcnt lgkmcnt({3-k})')
    for a in range(2):
        st = 2*a + half
        b = vWD + 8*st + 4*s
        acc = vACC + 4*a
        c = '0' if k == 0 else f'v[{acc}:{acc+3}]'
        e(f'v_mfma_f32_16x16x32_bf16 v[{acc}:{acc+3}], v[{b}:{b+3}], v[{vH+4*k}:{vH+4*k+3}], {c}')
e(f's_mov_b32 s{sTMP}, {8*7168}')
e('s_nop 5')
for r in range(4):
    e(f'v_bfi_b32 v{vACC+r}, v{vFF}, s{sTB+r}, v{vACC+r}')
e(f'buffer_store_dwordx4 v[{vACC}:{vACC+3}], v{vPUB2}, s[{SW}:{SW+3}], 0 offen{SC}')
for r in range(4):
    e(f'v_bfi_b32 v{vACC+4+r}, v{vFF}, s{sTB+r}, v{vACC+4+r}')
e(f'buffer_store_dwordx4 v[{vACC+4}:{vACC+7}], v{vPUB2}, s[{SW}:{SW+3}], s{sTMP} offen{SC}')
lab('L_nop2')
stamp(8)
e(f's_cmp_lg_u32 s{sWV}, 0')
e('s_cbranch_scc1 L_fin_done')
e(f's_mul_i32 s{sP}, s{sTASK}, 7168')
e(f's_add_u32 s{sP}, s{sP}, {YBASE}')
e(f's_add_u32 s{sTMP2}, s{sP}, 4096')
e(f'v_and_b32 v{vT1}, 7, v{vL}')
e(f'v_lshlrev_b32 v{vRA}, 4, v{vT1}')
e(f'v_lshlrev_b32 v{vOUT}, 11, v{vT1}')
e(f'v_lshrrev_b32 v{vT1}, 4, v{vL}')
e(f'v_lshl_add_u32 v{vOUT}, v{vT1}, 1, v{vOUT}')
e(f's_lshl_b32 s{sTMP}, s{sTASK}, 3')
e(f'v_add_u32 v{vOUT}, s{sTMP}, v{vOUT}')
e(f'buffer_load_ushort v{vXR}, v{vOUT}, s[{SX}:{SX+3}], 0 offen')
e(f's_mov_b32 s{sCNT}, {POLL_MAX}')
lab('L_poll2')
e(f'buffer_load_dwordx4 v[{vG+28}:{vG+31}], v{vRA}, s[{SW}:{SW+3}], 0 offen offset:{RBASE}{SC}')
for i in range(7):
    so = sP if i < 4 else sTMP2
    e(f'buffer_load_dwordx4 v[{vG+4*i}:{vG+4*i+3}], v{vL16}, s[{SW}:{SW+3}], s{so} offen offset:{(i&3)*1024}{SC}')
e(f's_sub_u32 s{sCNT}, s{sCNT}, 1')
e('s_cbranch_scc1 L_poll2_done')
e('s_waitcnt vmcnt(7)')
check(vG + 28)
for i in range(7):
    e(f's_waitcnt vmcnt({6-i})')
    check(vG + 4*i)
e('s_cmp_eq_u64 exec, -1')
e('s_mov_b64 exec, -1')
e('s_cbranch_scc0 L_poll2')
lab('L_poll2_done')
e('s_waitcnt vmcnt(0)')
stamp(9)
def padd(a, b):
    e(f'v_pk_add_f32 v[{vG+4*a}:{vG+4*a+1}], v[{vG+4*a}:{vG+4*a+1}], v[{vG+4*b}:{vG+4*b+1}]')
    e(f'v_pk_add_f32 v[{vG+4*a+2}:{vG+4*a+3}], v[{vG+4*a+2}:{vG+4*a+3}], v[{vG+4*b+2}:{vG+4*b+3}]')
padd(0, 1); padd(2, 3); padd(4, 5); padd(0, 2); padd(4, 6); padd(0, 4)
e(f'v_and_b32 v{vRS}, 0xffff0000, v{vG+28}')
e(f'v_lshlrev_b32 v{vXR}, 16, v{vXR}')
e(f'v_permlane32_swap_b32 v{vG}, v{vG+2}')
e(f'v_permlane32_swap_b32 v{vG+1}, v{vG+3}')
e(f'v_add_f32 v{vG}, v{vG}, v{vG+2}')
e(f'v_add_f32 v{vG+1}, v{vG+1}, v{vG+3}')
e('s_nop 1')
e(f'v_permlane16_swap_b32 v{vG}, v{vG+1}')
e(f'v_add_f32 v{vG}, v{vG}, v{vG+1}')
e('s_nop 1')
e(f'v_add_f32_dpp v{vG}, v{vG}, v{vG} row_ror:8 row_mask:0xf bank_mask:0xf')
e(f'v_cvt_pk_bf16_f32 v{vG}, v{vG}, v{vG}')
e(f'v_lshlrev_b32 v{vG}, 16, v{vG}')
e(f'v_mul_f32 v{vG}, v{vG}, v{vRS}')
e(f'v_cvt_pk_bf16_f32 v{vG}, v{vG}, v{vG}')
e(f'v_lshlrev_b32 v{vG}, 16, v{vG}')
e(f'v_fma_f32 v{vG}, v{vXR}, 0, v{vG}')
e(f'v_add_f32 v{vG}, v{vG}, v{vXR}')
e(f'v_cvt_pk_bf16_f32 v{vG}, v{vG}, v{vG}')
e(f's_mov_b64 exec, s[{sLO}:{sLO+1}]')
e(f'buffer_store_short v{vG}, v{vOUT}, s[{SO}:{SO+3}], 0 offen')
e(f's_cmp_lg_u32 s{sTASK}, 0')
e('s_cbranch_scc1 L_fin_done')
e('s_mov_b64 exec, 1')
e(f'v_mov_b32 v{vT1}, s{sTAG}')
e(f'buffer_store_dword v{vT1}, v{vL16}, s[{SW}:{SW+3}], 0 offen sc1')
lab('L_fin_done')
if STAMPS:
    e('s_waitcnt vmcnt(0)')
    stamp(10)
    e('s_getreg_b32 s62, hwreg(HW_REG_XCC_ID)')
    e('s_waitcnt lgkmcnt(0)')
    n = nstamp[0]
    e('s_mov_b64 exec, 1')
    e(f's_lshl_b32 s{sTMP}, s2, 2')
    e(f's_add_u32 s{sTMP}, s{sTMP}, s{sWV}')
    e(f's_lshl_b32 s{sTMP}, s{sTMP}, 6')
    e(f's_add_u32 s{sTMP}, s{sTMP}, {STAMPBASE}')
    for i in range(n):
        e(f'v_mov_b32 v{vT1}, s{64+2*i}')
        e(f'buffer_store_dword v{vT1}, v{vL16}, s[{SW}:{SW+3}], s{sTMP} offen offset:{4*i}')
        e('s_nop 0')
    e(f'v_mov_b32 v{vT1}, s62')
    e(f'buffer_store_dword v{vT1}, v{vL16}, s[{SW}:{SW+3}], s{sTMP} offen offset:56')
lab('L_end')
e('s_endpgm')
lab('L_router')
e(f's_cmp_gt_u32 s{sWV}, 1')
e('s_cbranch_scc1 L_end')
e(f's_sub_u32 s{sTMP}, s{sSLOT}, 28')
e(f's_lshl_b32 s{sTMP}, s{sTMP}, 1')
e(f's_add_u32 s{sKK}, s{sTMP}, s{sWV}')
e(f's_lshl_b32 s{sTMP}, s{sKK}, 11')
e('s_waitcnt lgkmcnt(0)')
e(f's_load_dword s{sTAG}, s[{SW}:{SW+1}], 0')
e(f'buffer_load_dwordx4 v[{vRX}:{vRX+3}], v{vL16}, s[{SX}:{SX+3}], s{sTMP} offen')
e(f'buffer_load_dwordx4 v[{vRX+4}:{vRX+7}], v{vL16}, s[{SX}:{SX+3}], s{sTMP} offen offset:1024')
e(f'buffer_load_dwordx4 v[{vRX+8}:{vRX+11}], v{vL16}, s[{SR}:{SR+3}], 0 offen')
e(f'buffer_load_dwordx4 v[{vRX+12}:{vRX+15}], v{vL16}, s[{SR}:{SR+3}], 0 offen offset:1024')
e(f'v_mov_b32 v{vRS}, 0')
e('s_waitcnt vmcnt(0) lgkmcnt(0)')
common_tag()
for i in range(8):
    e(f'v_dot2c_f32_bf16 v{vRS}, v{vRX+i}, v{vRX+8+i}')
e('s_nop 2')
for sh in (1, 2, 4, 8):
    e(f'v_add_f32_dpp v{vRS}, v{vRS}, v{vRS} row_ror:{sh} row_mask:0xf bank_mask:0xf')
    e('s_nop 1')
e(f'v_mov_b32 v{vT1}, v{vRS}')
e('s_nop 1')
e(f'v_permlane16_swap_b32 v{vRS}, v{vT1}')
e(f'v_add_f32 v{vRS}, v{vRS}, v{vT1}')
e(f'v_mov_b32 v{vT1}, v{vRS}')
e('s_nop 1')
e(f'v_permlane32_swap_b32 v{vRS}, v{vT1}')
e(f'v_add_f32 v{vRS}, v{vRS}, v{vT1}')
e(f'v_cvt_pk_bf16_f32 v{vRS}, v{vRS}, v{vRS}')
e(f'v_lshlrev_b32 v{vRS}, 16, v{vRS}')
e(f'v_mul_f32 v{vRS}, 0xbfb8aa3b, v{vRS}')
e(f'v_exp_f32 v{vRS}, v{vRS}')
e('s_nop 0')
e(f'v_add_f32 v{vRS}, 1.0, v{vRS}')
e(f'v_rcp_f32 v{vRS}, v{vRS}')
e('s_nop 0')
e(f'v_cvt_pk_bf16_f32 v{vRS}, v{vRS}, v{vRS}')
e(f'v_bfi_b32 v{vP}, v{vFF}, s{sTB}, v{vRS}')
for r in range(1, 4): e(f'v_mov_b32 v{vP+r}, s{sTB+r}')
e(f's_lshl_b32 s{sTMP}, s{sKK}, 4')
e('s_mov_b64 exec, 1')
e(f'buffer_store_dwordx4 v[{vP}:{vP+3}], v{vL16}, s[{SW}:{SW+3}], s{sTMP} offen offset:{RBASE}{SC}')
e('s_mov_b64 exec, -1')
e('s_branch L_nop2')
o += ['.section .rodata,"a"', '.p2align 6', f'.amdhsa_kernel {NAME}',
      f'  .amdhsa_next_free_vgpr {NV}', '  .amdhsa_next_free_sgpr 96', f'  .amdhsa_accum_offset {NV}',
      '  .amdhsa_group_segment_fixed_size 0', '  .amdhsa_kernarg_size 64', '  .amdhsa_user_sgpr_count 2',
      '  .amdhsa_user_sgpr_kernarg_segment_ptr 1', '  .amdhsa_system_sgpr_workgroup_id_x 1',
      '  .amdhsa_float_denorm_mode_32 3',
      '.end_amdhsa_kernel']
print('\n'.join(o))
```

```python
import sys
opts = dict(a.split('=') if '=' in a else (a, '1') for a in sys.argv[1:])
STAMPS = 'stamps' in opts
NT1 = '' if 'nont1' in opts else ' nt'
NT2 = '' if 'nont2' in opts else ' nt'
FSC = ' ' + opts.get('fsc', 'nt').replace('+', ' ').replace('none', '')
OUTSC = ' ' + opts.get('outsc', '').replace('+', ' ')
NAME = 'standalone__moe_arch_mod__decode_kernel'
NWG = 256
LDS_D = 65536
LDS_X = 98304
LDS_TOTAL = LDS_X + 8192
RBASE = 1024
TBASE = 2048
PBASE = 4096
YBASE = PBASE + 56 * 16384
YS = 3584
HBASE = YBASE + 256 * YS
STAMPBASE = 3 << 20
WS_SIZE = 4 << 20
OOB = 0x10000000
assert HBASE + 56 * 2048 <= (2 << 20)
POLL_MAX = 1 << 16
STAGES = eval(opts.get('stages', '[[0,1],[2,3],[4,5],[6,7],[8,9],[10,11],[12,13],[14],[15]]'))
PRO = int(opts.get('pro', 9))
NISS = eval(opts.get('niss', '[2,2,2,1,1,0,0,0,0]'))
PW = int(opts.get('pw', 1))

o = []
def e(s): o.append('    ' + s)
def lab(s): o.append(s + ':')
nstamp = [0]
def stamp(i):
    if STAMPS:
        nstamp[0] = max(nstamp[0], i + 1)
        e(f's_memrealtime s[{68+2*i}:{69+2*i}]')

hdr = open('standalone__moe_arch_mod__decode.s.ref').read().split('\n')
for l in hdr:
    if l.startswith('; @launch'):
        o.append(f'; @launch grid=({NWG},1,1) block=(256,1,1) lds={LDS_TOTAL}')
        break
    o.append(l)
o += ['.amdgcn_target "amdgcn-amd-amdhsa--gfx950"', '.text', f'.globl {NAME}', '.p2align 8',
      f'.type {NAME},@function', f'{NAME}:']

SM, SD, SX, SW, SO, SR = 4, 8, 12, 16, 20, 24
sTAG = 28
sEXP = 30
sTB = 32
sCT, sMEM, sC3, sWV, sTMP, sTMP2, sP, sCNT, sTASK, sROW0, sQ, sKK, sSEL0, sMW, sXCD, sSLOT = range(36, 52)
sLO, sHI = 52, 54
sNOP2, sMD, sMX, sPOS, sQ2, sK3 = 56, 57, 58, 59, 60, 61
sLOC = 62
sT64 = 64
sY = 66; sTROW = 67
vL, vT0, vT1, vT2, vA, vB, vX, vD, vRD1, vRDA, vL16, vTR, vPUB2, vFF, vHP, vP1 = range(1, 17)
vWV = 17; vOUT = 18; vXR = 19; vRS = 20; vXL = 21; vRA = 22; vRDB = 23
vXF = 24
vACC = 32
vW = 48
vWD = 64
vG = 96
vP = 128
vPP = 140
vGR = 144
vQ = 150; vTA = 151; vTB = 152; vY4 = 154
vRX = 64
NV = 156

def srdc(s, sz):
    e(f's_mov_b32 s{s+2}, {sz}'); e(f's_mov_b32 s{s+3}, 0x20000')
def common_tag():
    e(f's_mul_i32 s{sTAG}, s{sTAG}, 1664525')
    e(f's_add_u32 s{sTAG}, s{sTAG}, 1013904223')
    e(f'v_mov_b32 v{vTB}, s{sTAG}')
    e(f'v_mov_b32 v{vTB+1}, s{sTAG+1}')
    e(f'v_lshlrev_b32 v{vT1}, 22, v0')
    e(f's_lshl_b32 s{sTMP}, s{sTASK}, 3')
    e(f'buffer_store_dwordx2 v[{vTB}:{vTB+1}], v{vT1}, s[{SW}:{SW+3}], s{sTMP} offen offset:{TBASE} sc1')
    e(f's_and_b32 s{sEXP}, s{sTAG}, 0xffff')
    e(f's_lshr_b32 s{sEXP+1}, s{sTAG}, 16')
    e(f's_mov_b32 s{sTB}, s{sTAG}')
    e(f's_lshr_b32 s{sTB+1}, s{sTAG}, 8')
    e(f's_lshr_b32 s{sTB+2}, s{sTAG}, 16')
    e(f's_lshr_b32 s{sTB+3}, s{sTAG}, 24')
    e(f's_mov_b32 s{sT64}, s{sTAG}')
    e(f's_mul_i32 s{sT64+1}, s{sTAG}, 0x9e3779b1')
def common_consts():
    srdc(SO, 16384)
    e(f's_mov_b32 s{sLO}, 0x00ff00ff'); e(f's_mov_b32 s{sLO+1}, 0x00ff00ff')
    e(f's_not_b64 s[{sHI}:{sHI+1}], s[{sLO}:{sLO+1}]')
    e(f's_mov_b32 s{sSEL0}, 0x0c0c0400')
    e(f'v_mov_b32 v{vFF}, 0xff')
    e(f's_lshl_b32 s{sTASK}, s{sXCD}, 5')
    e(f's_add_u32 s{sTASK}, s{sTASK}, s{sSLOT}')
    e(f's_getreg_b32 s{sTAG+1}, hwreg(HW_REG_XCC_ID, 0, 4)')
    e(f's_lshl_b32 s{sTROW}, s{sXCD}, 8')
    e(f'v_and_b32 v{vTR}, 31, v{vL}')
    e(f'v_lshlrev_b32 v{vTR}, 3, v{vTR}')
    e(f's_mul_i32 s{sY}, s{sTASK}, {YS}')
    e(f's_add_u32 s{sY}, s{sY}, {YBASE}')
    e(f'v_and_b32 v{vT1}, 7, v{vL}')
    e(f'v_lshlrev_b32 v{vRA}, 4, v{vT1}')
    e(f'v_lshlrev_b32 v{vOUT}, 11, v{vT1}')
    e(f'v_lshrrev_b32 v{vT1}, 4, v{vL}')
    e(f'v_lshl_add_u32 v{vOUT}, v{vT1}, 1, v{vOUT}')
    e(f's_lshl_b32 s{sTMP}, s{sTASK}, 3')
    e(f'v_add_u32 v{vOUT}, s{sTMP}, v{vOUT}')
    e(f'v_and_b32 v{vY4}, 0x1ff, v{vL16}')
    e(f'v_and_b32 v{vP1}, 0x37f, v{vL16}')

stamp(0)
e(f's_and_b32 s{sTMP}, s2, 8')
e(f's_add_u32 s{sTMP}, s{sTMP}, 16')
e(f's_load_dwordx2 s[{SM}:{SM+1}], s[0:1], s{sTMP}')
e(f's_load_dwordx2 s[{SX}:{SX+1}], s[0:1], 0')
e(f's_load_dwordx2 s[{SW}:{SW+1}], s[0:1], 56')
e(f's_load_dwordx2 s[{SD}:{SD+1}], s[0:1], 32')
e(f's_load_dwordx2 s[{SO}:{SO+1}], s[0:1], 40')
e(f's_cmp_ge_u32 s2, {NWG}')
e('s_cbranch_scc1 L_end')
e(f'v_lshrrev_b32 v{vWV}, 6, v0')
e(f'v_and_b32 v{vL}, 63, v0')
e(f'v_readfirstlane_b32 s{sWV}, v{vWV}')
e(f's_and_b32 s{sXCD}, s2, 7')
e(f's_lshr_b32 s{sSLOT}, s2, 3')
e(f's_lshr_b32 s{sPOS}, s2, 5')
srdc(SM, 1024*3584*2); srdc(SX, 16384); srdc(SW, WS_SIZE)
e(f'v_lshlrev_b32 v{vL16}, 4, v{vL}')
e(f's_cmp_eq_u32 s{sXCD}, 7')
e('s_cbranch_scc1 L_x7')
e(f's_cmp_lt_u32 s{sPOS}, 5')
e(f's_subb_u32 s{sPOS}, s{sPOS}, 1')
e(f's_cmp_lt_u32 s{sSLOT}, 8')
e(f's_cselect_b32 s{sPOS}, 3, s{sPOS}')
e(f's_cselect_b32 s{sC3}, 1, 0')
e(f's_lshl3_add_u32 s{sCT}, s{sXCD}, s{sPOS}')
e('s_branch L_dec')
lab('L_x7')
e(f's_cmp_lt_u32 s{sSLOT}, 4')
e('s_cbranch_scc1 L_router')
e(f's_lshl3_add_u32 s{sCT}, s{sPOS}, -1')
e(f's_mov_b32 s{sC3}, 0')
lab('L_dec')
e(f's_lshl2_add_u32 s{sTMP}, s{sC3}, 3')
e(f's_and_b32 s{sMEM}, s{sSLOT}, s{sTMP}')
e(f's_lshr_b32 s{sKK}, s{sMEM}, 1')
e(f's_or_b32 s{sTMP}, s{sMEM}, 1')
e(f's_cmp_lg_u32 s{sC3}, 0')
e(f's_cselect_b32 s{sROW0}, s{sKK}, s{sTMP}')
e(f'v_lshrrev_b32 v{vT1}, 5, v{vL}')
e(f'v_bfe_u32 v{vT2}, v{vL}, 3, 2')
e(f'v_lshl_add_u32 v{vT0}, v{vT1}, 3, v{vT2}')
e(f'v_lshrrev_b32 v{vT2}, 3, v{vL}')
e(f'v_and_b32 v{vT2}, 6, v{vT2}')
e(f'v_sub_u32 v{vT2}, v{vL}, v{vT2}')
e(f'v_and_b32 v{vT2}, 7, v{vT2}')
e(f'v_lshlrev_b32 v{vT2}, 4, v{vT2}')
e(f's_and_b32 s{sTMP}, s{sWV}, 2')
e(f's_add_u32 s{sTMP}, s{sTMP}, s{sWV}')
e(f's_lshl_b32 s{sTMP2}, s{sROW0}, 6')
e(f's_add_u32 s{sTMP}, s{sTMP}, s{sTMP2}')
e(f's_mul_i32 s{sTMP}, s{sTMP}, {4*7168}')
e(f's_lshl_b32 s{sTMP2}, s{sCT}, 7')
e(f's_add_u32 s{sTMP}, s{sTMP}, s{sTMP2}')
e(f'v_mul_u32_u24 v{vB}, 7168, v{vT0}')
e(f'v_add3_u32 v{vB}, v{vB}, v{vT2}, s{sTMP}')
e(f'v_subrev_u32 v{vA}, {256*7168}, v{vB}')
e(f's_lshl_b32 s{sMW}, s{sWV}, 14')

cur_m0 = [None]
def set_m0(key, expr_reg, add):
    if cur_m0[0] == (key, add): return False
    cur_m0[0] = (key, add)
    if add: e(f's_add_u32 m0, s{expr_reg}, {add}')
    else: e(f's_mov_b32 m0, s{expr_reg}')
    return True
def issue(item):
    k, i = item
    if k == 'F':
        if i == 0: e(f'buffer_load_dword v{vTA}, v{vP1}, s[{SW}:{SW+3}], s{sP} offen{FSC}')
        else: e(f'buffer_load_dword v{vTA}, v{vPUB2}, s[{SW}:{SW+3}], 0 offen{FSC}')
        return
    if k == 'W':
        ch = set_m0('W', sMW, (i >> 2) * 4096)
        imm = (i & 3) * 1024
        so = (i & 7) * 32 * 7168 - imm
        v, srd, nt = (vA if i < 8 else vB), SM, NT1
    elif k == 'D':
        ch = set_m0('D', sMD, (i >> 2) * 4096)
        gp, e4, chh = i >> 2, (i >> 1) & 1, i & 1
        imm = (i & 3) * 1024
        so = (16*gp + 4*e4) * 2048 + chh * 128 - imm + 4096
        v, srd, nt = vD, SD, NT2
    else:
        ch = set_m0('X', sMX, i * 4096)
        imm = 0; so = 0
        v, srd, nt = (vXL if i == 0 else vX), SX, ''
    if so == 0:
        sof = '0'
        if ch: e('s_nop 0')
    else:
        e(f's_mov_b32 s{sTMP}, {so}'); sof = f's{sTMP}'
    e(f'buffer_load_dwordx4 v{v}, s[{srd}:{srd+3}], {sof} offen offset:{imm}{nt} lds')

def addr_x():
    e(f'v_and_b32 v{vT1}, 7, v{vL}')
    e(f'v_lshlrev_b32 v{vX}, 11, v{vT1}')
    e(f'v_and_b32 v{vT1}, 8, v{vL}')
    e(f'v_lshl_add_u32 v{vX}, v{vT1}, 3, v{vX}')
    e(f'v_and_b32 v{vT1}, 48, v{vL}')
    e(f's_lshl2_add_u32 s{sTMP}, s{sROW0}, s{sWV}')
    e(f's_lshl_b32 s{sTMP}, s{sTMP}, 7')
    e(f'v_add3_u32 v{vX}, v{vX}, v{vT1}, s{sTMP}')
    e(f'v_subrev_u32 v{vXL}, 512, v{vX}')
    e(f's_lshl_b32 s{sMX}, s{sWV}, 10')
    e(f's_add_u32 s{sMX}, s{sMX}, {LDS_X}')

stream = [('W', s) for s in range(16)] + [('F', 0)] + [('D', u) for u in range(8)] + [('F', 1)]
sched = []; pos = PRO
for i_, st in enumerate(STAGES):
    n = NISS[i_]
    sched.append(stream[pos:pos+n]); pos = min(pos + n, len(stream))
tail_items = stream[pos:]
assert ('F', 0) not in tail_items
H = 4
e(f's_lshl_b32 s{sTMP2}, s{sC3}, 13')
e(f's_add_u32 m0, s{sMW}, s{sTMP2}')
e(f's_cmp_lg_u32 s{sC3}, 0')
e('s_waitcnt lgkmcnt(0)')
stamp(1)
e('s_cbranch_scc1 L_pro3')
cur_m0[0] = ('W', 0)
issued = stream[:H]
for it in issued: issue(it)
e(f's_load_dword s{sTAG}, s[{SW}:{SW+1}], 0')
addr_x()
issue(('X', 0)); issue(('X', 1))
rest = stream[H:PRO]
assert all(k == 'W' for k, _ in rest)
for it in rest: issue(it)
issued = issued + [('X', 0), ('X', 1)] + rest + [('T', 0)]
lab('L_pre')
cur_m0[0] = None
stamp(2)
common_consts()
srdc(SD, 3584*1024*2 + 4096)
e(f's_sub_u32 s{SD}, s{SD}, 4096')
e(f's_subb_u32 s{SD+1}, s{SD+1}, 0')
e(f's_sub_u32 s{sK3}, s{sSLOT}, 4')
e(f's_cselect_b32 s{sNOP2}, {OOB}, 0')
e(f's_cselect_b32 s{sK3}, 0, s{sK3}')
e(f's_lshl2_add_u32 s{sTMP}, s{sK3}, s{sWV}')
e(f's_lshl_b32 s{sTMP}, s{sTMP}, 16')
e(f's_add_u32 s{sTMP}, s{sTMP}, s{sTROW}')
e(f's_add_u32 s{sTMP}, s{sTMP}, s{sNOP2}')
e(f'v_lshlrev_b32 v{vD}, 11, v{vT0}')
e(f'v_add3_u32 v{vD}, v{vD}, v{vT2}, s{sTMP}')
e(f's_lshl_b32 s{sMD}, s{sWV}, 13')
e(f's_add_u32 s{sMD}, s{sMD}, {LDS_D}')
e(f'v_bfe_u32 v{vT1}, v{vL}, 2, 3')
e(f'v_lshlrev_b32 v{vT0}, 7, v{vT1}')
e(f'v_and_b32 v{vT2}, 1, v{vL}')
e(f'v_lshl_add_u32 v{vT0}, v{vT2}, 3, v{vT0}')
e(f'v_and_b32 v{vT1}, 6, v{vT1}')
e(f'v_bfe_u32 v{vT2}, v{vL}, 1, 1')
e(f'v_add_u32 v{vT1}, v{vT1}, v{vT2}')
e(f'v_lshl_add_u32 v{vT2}, v{vWV}, 1, v{vT1}')
e(f'v_and_b32 v{vT2}, 7, v{vT2}')
e(f'v_lshl_add_u32 v{vRD1}, v{vT2}, 4, v{vT0}')
e(f'v_lshrrev_b32 v{vT2}, 5, v{vL}')
e(f'v_lshl_add_u32 v{vRD1}, v{vT2}, 15, v{vRD1}')
e(f'v_lshl_add_u32 v{vT0}, v{vT2}, 12, v{vT0}')
e(f's_lshr_b32 s{sTMP}, s{sWV}, 1')
e(f's_lshl_b32 s{sTMP}, s{sTMP}, 10')
e(f's_add_u32 s{sTMP}, s{sTMP}, {LDS_D}')
e(f'v_add_u32 v{vT0}, s{sTMP}, v{vT0}')
e(f'v_lshl_add_u32 v{vT1}, v{vWV}, 2, v{vT1}')
e(f'v_and_b32 v{vT2}, 7, v{vT1}')
e(f'v_lshl_add_u32 v{vRDA}, v{vT2}, 4, v{vT0}')
e(f'v_add_u32 v{vT1}, 2, v{vT1}')
e(f'v_and_b32 v{vT2}, 7, v{vT1}')
e(f'v_lshl_add_u32 v{vRDB}, v{vT2}, 4, v{vT0}')
e(f'v_add_u32 v{vXL}, {LDS_X}, v{vL16}')
e(f's_lshl2_add_u32 s{sP}, s{sCT}, s{sKK}')
e(f's_lshl2_add_u32 s{sP}, s{sP}, s{sWV}')
e(f's_lshl_b32 s{sP}, s{sP}, 10')
e(f's_and_b32 s{sTMP2}, s{sMEM}, 1')
e(f's_lshl_b32 s{sTMP2}, s{sTMP2}, 7')
e(f's_add_u32 s{sP}, s{sP}, s{sTMP2}')
e(f's_add_u32 s{sP}, s{sP}, {PBASE}')
e(f's_lshl_b32 s{sQ}, s{sK3}, 12')
e(f's_add_u32 s{sQ}, s{sQ}, {HBASE}')
e(f'v_bfe_u32 v{vT0}, v{vL}, 3, 1')
e(f'v_lshrrev_b32 v{vT2}, 4, v{vL}')
e(f'v_lshl_add_u32 v{vPUB2}, v{vT0}, 2, v{vT2}')
e(f'v_mul_u32_u24 v{vPUB2}, {YS}, v{vPUB2}')
e(f's_lshl2_add_u32 s{sTMP}, s{sXCD}, s{sWV}')
e(f's_mul_i32 s{sTMP}, s{sTMP}, {8*YS}')
e(f's_lshl_b32 s{sTMP2}, s{sK3}, 7')
e(f's_add_u32 s{sTMP}, s{sTMP}, s{sTMP2}')
e(f's_add_u32 s{sTMP}, s{sTMP}, s{sNOP2}')
e(f's_add_u32 s{sTMP}, s{sTMP}, {YBASE}')
e(f'v_add3_u32 v{vPUB2}, v{vPUB2}, v{vRA}, s{sTMP}')
for i in range(8): e(f'v_mov_b32 v{vACC+i}, 0')
e('s_waitcnt lgkmcnt(0)')
common_tag()
iB = [i for i, st in enumerate(STAGES) if st[0] == 8][0]
e(f's_cmp_lg_u32 s{sC3}, 0')
e('s_cbranch_scc1 L_pro3b')
cur_m0[0] = None
for si, stage in enumerate(STAGES):
    if stage[0] == 8:
        lab('L_compB'); cur_m0[0] = None
        upto = list(issued)
    idx = max(issued.index(('W', stage[-1])), issued.index(('X', int(stage[-1] >= 8))))
    e(f's_waitcnt vmcnt({len(issued)-1-idx})')
    for it in sched[si]: issue(it); issued.append(it)
    e('s_barrier')
    if stage[0] == 8: stamp(3)
    ts = sorted(set(s >> 1 for s in stage))
    for t in ts:
        if (2*t) in stage:
            e(f'ds_read_b128 v[{vXF+4*(t&1)}:{vXF+4*(t&1)+3}], v{vXL} offset:{t*1024}')
    for i, s in enumerate(stage):
        b = vW + 4*i
        e(f'ds_read_b64_tr_b16 v[{b}:{b+1}], v{vRD1} offset:{s*1024}')
        e(f'ds_read_b64_tr_b16 v[{b+2}:{b+3}], v{vRD1} offset:{16384+s*1024}')
    for i, s in enumerate(stage):
        b = vW + 4*i
        e(f's_waitcnt lgkmcnt({2*(len(stage)-1-i)})')
        acc = vACC + 4*(s & 1); t = s >> 1
        xf = vXF + 4*(t & 1)
        e(f'v_mfma_f32_16x16x32_bf16 v[{acc}:{acc+3}], v[{b}:{b+3}], v[{xf}:{xf+3}], v[{acc}:{acc+3}]')
stamp(4)
e(f's_mov_b32 s{sCNT}, {POLL_MAX}')
e('s_nop 6')
for r in range(4):
    e(f'v_add_f32_dpp v{vPP+r}, v{vACC+4+r}, v{vACC+r} row_ror:8 row_mask:0xf bank_mask:0xf')
for r in range(4):
    e(f'v_bfi_b32 v{vPP+r}, v{vFF}, s{sTB+r}, v{vPP+r}')
def pub1(sc):
    e(f's_mov_b64 exec, s[{sLO}:{sLO+1}]')
    e(f'buffer_store_dwordx4 v[{vPP}:{vPP+3}], v{vL16}, s[{SW}:{SW+3}], s{sP} offen{sc}')
    e('s_mov_b64 exec, -1')
pub1('')
stamp(5)
e(f's_cmp_lg_u32 s{sNOP2}, 0')
e('s_cbranch_scc1 L_reduce')
seq = issued[issued.index(('W', 15))+1:] + [('S', 0)]
if 'puback' in opts: e('s_waitcnt vmcnt(0)')
if 'nopubbar' not in opts: e('s_barrier')
for it in tail_items:
    issue(it); seq.append(it)
def tbl_load():
    e(f'buffer_load_dwordx2 v[{vTB}:{vTB+1}], v{vTR}, s[{SW}:{SW+3}], s{sTROW} offen offset:{TBASE} sc1')
def tbl_check(lbl):
    e(f'v_cmp_eq_u64 s[{sLOC}:{sLOC+1}], s[{sTAG}:{sTAG+1}], v[{vTB}:{vTB+1}]')
    if 'nolocal' in opts: e(f's_mov_b64 s[{sLOC}:{sLOC+1}], 0')
    e(f's_cmp_eq_u64 s[{sLOC}:{sLOC+1}], -1')
    e(f's_cbranch_scc1 {lbl}')
    pub1(' sc1')
    lab(lbl)
tbl_load(); seq.append(('T', 1))
e(f'buffer_load_ushort v{vXR}, v{vOUT}, s[{SX}:{SX+3}], 0 offen'); seq.append(('R', 0))
afterD = len(seq) - 1 - seq.index(('D', 7))
e(f's_waitcnt vmcnt({afterD + PW})')
def hloads():
    for i in range(4):
        e(f'buffer_load_dwordx4 v[{vG+4*i}:{vG+4*i+3}], v{vL16}, s[{SW}:{SW+3}], s{sQ} offen offset:{i*1024} sc1')
hloads()
e(f's_waitcnt vmcnt({afterD + 4})')
e('s_barrier')
stamp(6)
for s in range(4):
    for sub, va in ((0, vRDA), (1, vRDB)):
        b = vWD + 8*s + 4*sub
        e(f'ds_read_b64_tr_b16 v[{b}:{b+1}], v{va} offset:{s*8192}')
        e(f'ds_read_b64_tr_b16 v[{b+2}:{b+3}], v{va} offset:{s*8192+2048}')
e('s_waitcnt vmcnt(4)')
tbl_check('L_tc1')
e('s_branch L_pollhw')
lab('L_pollh')
e(f's_sub_u32 s{sCNT}, s{sCNT}, 1')
e('s_cbranch_scc1 L_pollh_done')
hloads()
lab('L_pollhw')
e('s_waitcnt vmcnt(0)')
for t in range(2):
    e(f'v_cmpx_eq_u64 vcc, s[{sT64}:{sT64+1}], v[{vG+8*t}:{vG+8*t+1}]')
    e(f'v_cmpx_eq_u64 vcc, s[{sT64}:{sT64+1}], v[{vG+8*t+6}:{vG+8*t+7}]')
e('s_cmp_eq_u64 exec, -1')
e('s_mov_b64 exec, -1')
e('s_cbranch_scc0 L_pollh')
lab('L_pollh_done')
e('s_waitcnt lgkmcnt(0)')
stamp(7)
for sub in range(2):
    for s in range(4):
        t, par = s >> 1, s & 1
        b = vWD + 8*s + 4*sub
        acc = vACC + 8*sub + 4*par
        c = '0' if t == 0 else f'v[{acc}:{acc+3}]'
        e(f'v_mfma_f32_16x16x32_bf16 v[{acc}:{acc+3}], v[{b}:{b+3}], v[{vG+8*t+2}:{vG+8*t+5}], {c}')
e(f's_cmp_eq_u64 s[{sLOC}:{sLOC+1}], -1')
e('s_nop 2')
for r in range(4):
    e(f'v_add_f32_dpp v{vP+r}, v{vACC+4+r}, v{vACC+r} row_ror:8 row_mask:0xf bank_mask:0x3')
for r in range(4):
    e(f'v_add_f32_dpp v{vP+r}, v{vACC+8+r}, v{vACC+12+r} row_ror:8 row_mask:0xf bank_mask:0xc')
for r in range(4):
    e(f'v_bfi_b32 v{vP+r}, v{vFF}, s{sTB+r}, v{vP+r}')
e('s_cbranch_scc0 L_far')
e(f'buffer_store_dwordx4 v[{vP}:{vP+3}], v{vPUB2}, s[{SW}:{SW+3}], 0 offen')
lab('L_fin')
stamp(8)
e(f's_cmp_lg_u32 s{sWV}, 0')
e('s_cbranch_scc1 L_fin_done')
e(f's_mov_b32 s{sCNT}, {POLL_MAX}')
def check(g):
    e(f'v_perm_b32 v{vP+4}, v{g+1}, v{g}, s{sSEL0}')
    e(f'v_perm_b32 v{vP+5}, v{g+3}, v{g+2}, s{sSEL0}')
    e(f'v_cmpx_eq_u64 vcc, s[{sEXP}:{sEXP+1}], v[{vP+4}:{vP+5}]')
def padd(a, b):
    e(f'v_pk_add_f32 v[{vG+4*a}:{vG+4*a+1}], v[{vG+4*a}:{vG+4*a+1}], v[{vG+4*b}:{vG+4*b+1}]')
    e(f'v_pk_add_f32 v[{vG+4*a+2}:{vG+4*a+3}], v[{vG+4*a+2}:{vG+4*a+3}], v[{vG+4*b+2}:{vG+4*b+3}]')
lab('L_poll2')
e(f'buffer_load_dwordx4 v[{vG+16}:{vG+19}], v{vRA}, s[{SW}:{SW+3}], 0 offen offset:{RBASE} sc1')
for i in range(4):
    e(f'buffer_load_dwordx4 v[{vG+4*i}:{vG+4*i+3}], v{vL16 if i < 3 else vY4}, s[{SW}:{SW+3}], s{sY} offen offset:{i*1024} sc1')
e(f's_sub_u32 s{sCNT}, s{sCNT}, 1')
e('s_cbranch_scc1 L_poll2_done')
e('s_waitcnt vmcnt(4)')
check(vG + 16)
for i in range(4):
    e(f's_waitcnt vmcnt({3-i})')
    check(vG + 4*i)
e('s_cmp_eq_u64 exec, -1')
e('s_mov_b64 exec, -1')
e('s_cbranch_scc0 L_poll2')
lab('L_poll2_done')
e('s_waitcnt vmcnt(0)')
stamp(9)
padd(0, 1)
e('s_mov_b32 exec_hi, 0')
padd(2, 3)
e('s_mov_b32 exec_hi, -1')
padd(0, 2)
e(f'v_and_b32 v{vRS}, 0xffff0000, v{vG+16}')
e(f'v_lshlrev_b32 v{vXR}, 16, v{vXR}')
e(f'v_permlane32_swap_b32 v{vG}, v{vG+2}')
e(f'v_permlane32_swap_b32 v{vG+1}, v{vG+3}')
e(f'v_add_f32 v{vG}, v{vG}, v{vG+2}')
e(f'v_add_f32 v{vG+1}, v{vG+1}, v{vG+3}')
e('s_nop 1')
e(f'v_permlane16_swap_b32 v{vG}, v{vG+1}')
e(f'v_add_f32 v{vG}, v{vG}, v{vG+1}')
e('s_nop 1')
e(f'v_add_f32_dpp v{vG}, v{vG}, v{vG} row_ror:8 row_mask:0xf bank_mask:0xf')
e(f'v_cvt_pk_bf16_f32 v{vG}, v{vG}, v{vG}')
e(f'v_lshlrev_b32 v{vG}, 16, v{vG}')
e(f'v_mul_f32 v{vG}, v{vG}, v{vRS}')
e(f'v_cvt_pk_bf16_f32 v{vG}, v{vG}, v{vG}')
e(f'v_lshlrev_b32 v{vG}, 16, v{vG}')
e(f'v_fma_f32 v{vG}, v{vXR}, 0, v{vG}')
e(f'v_add_f32 v{vG}, v{vG}, v{vXR}')
e(f'v_cvt_pk_bf16_f32 v{vG}, v{vG}, v{vG}')
e(f's_mov_b64 exec, s[{sLO}:{sLO+1}]')
e(f'buffer_store_short v{vG}, v{vOUT}, s[{SO}:{SO+3}], 0 offen{OUTSC}')
e(f's_cmp_lg_u32 s{sTASK}, 0')
e('s_cbranch_scc1 L_fin_done')
e('s_mov_b64 exec, 1')
e(f'v_mov_b32 v{vT1}, s{sTAG}')
e(f'buffer_store_dword v{vT1}, v{vL16}, s[{SW}:{SW+3}], 0 offen')
lab('L_fin_done')
if 'echo' in opts:
    i_, j_ = map(int, opts['echo'].split(','))
    e('s_waitcnt vmcnt(0)')
    stamp(10)
    e(f's_cmp_lg_u32 s{sWV}, 0')
    e('s_cbranch_scc1 L_end')
    e(f's_cmp_lg_u32 s2, {opts.get("ewg", 68)}')
    e('s_cbranch_scc1 L_end')
    e('s_waitcnt lgkmcnt(0)')
    e(f's_sub_u32 s96, s{68+2*i_}, s{68+2*j_}')
    e(f's_mul_i32 s96, s96, {opts.get("ek", 2)}')
    e('s_min_u32 s96, s96, 20000')
    if 'eloc' in opts:
        e(f's_cmp_eq_u64 s[{sLOC}:{sLOC+1}], -1')
        e('s_cselect_b32 s96, 500, 1500')
    lab('L_echo')
    e('s_memrealtime s[98:99]')
    e('s_waitcnt lgkmcnt(0)')
    e('s_sub_u32 s98, s98, s88')
    e('s_cmp_lt_u32 s98, s96')
    e('s_cbranch_scc1 L_echo')
if STAMPS and 'echo' not in opts:
    e('s_waitcnt vmcnt(0)')
    stamp(10)
    e('s_waitcnt lgkmcnt(0)')
    n = 13
    e('s_mov_b64 exec, 1')
    e(f's_lshl_b32 s{sTMP}, s2, 2')
    e(f's_add_u32 s{sTMP}, s{sTMP}, s{sWV}')
    e(f's_lshl_b32 s{sTMP}, s{sTMP}, 6')
    e(f's_add_u32 s{sTMP}, s{sTMP}, {STAMPBASE}')
    for i in range(n):
        e(f'v_mov_b32 v{vT1}, s{68+2*i}')
        e(f'buffer_store_dword v{vT1}, v{vL16}, s[{SW}:{SW+3}], s{sTMP} offen offset:{4*i}')
        e('s_nop 0')
lab('L_end')
e('s_endpgm')
lab('L_far')
e(f'buffer_store_dwordx4 v[{vP}:{vP+3}], v{vPUB2}, s[{SW}:{SW+3}], 0 offen sc1')
e('s_branch L_fin')

lastB = ('W', STAGES[iB][-1])
younger = upto[upto.index(lastB)+1:]
assert ('T', 0) not in younger and all(k == 'W' for k, _ in younger)
older = [('W', s) for s in range(8, STAGES[iB][-1] + 1)]
lab('L_pro3')
cur_m0[0] = ('W', 8192)
allB = older + younger
for it in allB[:H]: issue(it)
e(f's_load_dword s{sTAG}, s[{SW}:{SW+1}], 0')
addr_x()
issue(('X', 1))
for it in allB[H:]: issue(it)
e('s_branch L_pre')
lab('L_pro3b')
e(f's_waitcnt vmcnt({len(allB) - H + 1})')
e('s_branch L_compB')

lab('L_reduce')
tbl_load()
lab('L_reduce2')
e(f'buffer_load_ushort v{vXR}, v{vOUT}, s[{SX}:{SX+3}], 0 offen')
e(f's_lshl_b32 s{sTMP}, s{sSLOT}, 1')
e(f's_lshl3_add_u32 s{sQ}, s{sXCD}, s{sTMP}')
e(f's_lshl3_add_u32 s{sTMP}, s{sTMP}, 7')
e(f's_cmp_eq_u32 s{sXCD}, 7')
e(f's_cselect_b32 s{sQ}, s{sTMP}, s{sQ}')
e(f's_cselect_b32 s{sTMP2}, 8, 1')
e(f's_cselect_b32 s{sK3}, 0, s{sSLOT}')
e(f's_cmp_eq_u32 s{sSLOT}, 3')
e(f's_cselect_b32 s{sTMP2}, 0, s{sTMP2}')
e(f'v_bfe_u32 v{vT0}, v{vL}, 3, 1')
e(f'v_mul_u32_u24 v{vT0}, s{sTMP2}, v{vT0}')
e(f'v_lshl_add_u32 v{vQ}, v{vT0}, 14, v{vP1}')
e(f'v_lshl_add_u32 v{vHP}, v{vT0}, 11, v{vRA}')
e(f'v_bfe_u32 v{vT1}, v{vL}, 4, 1')
e(f'v_lshl_add_u32 v{vHP}, v{vT1}, 10, v{vHP}')
e(f'v_lshrrev_b32 v{vT1}, 5, v{vL}')
e(f'v_lshl_add_u32 v{vHP}, v{vT1}, 8, v{vHP}')
e(f's_lshl_b32 s{sTMP}, s{sQ}, 11')
e(f's_and_b32 s{sTMP2}, s{sWV}, 1')
e(f's_lshl_b32 s{sTMP2}, s{sTMP2}, 9')
e(f's_add_u32 s{sTMP}, s{sTMP}, s{sTMP2}')
e(f's_lshr_b32 s{sTMP2}, s{sWV}, 1')
e(f's_lshl_b32 s{sTMP2}, s{sTMP2}, 7')
e(f's_add_u32 s{sTMP}, s{sTMP}, s{sTMP2}')
e(f's_add_u32 s{sTMP}, s{sTMP}, {HBASE}')
e(f'v_add_u32 v{vHP}, s{sTMP}, v{vHP}')
e(f's_lshl4_add_u32 s{sQ}, s{sQ}, s{sWV}')
e(f's_lshl_b32 s{sQ}, s{sQ}, 10')
e(f's_add_u32 s{sQ}, s{sQ}, {PBASE}')
e(f's_add_u32 s{sQ2}, s{sQ}, 4096')
e(f'v_mov_b32 v{vGR}, s{sT64}'); e(f'v_mov_b32 v{vGR+1}, s{sT64+1}')
e(f'v_mov_b32 v{vGR+4}, s{sT64}'); e(f'v_mov_b32 v{vGR+5}, s{sT64+1}')
e(f's_mov_b32 s{sCNT}, {POLL_MAX}')
e(f's_cmp_eq_u32 s{sXCD}, 7')
e('s_cbranch_scc1 L_poll1')
e('s_waitcnt vmcnt(1)')
tbl_check('L_poll1')
def ld1(i, so, imm):
    e(f'buffer_load_dwordx4 v[{vG+4*i}:{vG+4*i+3}], v{vQ}, s[{SW}:{SW+3}], s{so} offen offset:{imm} sc1')
e(f's_sub_u32 s{sCNT}, s{sCNT}, 1')
e('s_cbranch_scc1 L_poll1_done')
ld1(0, sQ, 0); ld1(1, sQ2, 0); ld1(2, sQ, 128); ld1(3, sQ2, 128)
e(f's_cmp_lg_u32 s{sK3}, 1')
e('s_cbranch_scc1 L_poll1c')
e(f's_mov_b64 exec, s[{sHI}:{sHI+1}]')
e(f's_add_u32 s{sTMP}, s{sQ}, 8192')
ld1(4, sTMP, 0); ld1(6, sTMP, 128)
e(f's_add_u32 s{sTMP}, s{sQ}, 12288')
ld1(5, sTMP, 0); ld1(7, sTMP, 128)
e('s_waitcnt vmcnt(0)')
for i in range(4, 8): check(vG + 4*i)
e(f's_or_b64 exec, exec, s[{sLO}:{sLO+1}]')
lab('L_poll1c')
for i in range(4):
    e(f's_waitcnt vmcnt({3-i})')
    check(vG + 4*i)
e('s_cmp_eq_u64 exec, -1')
e('s_mov_b64 exec, -1')
e('s_cbranch_scc0 L_poll1')
lab('L_poll1_done')
stamp(11)
e(f's_cmp_lg_u32 s{sK3}, 1')
e('s_cbranch_scc1 L_act')
e(f's_mov_b64 exec, s[{sHI}:{sHI+1}]')
for i in range(4): padd(i, i + 4)
e('s_mov_b64 exec, -1')
lab('L_act')
padd(0, 1); padd(2, 3)
e(f's_mov_b32 s{sTMP}, 0xbfb8aa3b')
e(f's_mov_b32 s{sTMP2}, 0xffff0000')
R = vG; U = vG + 8; P = vP
e(f'v_cvt_pk_bf16_f32 v{P}, v{R}, v{R+1}')
e(f'v_cvt_pk_bf16_f32 v{P+1}, v{R+2}, v{R+3}')
e(f'v_lshlrev_b32 v{R}, 16, v{P}')
e(f'v_and_b32 v{R+1}, s{sTMP2}, v{P}')
e(f'v_lshlrev_b32 v{R+2}, 16, v{P+1}')
e(f'v_and_b32 v{R+3}, s{sTMP2}, v{P+1}')
for r in range(4): e(f'v_mul_f32 v{P+r}, s{sTMP}, v{R+r}')
for r in range(4): e(f'v_exp_f32 v{P+r}, v{P+r}')
e(f'v_cvt_pk_bf16_f32 v{P+6}, v{U}, v{U+1}')
e(f'v_cvt_pk_bf16_f32 v{P+7}, v{U+2}, v{U+3}')
for r in range(4): e(f'v_add_f32 v{P+r}, 1.0, v{P+r}')
for r in range(4): e(f'v_rcp_f32 v{P+r}, v{P+r}')
e(f'v_lshlrev_b32 v{U}, 16, v{P+6}')
e(f'v_and_b32 v{U+1}, s{sTMP2}, v{P+6}')
e(f'v_lshlrev_b32 v{U+2}, 16, v{P+7}')
e(f'v_and_b32 v{U+3}, s{sTMP2}, v{P+7}')
e(f'v_pk_mul_f32 v[{P}:{P+1}], v[{P}:{P+1}], v[{R}:{R+1}]')
e(f'v_pk_mul_f32 v[{P+2}:{P+3}], v[{P+2}:{P+3}], v[{R+2}:{R+3}]')
e(f'v_cvt_pk_bf16_f32 v{P+4}, v{P}, v{P+1}')
e(f'v_cvt_pk_bf16_f32 v{P+5}, v{P+2}, v{P+3}')
e(f'v_lshlrev_b32 v{P}, 16, v{P+4}')
e(f'v_and_b32 v{P+1}, s{sTMP2}, v{P+4}')
e(f'v_lshlrev_b32 v{P+2}, 16, v{P+5}')
e(f'v_and_b32 v{P+3}, s{sTMP2}, v{P+5}')
e(f'v_pk_mul_f32 v[{P}:{P+1}], v[{P}:{P+1}], v[{U}:{U+1}]')
e(f'v_pk_mul_f32 v[{P+2}:{P+3}], v[{P+2}:{P+3}], v[{U+2}:{U+3}]')
e(f'v_cvt_pk_bf16_f32 v{vGR+2}, v{P}, v{P+1}')
e(f'v_cvt_pk_bf16_f32 v{vGR+3}, v{P+2}, v{P+3}')
e('s_mov_b32 exec_lo, 0xffff'); e('s_mov_b32 exec_hi, 0xffff')
e(f'buffer_store_dwordx4 v[{vGR}:{vGR+3}], v{vHP}, s[{SW}:{SW+3}], 0 offen sc1')
e('s_not_b64 exec, exec')
e(f'buffer_store_dwordx4 v[{vGR+2}:{vGR+5}], v{vHP}, s[{SW}:{SW+3}], 0 offen sc1')
e('s_mov_b64 exec, -1')
stamp(12)
e('s_branch L_fin')

lab('L_router')
e(f's_load_dwordx2 s[{SR}:{SR+1}], s[0:1], 8')
srdc(SR, 2048)
common_consts()
e(f's_lshl1_add_u32 s{sKK}, s{sSLOT}, s{sWV}')
e(f's_lshl_b32 s{sTMP2}, s{sKK}, 11')
e('s_waitcnt lgkmcnt(0)')
e(f's_load_dword s{sTAG}, s[{SW}:{SW+1}], 0')
e(f'buffer_load_dwordx4 v[{vRX}:{vRX+3}], v{vL16}, s[{SX}:{SX+3}], s{sTMP2} offen')
e(f'buffer_load_dwordx4 v[{vRX+4}:{vRX+7}], v{vL16}, s[{SX}:{SX+3}], s{sTMP2} offen offset:1024')
e(f'buffer_load_dwordx4 v[{vRX+8}:{vRX+11}], v{vL16}, s[{SR}:{SR+3}], 0 offen')
e(f'buffer_load_dwordx4 v[{vRX+12}:{vRX+15}], v{vL16}, s[{SR}:{SR+3}], 0 offen offset:1024')
e(f'v_mov_b32 v{vRS}, 0')
e('s_waitcnt lgkmcnt(0)')
common_tag()
e(f's_cmp_gt_u32 s{sWV}, 1')
e('s_cbranch_scc1 L_reduce2')
e('s_waitcnt vmcnt(1)')
for i in range(8):
    e(f'v_dot2c_f32_bf16 v{vRS}, v{vRX+i}, v{vRX+8+i}')
e('s_nop 2')
for sh in (1, 2, 4, 8):
    e(f'v_add_f32_dpp v{vRS}, v{vRS}, v{vRS} row_ror:{sh} row_mask:0xf bank_mask:0xf')
    e('s_nop 1')
e(f'v_mov_b32 v{vT1}, v{vRS}')
e('s_nop 1')
e(f'v_permlane16_swap_b32 v{vRS}, v{vT1}')
e(f'v_add_f32 v{vRS}, v{vRS}, v{vT1}')
e(f'v_mov_b32 v{vT1}, v{vRS}')
e('s_nop 1')
e(f'v_permlane32_swap_b32 v{vRS}, v{vT1}')
e(f'v_add_f32 v{vRS}, v{vRS}, v{vT1}')
e(f'v_cvt_pk_bf16_f32 v{vRS}, v{vRS}, v{vRS}')
e(f'v_lshlrev_b32 v{vRS}, 16, v{vRS}')
e(f'v_mul_f32 v{vRS}, 0xbfb8aa3b, v{vRS}')
e(f'v_exp_f32 v{vRS}, v{vRS}')
e('s_nop 0')
e(f'v_add_f32 v{vRS}, 1.0, v{vRS}')
e(f'v_rcp_f32 v{vRS}, v{vRS}')
e('s_nop 0')
e(f'v_cvt_pk_bf16_f32 v{vRS}, v{vRS}, v{vRS}')
e(f'v_bfi_b32 v{vP}, v{vFF}, s{sTB}, v{vRS}')
for r in range(1, 4): e(f'v_mov_b32 v{vP+r}, s{sTB+r}')
e(f's_lshl_b32 s{sTMP}, s{sKK}, 4')
e('s_mov_b64 exec, 1')
e(f'buffer_store_dwordx4 v[{vP}:{vP+3}], v{vL16}, s[{SW}:{SW+3}], s{sTMP} offen offset:{RBASE} sc1')
e('s_mov_b64 exec, -1')
e('s_branch L_reduce2')
o += ['.section .rodata,"a"', '.p2align 6', f'.amdhsa_kernel {NAME}',
      f'  .amdhsa_next_free_vgpr {NV}', '  .amdhsa_next_free_sgpr 100', f'  .amdhsa_accum_offset {NV}',
      '  .amdhsa_group_segment_fixed_size 0', '  .amdhsa_kernarg_size 64', '  .amdhsa_user_sgpr_count 2',
      '  .amdhsa_user_sgpr_kernarg_segment_ptr 1', '  .amdhsa_system_sgpr_workgroup_id_x 1',
      '  .amdhsa_float_denorm_mode_32 3',
      '.end_amdhsa_kernel']
print('\n'.join(o))
```

```python
import sys
opts = dict(a.split('=') if '=' in a else (a, '1') for a in sys.argv[1:])
STAMPS = 'stamps' in opts
NT1 = '' if 'nont1' in opts else ' nt'
NT2 = '' if 'nont2' in opts else ' nt'
FSC = ' ' + opts.get('fsc', 'nt').replace('+', ' ').replace('none', '')
OUTSC = ' ' + opts.get('outsc', '').replace('+', ' ')
NAME = 'standalone__moe_arch_mod__decode_kernel'
NWG = 256
LDS_D = 65536
LDS_X = 98304
LDS_TOTAL = LDS_X + 8192
RBASE = 1024
TBASE = 2048
PBASE = 4096
YBASE = PBASE + 56 * 16384
YS = 3584
HBASE = YBASE + 256 * YS
STAMPBASE = 3 << 20
WS_SIZE = 4 << 20
OOB = 0x10000000
assert HBASE + 56 * 2048 <= (2 << 20)
POLL_MAX = 1 << 16
STAGES = eval(opts.get('stages', '[[0,1],[2,3],[4,5],[6,7],[8,9],[10,11],[12,13],[14],[15]]'))
PRO = int(opts.get('pro', 9))
NISS = eval(opts.get('niss', '[2,2,2,1,1,0,0,0,0]'))
PW = int(opts.get('pw', 1))

o = []
def e(s): o.append('    ' + s)
def lab(s): o.append(s + ':')
nstamp = [0]
def stamp(i):
    if STAMPS:
        nstamp[0] = max(nstamp[0], i + 1)
        e(f's_memrealtime s[{68+2*i}:{69+2*i}]')

hdr = open('standalone__moe_arch_mod__decode.s.ref').read().split('\n')
for l in hdr:
    if l.startswith('; @launch'):
        o.append(f'; @launch grid=({NWG},1,1) block=(256,1,1) lds={LDS_TOTAL}')
        break
    o.append(l)
o += ['.amdgcn_target "amdgcn-amd-amdhsa--gfx950"', '.text', f'.globl {NAME}', '.p2align 8',
      f'.type {NAME},@function', f'{NAME}:']

SM, SD, SX, SW, SO, SR = 4, 8, 12, 16, 20, 24
sTAG = 28
sEXP = 30
sTB = 32
sCT, sMEM, sC3, sWV, sTMP, sTMP2, sP, sCNT, sTASK, sROW0, sQ, sKK, sSEL0, sMW, sXCD, sSLOT = range(36, 52)
sLO, sHI = 52, 54
sNOP2, sMD, sMX, sPOS, sQ2, sK3 = 56, 57, 58, 59, 60, 61
sLOC = 62
sT64 = 64
sY = 66; sTROW = 67
vL, vT0, vT1, vT2, vA, vB, vX, vD, vRD1, vRDA, vL16, vTR, vPUB2, vFF, vHP, vP1 = range(1, 17)
vWV = 17; vOUT = 18; vXR = 19; vRS = 20; vXL = 21; vRA = 22; vRDB = 23
vXF = 24
vACC = 32
vW = 48
vWD = 64
vG = 96
vP = 128
vPP = 140
vGR = 144
vQ = 150; vTA = 151; vTB = 152; vY4 = 154
vRX = 64
NV = 156

def srdc(s, sz):
    e(f's_mov_b32 s{s+2}, {sz}'); e(f's_mov_b32 s{s+3}, 0x20000')
def common_tag():
    e(f's_mul_i32 s{sTAG}, s{sTAG}, 1664525')
    e(f's_add_u32 s{sTAG}, s{sTAG}, 1013904223')
    e(f'v_mov_b32 v{vTB}, s{sTAG}')
    e(f'v_mov_b32 v{vTB+1}, s{sTAG+1}')
    e(f'v_lshlrev_b32 v{vT1}, 22, v0')
    e(f's_lshl_b32 s{sTMP}, s{sTASK}, 3')
    e(f'buffer_store_dwordx2 v[{vTB}:{vTB+1}], v{vT1}, s[{SW}:{SW+3}], s{sTMP} offen offset:{TBASE} sc1')
    e(f's_and_b32 s{sEXP}, s{sTAG}, 0xffff')
    e(f's_lshr_b32 s{sEXP+1}, s{sTAG}, 16')
    e(f's_mov_b32 s{sTB}, s{sTAG}')
    e(f's_lshr_b32 s{sTB+1}, s{sTAG}, 8')
    e(f's_lshr_b32 s{sTB+2}, s{sTAG}, 16')
    e(f's_lshr_b32 s{sTB+3}, s{sTAG}, 24')
    e(f's_mov_b32 s{sT64}, s{sTAG}')
    e(f's_mul_i32 s{sT64+1}, s{sTAG}, 0x9e3779b1')
def common_consts():
    srdc(SO, 16384)
    e(f's_mov_b32 s{sLO}, 0x00ff00ff'); e(f's_mov_b32 s{sLO+1}, 0x00ff00ff')
    e(f's_not_b64 s[{sHI}:{sHI+1}], s[{sLO}:{sLO+1}]')
    e(f's_mov_b32 s{sSEL0}, 0x0c0c0400')
    e(f'v_mov_b32 v{vFF}, 0xff')
    e(f's_lshl_b32 s{sTASK}, s{sXCD}, 5')
    e(f's_add_u32 s{sTASK}, s{sTASK}, s{sSLOT}')
    e(f's_getreg_b32 s{sTAG+1}, hwreg(HW_REG_XCC_ID, 0, 4)')
    e(f's_lshl_b32 s{sTROW}, s{sXCD}, 8')
    e(f'v_and_b32 v{vTR}, 31, v{vL}')
    e(f'v_lshlrev_b32 v{vTR}, 3, v{vTR}')
    e(f's_mul_i32 s{sY}, s{sTASK}, {YS}')
    e(f's_add_u32 s{sY}, s{sY}, {YBASE}')
    e(f'v_and_b32 v{vT1}, 7, v{vL}')
    e(f'v_lshlrev_b32 v{vRA}, 4, v{vT1}')
    e(f'v_lshlrev_b32 v{vOUT}, 11, v{vT1}')
    e(f'v_lshrrev_b32 v{vT1}, 4, v{vL}')
    e(f'v_lshl_add_u32 v{vOUT}, v{vT1}, 1, v{vOUT}')
    e(f's_lshl_b32 s{sTMP}, s{sTASK}, 3')
    e(f'v_add_u32 v{vOUT}, s{sTMP}, v{vOUT}')
    e(f'v_and_b32 v{vY4}, 0x1ff, v{vL16}')
    e(f'v_and_b32 v{vP1}, 0x37f, v{vL16}')

stamp(0)
e(f's_and_b32 s{sTMP}, s2, 8')
e(f's_add_u32 s{sTMP}, s{sTMP}, 16')
e(f's_load_dwordx2 s[{SM}:{SM+1}], s[0:1], s{sTMP}')
e(f's_load_dwordx2 s[{SX}:{SX+1}], s[0:1], 0')
e(f's_load_dwordx2 s[{SW}:{SW+1}], s[0:1], 56')
e(f's_load_dwordx2 s[{SD}:{SD+1}], s[0:1], 32')
e(f's_load_dwordx2 s[{SO}:{SO+1}], s[0:1], 40')
e(f's_cmp_ge_u32 s2, {NWG}')
e('s_cbranch_scc1 L_end')
e(f'v_lshrrev_b32 v{vWV}, 6, v0')
e(f'v_and_b32 v{vL}, 63, v0')
e(f'v_readfirstlane_b32 s{sWV}, v{vWV}')
e(f's_and_b32 s{sXCD}, s2, 7')
e(f's_lshr_b32 s{sSLOT}, s2, 3')
e(f's_lshr_b32 s{sPOS}, s2, 5')
srdc(SM, 1024*3584*2); srdc(SX, 16384); srdc(SW, WS_SIZE)
e(f'v_lshlrev_b32 v{vL16}, 4, v{vL}')
e(f's_cmp_eq_u32 s{sXCD}, 7')
e('s_cbranch_scc1 L_x7')
e(f's_cmp_lt_u32 s{sPOS}, 5')
e(f's_subb_u32 s{sPOS}, s{sPOS}, 1')
e(f's_cmp_lt_u32 s{sSLOT}, 8')
e(f's_cselect_b32 s{sPOS}, 3, s{sPOS}')
e(f's_cselect_b32 s{sC3}, 1, 0')
e(f's_lshl3_add_u32 s{sCT}, s{sXCD}, s{sPOS}')
e('s_branch L_dec')
lab('L_x7')
e(f's_cmp_lt_u32 s{sSLOT}, 4')
e('s_cbranch_scc1 L_router')
e(f's_lshl3_add_u32 s{sCT}, s{sPOS}, -1')
e(f's_mov_b32 s{sC3}, 0')
lab('L_dec')
e(f's_lshl2_add_u32 s{sTMP}, s{sC3}, 3')
e(f's_and_b32 s{sMEM}, s{sSLOT}, s{sTMP}')
e(f's_lshr_b32 s{sKK}, s{sMEM}, 1')
e(f's_or_b32 s{sTMP}, s{sMEM}, 1')
e(f's_cmp_lg_u32 s{sC3}, 0')
e(f's_cselect_b32 s{sROW0}, s{sKK}, s{sTMP}')
e(f'v_lshrrev_b32 v{vT1}, 5, v{vL}')
e(f'v_bfe_u32 v{vT2}, v{vL}, 3, 2')
e(f'v_lshl_add_u32 v{vT0}, v{vT1}, 3, v{vT2}')
e(f'v_lshrrev_b32 v{vT2}, 3, v{vL}')
e(f'v_and_b32 v{vT2}, 6, v{vT2}')
e(f'v_sub_u32 v{vT2}, v{vL}, v{vT2}')
e(f'v_and_b32 v{vT2}, 7, v{vT2}')
e(f'v_lshlrev_b32 v{vT2}, 4, v{vT2}')
e(f's_and_b32 s{sTMP}, s{sWV}, 2')
e(f's_add_u32 s{sTMP}, s{sTMP}, s{sWV}')
e(f's_lshl_b32 s{sTMP2}, s{sROW0}, 6')
e(f's_add_u32 s{sTMP}, s{sTMP}, s{sTMP2}')
e(f's_mul_i32 s{sTMP}, s{sTMP}, {4*7168}')
e(f's_lshl_b32 s{sTMP2}, s{sCT}, 7')
e(f's_add_u32 s{sTMP}, s{sTMP}, s{sTMP2}')
e(f'v_mul_u32_u24 v{vB}, 7168, v{vT0}')
e(f'v_add3_u32 v{vB}, v{vB}, v{vT2}, s{sTMP}')
e(f'v_subrev_u32 v{vA}, {256*7168}, v{vB}')
e(f's_lshl_b32 s{sMW}, s{sWV}, 14')

cur_m0 = [None]
def set_m0(key, expr_reg, add):
    if cur_m0[0] == (key, add): return False
    cur_m0[0] = (key, add)
    if add: e(f's_add_u32 m0, s{expr_reg}, {add}')
    else: e(f's_mov_b32 m0, s{expr_reg}')
    return True
def issue(item):
    k, i = item
    if k == 'F':
        if i == 0: e(f'buffer_load_dword v{vTA}, v{vP1}, s[{SW}:{SW+3}], s{sP} offen{FSC}')
        else: e(f'buffer_load_dword v{vTA}, v{vPUB2}, s[{SW}:{SW+3}], 0 offen{FSC}')
        return
    if k == 'W':
        ch = set_m0('W', sMW, (i >> 2) * 4096)
        imm = (i & 3) * 1024
        so = (i & 7) * 32 * 7168 - imm
        v, srd, nt = (vA if i < 8 else vB), SM, NT1
    elif k == 'D':
        ch = set_m0('D', sMD, (i >> 2) * 4096)
        gp, e4, chh = i >> 2, (i >> 1) & 1, i & 1
        imm = (i & 3) * 1024
        so = (16*gp + 4*e4) * 2048 + chh * 128 - imm + 4096
        v, srd, nt = vD, SD, NT2
    else:
        ch = set_m0('X', sMX, i * 4096)
        imm = 0; so = 0
        v, srd, nt = (vXL if i == 0 else vX), SX, ''
    if so == 0:
        sof = '0'
        if ch: e('s_nop 0')
    else:
        e(f's_mov_b32 s{sTMP}, {so}'); sof = f's{sTMP}'
    e(f'buffer_load_dwordx4 v{v}, s[{srd}:{srd+3}], {sof} offen offset:{imm}{nt} lds')

def addr_x():
    e(f'v_and_b32 v{vT1}, 7, v{vL}')
    e(f'v_lshlrev_b32 v{vX}, 11, v{vT1}')
    e(f'v_and_b32 v{vT1}, 8, v{vL}')
    e(f'v_lshl_add_u32 v{vX}, v{vT1}, 3, v{vX}')
    e(f'v_and_b32 v{vT1}, 48, v{vL}')
    e(f's_lshl2_add_u32 s{sTMP}, s{sROW0}, s{sWV}')
    e(f's_lshl_b32 s{sTMP}, s{sTMP}, 7')
    e(f'v_add3_u32 v{vX}, v{vX}, v{vT1}, s{sTMP}')
    e(f'v_subrev_u32 v{vXL}, 512, v{vX}')
    e(f's_lshl_b32 s{sMX}, s{sWV}, 10')
    e(f's_add_u32 s{sMX}, s{sMX}, {LDS_X}')

stream = [('W', s) for s in range(16)] + [('F', 0)] + [('D', u) for u in range(8)] + [('F', 1)]
sched = []; pos = PRO
for i_, st in enumerate(STAGES):
    n = NISS[i_]
    sched.append(stream[pos:pos+n]); pos = min(pos + n, len(stream))
tail_items = stream[pos:]
assert ('F', 0) not in tail_items
H = 4
e(f's_lshl_b32 s{sTMP2}, s{sC3}, 13')
e(f's_add_u32 m0, s{sMW}, s{sTMP2}')
e(f's_cmp_lg_u32 s{sC3}, 0')
e('s_waitcnt lgkmcnt(0)')
stamp(1)
e('s_cbranch_scc1 L_pro3')
cur_m0[0] = ('W', 0)
issued = stream[:H]
for it in issued: issue(it)
e(f's_load_dword s{sTAG}, s[{SW}:{SW+1}], 0')
addr_x()
issue(('X', 0)); issue(('X', 1))
rest = stream[H:PRO]
assert all(k == 'W' for k, _ in rest)
for it in rest: issue(it)
issued = issued + [('X', 0), ('X', 1)] + rest + [('T', 0)]
lab('L_pre')
cur_m0[0] = None
stamp(2)
common_consts()
srdc(SD, 3584*1024*2 + 4096)
e(f's_sub_u32 s{SD}, s{SD}, 4096')
e(f's_subb_u32 s{SD+1}, s{SD+1}, 0')
e(f's_sub_u32 s{sK3}, s{sSLOT}, 4')
e(f's_cselect_b32 s{sNOP2}, {OOB}, 0')
e(f's_cselect_b32 s{sK3}, 0, s{sK3}')
e(f's_lshl2_add_u32 s{sTMP}, s{sK3}, s{sWV}')
e(f's_lshl_b32 s{sTMP}, s{sTMP}, 16')
e(f's_add_u32 s{sTMP}, s{sTMP}, s{sTROW}')
e(f's_add_u32 s{sTMP}, s{sTMP}, s{sNOP2}')
e(f'v_lshlrev_b32 v{vD}, 11, v{vT0}')
e(f'v_add3_u32 v{vD}, v{vD}, v{vT2}, s{sTMP}')
e(f's_lshl_b32 s{sMD}, s{sWV}, 13')
e(f's_add_u32 s{sMD}, s{sMD}, {LDS_D}')
e(f'v_bfe_u32 v{vT1}, v{vL}, 2, 3')
e(f'v_lshlrev_b32 v{vT0}, 7, v{vT1}')
e(f'v_and_b32 v{vT2}, 1, v{vL}')
e(f'v_lshl_add_u32 v{vT0}, v{vT2}, 3, v{vT0}')
e(f'v_and_b32 v{vT1}, 6, v{vT1}')
e(f'v_bfe_u32 v{vT2}, v{vL}, 1, 1')
e(f'v_add_u32 v{vT1}, v{vT1}, v{vT2}')
e(f'v_lshl_add_u32 v{vT2}, v{vWV}, 1, v{vT1}')
e(f'v_and_b32 v{vT2}, 7, v{vT2}')
e(f'v_lshl_add_u32 v{vRD1}, v{vT2}, 4, v{vT0}')
e(f'v_lshrrev_b32 v{vT2}, 5, v{vL}')
e(f'v_lshl_add_u32 v{vRD1}, v{vT2}, 15, v{vRD1}')
e(f'v_lshl_add_u32 v{vT0}, v{vT2}, 12, v{vT0}')
e(f's_lshr_b32 s{sTMP}, s{sWV}, 1')
e(f's_lshl_b32 s{sTMP}, s{sTMP}, 10')
e(f's_add_u32 s{sTMP}, s{sTMP}, {LDS_D}')
e(f'v_add_u32 v{vT0}, s{sTMP}, v{vT0}')
e(f'v_lshl_add_u32 v{vT1}, v{vWV}, 2, v{vT1}')
e(f'v_and_b32 v{vT2}, 7, v{vT1}')
e(f'v_lshl_add_u32 v{vRDA}, v{vT2}, 4, v{vT0}')
e(f'v_add_u32 v{vT1}, 2, v{vT1}')
e(f'v_and_b32 v{vT2}, 7, v{vT1}')
e(f'v_lshl_add_u32 v{vRDB}, v{vT2}, 4, v{vT0}')
e(f'v_add_u32 v{vXL}, {LDS_X}, v{vL16}')
e(f's_lshl2_add_u32 s{sP}, s{sCT}, s{sKK}')
e(f's_lshl2_add_u32 s{sP}, s{sP}, s{sWV}')
e(f's_lshl_b32 s{sP}, s{sP}, 10')
e(f's_and_b32 s{sTMP2}, s{sMEM}, 1')
e(f's_lshl_b32 s{sTMP2}, s{sTMP2}, 7')
e(f's_add_u32 s{sP}, s{sP}, s{sTMP2}')
e(f's_add_u32 s{sP}, s{sP}, {PBASE}')
e(f's_lshl_b32 s{sQ}, s{sK3}, 12')
e(f's_add_u32 s{sQ}, s{sQ}, {HBASE}')
e(f'v_bfe_u32 v{vT0}, v{vL}, 3, 1')
e(f'v_lshrrev_b32 v{vT2}, 4, v{vL}')
e(f'v_lshl_add_u32 v{vPUB2}, v{vT0}, 2, v{vT2}')
e(f'v_mul_u32_u24 v{vPUB2}, {YS}, v{vPUB2}')
e(f's_lshl2_add_u32 s{sTMP}, s{sXCD}, s{sWV}')
e(f's_mul_i32 s{sTMP}, s{sTMP}, {8*YS}')
e(f's_lshl_b32 s{sTMP2}, s{sK3}, 7')
e(f's_add_u32 s{sTMP}, s{sTMP}, s{sTMP2}')
e(f's_add_u32 s{sTMP}, s{sTMP}, s{sNOP2}')
e(f's_add_u32 s{sTMP}, s{sTMP}, {YBASE}')
e(f'v_add3_u32 v{vPUB2}, v{vPUB2}, v{vRA}, s{sTMP}')
for i in range(8): e(f'v_mov_b32 v{vACC+i}, 0')
e('s_waitcnt lgkmcnt(0)')
if 'echo' in opts: stamp(11)
common_tag()
iB = [i for i, st in enumerate(STAGES) if st[0] == 8][0]
e(f's_cmp_lg_u32 s{sC3}, 0')
e('s_cbranch_scc1 L_pro3b')
cur_m0[0] = None
for si, stage in enumerate(STAGES):
    if stage[0] == 8:
        lab('L_compB'); cur_m0[0] = None
        upto = list(issued)
    idx = max(issued.index(('W', stage[-1])), issued.index(('X', int(stage[-1] >= 8))))
    e(f's_waitcnt vmcnt({len(issued)-1-idx})')
    for it in sched[si]: issue(it); issued.append(it)
    e('s_barrier')
    if stage[0] == 8: stamp(3)
    if stage[0] == 0 and 'echo' in opts: stamp(12)
    if stage[0] == 6 and 'echo' in opts: stamp(13)
    ts = sorted(set(s >> 1 for s in stage))
    for t in ts:
        if (2*t) in stage:
            e(f'ds_read_b128 v[{vXF+4*(t&1)}:{vXF+4*(t&1)+3}], v{vXL} offset:{t*1024}')
    for i, s in enumerate(stage):
        b = vW + 4*i
        e(f'ds_read_b64_tr_b16 v[{b}:{b+1}], v{vRD1} offset:{s*1024}')
        e(f'ds_read_b64_tr_b16 v[{b+2}:{b+3}], v{vRD1} offset:{16384+s*1024}')
    for i, s in enumerate(stage):
        b = vW + 4*i
        e(f's_waitcnt lgkmcnt({2*(len(stage)-1-i)})')
        acc = vACC + 4*(s & 1); t = s >> 1
        xf = vXF + 4*(t & 1)
        e(f'v_mfma_f32_16x16x32_bf16 v[{acc}:{acc+3}], v[{b}:{b+3}], v[{xf}:{xf+3}], v[{acc}:{acc+3}]')
stamp(4)
e(f's_mov_b32 s{sCNT}, {POLL_MAX}')
e('s_nop 6')
for r in range(4):
    e(f'v_add_f32_dpp v{vPP+r}, v{vACC+4+r}, v{vACC+r} row_ror:8 row_mask:0xf bank_mask:0xf')
for r in range(4):
    e(f'v_bfi_b32 v{vPP+r}, v{vFF}, s{sTB+r}, v{vPP+r}')
def pub1(sc):
    e(f's_mov_b64 exec, s[{sLO}:{sLO+1}]')
    e(f'buffer_store_dwordx4 v[{vPP}:{vPP+3}], v{vL16}, s[{SW}:{SW+3}], s{sP} offen{sc}')
    e('s_mov_b64 exec, -1')
pub1('')
stamp(5)
e(f's_cmp_lg_u32 s{sNOP2}, 0')
e('s_cbranch_scc1 L_reduce')
seq = issued[issued.index(('W', 15))+1:] + [('S', 0)]
if 'puback' in opts: e('s_waitcnt vmcnt(0)')
if 'nopubbar' not in opts: e('s_barrier')
for it in tail_items:
    issue(it); seq.append(it)
def tbl_load():
    e(f'buffer_load_dwordx2 v[{vTB}:{vTB+1}], v{vTR}, s[{SW}:{SW+3}], s{sTROW} offen offset:{TBASE} sc1')
def tbl_check(lbl):
    e(f'v_cmp_eq_u64 s[{sLOC}:{sLOC+1}], s[{sTAG}:{sTAG+1}], v[{vTB}:{vTB+1}]')
    if 'nolocal' in opts: e(f's_mov_b64 s[{sLOC}:{sLOC+1}], 0')
    e(f's_cmp_eq_u64 s[{sLOC}:{sLOC+1}], -1')
    e(f's_cbranch_scc1 {lbl}')
    pub1(' sc1')
    lab(lbl)
tbl_load(); seq.append(('T', 1))
e(f'buffer_load_ushort v{vXR}, v{vOUT}, s[{SX}:{SX+3}], 0 offen'); seq.append(('R', 0))
afterD = len(seq) - 1 - seq.index(('D', 7))
e(f's_waitcnt vmcnt({afterD + PW})')
def hloads():
    for i in range(4):
        e(f'buffer_load_dwordx4 v[{vG+4*i}:{vG+4*i+3}], v{vL16}, s[{SW}:{SW+3}], s{sQ} offen offset:{i*1024} sc1')
hloads()
e(f's_waitcnt vmcnt({afterD + 4})')
e('s_barrier')
stamp(6)
for s in range(4):
    for sub, va in ((0, vRDA), (1, vRDB)):
        b = vWD + 8*s + 4*sub
        e(f'ds_read_b64_tr_b16 v[{b}:{b+1}], v{va} offset:{s*8192}')
        e(f'ds_read_b64_tr_b16 v[{b+2}:{b+3}], v{va} offset:{s*8192+2048}')
e('s_waitcnt vmcnt(4)')
tbl_check('L_tc1')
e('s_branch L_pollhw')
lab('L_pollh')
e(f's_sub_u32 s{sCNT}, s{sCNT}, 1')
e('s_cbranch_scc1 L_pollh_done')
hloads()
lab('L_pollhw')
e('s_waitcnt vmcnt(0)')
for t in range(2):
    e(f'v_cmpx_eq_u64 vcc, s[{sT64}:{sT64+1}], v[{vG+8*t}:{vG+8*t+1}]')
    e(f'v_cmpx_eq_u64 vcc, s[{sT64}:{sT64+1}], v[{vG+8*t+6}:{vG+8*t+7}]')
e('s_cmp_eq_u64 exec, -1')
e('s_mov_b64 exec, -1')
e('s_cbranch_scc0 L_pollh')
lab('L_pollh_done')
e('s_waitcnt lgkmcnt(0)')
stamp(7)
for sub in range(2):
    for s in range(4):
        t, par = s >> 1, s & 1
        b = vWD + 8*s + 4*sub
        acc = vACC + 8*sub + 4*par
        c = '0' if t == 0 else f'v[{acc}:{acc+3}]'
        e(f'v_mfma_f32_16x16x32_bf16 v[{acc}:{acc+3}], v[{b}:{b+3}], v[{vG+8*t+2}:{vG+8*t+5}], {c}')
e(f's_cmp_eq_u64 s[{sLOC}:{sLOC+1}], -1')
e('s_nop 2')
for r in range(4):
    e(f'v_add_f32_dpp v{vP+r}, v{vACC+4+r}, v{vACC+r} row_ror:8 row_mask:0xf bank_mask:0x3')
for r in range(4):
    e(f'v_add_f32_dpp v{vP+r}, v{vACC+8+r}, v{vACC+12+r} row_ror:8 row_mask:0xf bank_mask:0xc')
for r in range(4):
    e(f'v_bfi_b32 v{vP+r}, v{vFF}, s{sTB+r}, v{vP+r}')
e('s_cbranch_scc0 L_far')
e(f'buffer_store_dwordx4 v[{vP}:{vP+3}], v{vPUB2}, s[{SW}:{SW+3}], 0 offen')
lab('L_fin')
stamp(8)
e(f's_cmp_lg_u32 s{sWV}, 0')
e('s_cbranch_scc1 L_fin_done')
e(f's_mov_b32 s{sCNT}, {POLL_MAX}')
def check(g):
    e(f'v_perm_b32 v{vP+4}, v{g+1}, v{g}, s{sSEL0}')
    e(f'v_perm_b32 v{vP+5}, v{g+3}, v{g+2}, s{sSEL0}')
    e(f'v_cmpx_eq_u64 vcc, s[{sEXP}:{sEXP+1}], v[{vP+4}:{vP+5}]')
def padd(a, b):
    e(f'v_pk_add_f32 v[{vG+4*a}:{vG+4*a+1}], v[{vG+4*a}:{vG+4*a+1}], v[{vG+4*b}:{vG+4*b+1}]')
    e(f'v_pk_add_f32 v[{vG+4*a+2}:{vG+4*a+3}], v[{vG+4*a+2}:{vG+4*a+3}], v[{vG+4*b+2}:{vG+4*b+3}]')
lab('L_poll2')
e(f'buffer_load_dwordx4 v[{vG+16}:{vG+19}], v{vRA}, s[{SW}:{SW+3}], 0 offen offset:{RBASE} sc1')
for i in range(4):
    e(f'buffer_load_dwordx4 v[{vG+4*i}:{vG+4*i+3}], v{vL16 if i < 3 else vY4}, s[{SW}:{SW+3}], s{sY} offen offset:{i*1024} sc1')
e(f's_sub_u32 s{sCNT}, s{sCNT}, 1')
e('s_cbranch_scc1 L_poll2_done')
e('s_waitcnt vmcnt(4)')
check(vG + 16)
for i in range(4):
    e(f's_waitcnt vmcnt({3-i})')
    check(vG + 4*i)
e('s_cmp_eq_u64 exec, -1')
e('s_mov_b64 exec, -1')
e('s_cbranch_scc0 L_poll2')
lab('L_poll2_done')
e('s_waitcnt vmcnt(0)')
stamp(9)
padd(0, 1)
e('s_mov_b32 exec_hi, 0')
padd(2, 3)
e('s_mov_b32 exec_hi, -1')
padd(0, 2)
e(f'v_and_b32 v{vRS}, 0xffff0000, v{vG+16}')
e(f'v_lshlrev_b32 v{vXR}, 16, v{vXR}')
e(f'v_permlane32_swap_b32 v{vG}, v{vG+2}')
e(f'v_permlane32_swap_b32 v{vG+1}, v{vG+3}')
e(f'v_add_f32 v{vG}, v{vG}, v{vG+2}')
e(f'v_add_f32 v{vG+1}, v{vG+1}, v{vG+3}')
e('s_nop 1')
e(f'v_permlane16_swap_b32 v{vG}, v{vG+1}')
e(f'v_add_f32 v{vG}, v{vG}, v{vG+1}')
e('s_nop 1')
e(f'v_add_f32_dpp v{vG}, v{vG}, v{vG} row_ror:8 row_mask:0xf bank_mask:0xf')
e(f'v_cvt_pk_bf16_f32 v{vG}, v{vG}, v{vG}')
e(f'v_lshlrev_b32 v{vG}, 16, v{vG}')
e(f'v_mul_f32 v{vG}, v{vG}, v{vRS}')
e(f'v_cvt_pk_bf16_f32 v{vG}, v{vG}, v{vG}')
e(f'v_lshlrev_b32 v{vG}, 16, v{vG}')
e(f'v_fma_f32 v{vG}, v{vXR}, 0, v{vG}')
e(f'v_add_f32 v{vG}, v{vG}, v{vXR}')
e(f'v_cvt_pk_bf16_f32 v{vG}, v{vG}, v{vG}')
e(f's_mov_b64 exec, s[{sLO}:{sLO+1}]')
e(f'buffer_store_short v{vG}, v{vOUT}, s[{SO}:{SO+3}], 0 offen{OUTSC}')
e(f's_cmp_lg_u32 s{sTASK}, 0')
e('s_cbranch_scc1 L_fin_done')
e('s_mov_b64 exec, 1')
e(f'v_mov_b32 v{vT1}, s{sTAG}')
e(f'buffer_store_dword v{vT1}, v{vL16}, s[{SW}:{SW+3}], 0 offen')
lab('L_fin_done')
if 'echo' in opts:
    i_, j_ = map(int, opts['echo'].split(','))
    e('s_waitcnt vmcnt(0)')
    stamp(10)
    e(f's_cmp_lg_u32 s{sWV}, 0')
    e('s_cbranch_scc1 L_end')
    e(f's_cmp_lg_u32 s2, {opts.get("ewg", 68)}')
    e('s_cbranch_scc1 L_end')
    e('s_waitcnt lgkmcnt(0)')
    e(f's_sub_u32 s96, s{68+2*i_}, s{68+2*j_}')
    e(f's_mul_i32 s96, s96, {opts.get("ek", 2)}')
    e('s_min_u32 s96, s96, 20000')
    if 'eloc' in opts:
        e(f's_cmp_eq_u64 s[{sLOC}:{sLOC+1}], -1')
        e('s_cselect_b32 s96, 0, 1000')
    lab('L_echo')
    e('s_memrealtime s[98:99]')
    e('s_waitcnt lgkmcnt(0)')
    e('s_sub_u32 s98, s98, s88')
    e('s_cmp_lt_u32 s98, s96')
    e('s_cbranch_scc1 L_echo')
if STAMPS and 'echo' not in opts:
    e('s_waitcnt vmcnt(0)')
    stamp(10)
    e('s_waitcnt lgkmcnt(0)')
    n = 13
    e('s_mov_b64 exec, 1')
    e(f's_lshl_b32 s{sTMP}, s2, 2')
    e(f's_add_u32 s{sTMP}, s{sTMP}, s{sWV}')
    e(f's_lshl_b32 s{sTMP}, s{sTMP}, 6')
    e(f's_add_u32 s{sTMP}, s{sTMP}, {STAMPBASE}')
    for i in range(n):
        e(f'v_mov_b32 v{vT1}, s{68+2*i}')
        e(f'buffer_store_dword v{vT1}, v{vL16}, s[{SW}:{SW+3}], s{sTMP} offen offset:{4*i}')
        e('s_nop 0')
lab('L_end')
e('s_endpgm')
lab('L_far')
e(f'buffer_store_dwordx4 v[{vP}:{vP+3}], v{vPUB2}, s[{SW}:{SW+3}], 0 offen sc1')
e('s_branch L_fin')

lastB = ('W', STAGES[iB][-1])
younger = upto[upto.index(lastB)+1:]
assert ('T', 0) not in younger and all(k == 'W' for k, _ in younger)
older = [('W', s) for s in range(8, STAGES[iB][-1] + 1)]
lab('L_pro3')
cur_m0[0] = ('W', 8192)
allB = older + younger
for it in allB[:H]: issue(it)
e(f's_load_dword s{sTAG}, s[{SW}:{SW+1}], 0')
addr_x()
issue(('X', 1))
for it in allB[H:]: issue(it)
e('s_branch L_pre')
lab('L_pro3b')
e(f's_waitcnt vmcnt({len(allB) - H + 1})')
e('s_branch L_compB')

lab('L_reduce')
tbl_load()
lab('L_reduce2')
e(f'buffer_load_ushort v{vXR}, v{vOUT}, s[{SX}:{SX+3}], 0 offen')
e(f's_lshl_b32 s{sTMP}, s{sSLOT}, 1')
e(f's_lshl3_add_u32 s{sQ}, s{sXCD}, s{sTMP}')
e(f's_lshl3_add_u32 s{sTMP}, s{sTMP}, 7')
e(f's_cmp_eq_u32 s{sXCD}, 7')
e(f's_cselect_b32 s{sQ}, s{sTMP}, s{sQ}')
e(f's_cselect_b32 s{sTMP2}, 8, 1')
e(f's_cselect_b32 s{sK3}, 0, s{sSLOT}')
e(f's_cmp_eq_u32 s{sSLOT}, 3')
e(f's_cselect_b32 s{sTMP2}, 0, s{sTMP2}')
e(f'v_bfe_u32 v{vT0}, v{vL}, 3, 1')
e(f'v_mul_u32_u24 v{vT0}, s{sTMP2}, v{vT0}')
e(f'v_lshl_add_u32 v{vQ}, v{vT0}, 14, v{vP1}')
e(f'v_lshl_add_u32 v{vHP}, v{vT0}, 11, v{vRA}')
e(f'v_bfe_u32 v{vT1}, v{vL}, 4, 1')
e(f'v_lshl_add_u32 v{vHP}, v{vT1}, 10, v{vHP}')
e(f'v_lshrrev_b32 v{vT1}, 5, v{vL}')
e(f'v_lshl_add_u32 v{vHP}, v{vT1}, 8, v{vHP}')
e(f's_lshl_b32 s{sTMP}, s{sQ}, 11')
e(f's_and_b32 s{sTMP2}, s{sWV}, 1')
e(f's_lshl_b32 s{sTMP2}, s{sTMP2}, 9')
e(f's_add_u32 s{sTMP}, s{sTMP}, s{sTMP2}')
e(f's_lshr_b32 s{sTMP2}, s{sWV}, 1')
e(f's_lshl_b32 s{sTMP2}, s{sTMP2}, 7')
e(f's_add_u32 s{sTMP}, s{sTMP}, s{sTMP2}')
e(f's_add_u32 s{sTMP}, s{sTMP}, {HBASE}')
e(f'v_add_u32 v{vHP}, s{sTMP}, v{vHP}')
e(f's_lshl4_add_u32 s{sQ}, s{sQ}, s{sWV}')
e(f's_lshl_b32 s{sQ}, s{sQ}, 10')
e(f's_add_u32 s{sQ}, s{sQ}, {PBASE}')
e(f's_add_u32 s{sQ2}, s{sQ}, 4096')
e(f'v_mov_b32 v{vGR}, s{sT64}'); e(f'v_mov_b32 v{vGR+1}, s{sT64+1}')
e(f'v_mov_b32 v{vGR+4}, s{sT64}'); e(f'v_mov_b32 v{vGR+5}, s{sT64+1}')
e(f's_mov_b32 s{sCNT}, {POLL_MAX}')
e(f's_cmp_eq_u32 s{sXCD}, 7')
e('s_cbranch_scc1 L_poll1')
e('s_waitcnt vmcnt(1)')
tbl_check('L_poll1')
def ld1(i, so, imm):
    e(f'buffer_load_dwordx4 v[{vG+4*i}:{vG+4*i+3}], v{vQ}, s[{SW}:{SW+3}], s{so} offen offset:{imm} sc1')
e(f's_sub_u32 s{sCNT}, s{sCNT}, 1')
e('s_cbranch_scc1 L_poll1_done')
ld1(0, sQ, 0); ld1(1, sQ2, 0); ld1(2, sQ, 128); ld1(3, sQ2, 128)
e(f's_cmp_lg_u32 s{sK3}, 1')
e('s_cbranch_scc1 L_poll1c')
e(f's_mov_b64 exec, s[{sHI}:{sHI+1}]')
e(f's_add_u32 s{sTMP}, s{sQ}, 8192')
ld1(4, sTMP, 0); ld1(6, sTMP, 128)
e(f's_add_u32 s{sTMP}, s{sQ}, 12288')
ld1(5, sTMP, 0); ld1(7, sTMP, 128)
e('s_waitcnt vmcnt(0)')
for i in range(4, 8): check(vG + 4*i)
e(f's_or_b64 exec, exec, s[{sLO}:{sLO+1}]')
lab('L_poll1c')
for i in range(4):
    e(f's_waitcnt vmcnt({3-i})')
    check(vG + 4*i)
e('s_cmp_eq_u64 exec, -1')
e('s_mov_b64 exec, -1')
e('s_cbranch_scc0 L_poll1')
lab('L_poll1_done')
stamp(11)
e(f's_cmp_lg_u32 s{sK3}, 1')
e('s_cbranch_scc1 L_act')
e(f's_mov_b64 exec, s[{sHI}:{sHI+1}]')
for i in range(4): padd(i, i + 4)
e('s_mov_b64 exec, -1')
lab('L_act')
padd(0, 1); padd(2, 3)
e(f's_mov_b32 s{sTMP}, 0xbfb8aa3b')
e(f's_mov_b32 s{sTMP2}, 0xffff0000')
R = vG; U = vG + 8; P = vP
e(f'v_cvt_pk_bf16_f32 v{P}, v{R}, v{R+1}')
e(f'v_cvt_pk_bf16_f32 v{P+1}, v{R+2}, v{R+3}')
e(f'v_lshlrev_b32 v{R}, 16, v{P}')
e(f'v_and_b32 v{R+1}, s{sTMP2}, v{P}')
e(f'v_lshlrev_b32 v{R+2}, 16, v{P+1}')
e(f'v_and_b32 v{R+3}, s{sTMP2}, v{P+1}')
for r in range(4): e(f'v_mul_f32 v{P+r}, s{sTMP}, v{R+r}')
for r in range(4): e(f'v_exp_f32 v{P+r}, v{P+r}')
e(f'v_cvt_pk_bf16_f32 v{P+6}, v{U}, v{U+1}')
e(f'v_cvt_pk_bf16_f32 v{P+7}, v{U+2}, v{U+3}')
for r in range(4): e(f'v_add_f32 v{P+r}, 1.0, v{P+r}')
for r in range(4): e(f'v_rcp_f32 v{P+r}, v{P+r}')
e(f'v_lshlrev_b32 v{U}, 16, v{P+6}')
e(f'v_and_b32 v{U+1}, s{sTMP2}, v{P+6}')
e(f'v_lshlrev_b32 v{U+2}, 16, v{P+7}')
e(f'v_and_b32 v{U+3}, s{sTMP2}, v{P+7}')
e(f'v_pk_mul_f32 v[{P}:{P+1}], v[{P}:{P+1}], v[{R}:{R+1}]')
e(f'v_pk_mul_f32 v[{P+2}:{P+3}], v[{P+2}:{P+3}], v[{R+2}:{R+3}]')
e(f'v_cvt_pk_bf16_f32 v{P+4}, v{P}, v{P+1}')
e(f'v_cvt_pk_bf16_f32 v{P+5}, v{P+2}, v{P+3}')
e(f'v_lshlrev_b32 v{P}, 16, v{P+4}')
e(f'v_and_b32 v{P+1}, s{sTMP2}, v{P+4}')
e(f'v_lshlrev_b32 v{P+2}, 16, v{P+5}')
e(f'v_and_b32 v{P+3}, s{sTMP2}, v{P+5}')
e(f'v_pk_mul_f32 v[{P}:{P+1}], v[{P}:{P+1}], v[{U}:{U+1}]')
e(f'v_pk_mul_f32 v[{P+2}:{P+3}], v[{P+2}:{P+3}], v[{U+2}:{U+3}]')
e(f'v_cvt_pk_bf16_f32 v{vGR+2}, v{P}, v{P+1}')
e(f'v_cvt_pk_bf16_f32 v{vGR+3}, v{P+2}, v{P+3}')
e('s_mov_b32 exec_lo, 0xffff'); e('s_mov_b32 exec_hi, 0xffff')
e(f'buffer_store_dwordx4 v[{vGR}:{vGR+3}], v{vHP}, s[{SW}:{SW+3}], 0 offen sc1')
e('s_not_b64 exec, exec')
e(f'buffer_store_dwordx4 v[{vGR+2}:{vGR+5}], v{vHP}, s[{SW}:{SW+3}], 0 offen sc1')
e('s_mov_b64 exec, -1')
stamp(12)
e('s_branch L_fin')

lab('L_router')
e(f's_load_dwordx2 s[{SR}:{SR+1}], s[0:1], 8')
srdc(SR, 2048)
common_consts()
e(f's_lshl1_add_u32 s{sKK}, s{sSLOT}, s{sWV}')
e(f's_lshl_b32 s{sTMP2}, s{sKK}, 11')
e('s_waitcnt lgkmcnt(0)')
e(f's_load_dword s{sTAG}, s[{SW}:{SW+1}], 0')
e(f'buffer_load_dwordx4 v[{vRX}:{vRX+3}], v{vL16}, s[{SX}:{SX+3}], s{sTMP2} offen')
e(f'buffer_load_dwordx4 v[{vRX+4}:{vRX+7}], v{vL16}, s[{SX}:{SX+3}], s{sTMP2} offen offset:1024')
e(f'buffer_load_dwordx4 v[{vRX+8}:{vRX+11}], v{vL16}, s[{SR}:{SR+3}], 0 offen')
e(f'buffer_load_dwordx4 v[{vRX+12}:{vRX+15}], v{vL16}, s[{SR}:{SR+3}], 0 offen offset:1024')
e(f'v_mov_b32 v{vRS}, 0')
e('s_waitcnt lgkmcnt(0)')
common_tag()
e(f's_cmp_gt_u32 s{sWV}, 1')
e('s_cbranch_scc1 L_reduce2')
e('s_waitcnt vmcnt(1)')
for i in range(8):
    e(f'v_dot2c_f32_bf16 v{vRS}, v{vRX+i}, v{vRX+8+i}')
e('s_nop 2')
for sh in (1, 2, 4, 8):
    e(f'v_add_f32_dpp v{vRS}, v{vRS}, v{vRS} row_ror:{sh} row_mask:0xf bank_mask:0xf')
    e('s_nop 1')
e(f'v_mov_b32 v{vT1}, v{vRS}')
e('s_nop 1')
e(f'v_permlane16_swap_b32 v{vRS}, v{vT1}')
e(f'v_add_f32 v{vRS}, v{vRS}, v{vT1}')
e(f'v_mov_b32 v{vT1}, v{vRS}')
e('s_nop 1')
e(f'v_permlane32_swap_b32 v{vRS}, v{vT1}')
e(f'v_add_f32 v{vRS}, v{vRS}, v{vT1}')
e(f'v_cvt_pk_bf16_f32 v{vRS}, v{vRS}, v{vRS}')
e(f'v_lshlrev_b32 v{vRS}, 16, v{vRS}')
e(f'v_mul_f32 v{vRS}, 0xbfb8aa3b, v{vRS}')
e(f'v_exp_f32 v{vRS}, v{vRS}')
e('s_nop 0')
e(f'v_add_f32 v{vRS}, 1.0, v{vRS}')
e(f'v_rcp_f32 v{vRS}, v{vRS}')
e('s_nop 0')
e(f'v_cvt_pk_bf16_f32 v{vRS}, v{vRS}, v{vRS}')
e(f'v_bfi_b32 v{vP}, v{vFF}, s{sTB}, v{vRS}')
for r in range(1, 4): e(f'v_mov_b32 v{vP+r}, s{sTB+r}')
e(f's_lshl_b32 s{sTMP}, s{sKK}, 4')
e('s_mov_b64 exec, 1')
e(f'buffer_store_dwordx4 v[{vP}:{vP+3}], v{vL16}, s[{SW}:{SW+3}], s{sTMP} offen offset:{RBASE} sc1')
e('s_mov_b64 exec, -1')
e('s_branch L_reduce2')
o += ['.section .rodata,"a"', '.p2align 6', f'.amdhsa_kernel {NAME}',
      f'  .amdhsa_next_free_vgpr {NV}', '  .amdhsa_next_free_sgpr 100', f'  .amdhsa_accum_offset {NV}',
      '  .amdhsa_group_segment_fixed_size 0', '  .amdhsa_kernarg_size 64', '  .amdhsa_user_sgpr_count 2',
      '  .amdhsa_user_sgpr_kernarg_segment_ptr 1', '  .amdhsa_system_sgpr_workgroup_id_x 1',
      '  .amdhsa_float_denorm_mode_32 3',
      '.end_amdhsa_kernel']
print('\n'.join(o))
```

```python
import sys
opts = dict(a.split('=') if '=' in a else (a, '1') for a in sys.argv[1:])
STAMPS = 'stamps' in opts
NT1 = '' if 'nont1' in opts else ' nt'
NT2 = '' if 'nont2' in opts else ' nt'
FSC = ' ' + opts.get('fsc', 'none').replace('+', ' ').replace('none', '')
OUTSC = ' ' + opts.get('outsc', '').replace('+', ' ')
NAME = 'standalone__moe_arch_mod__decode_kernel'
NWG = 256
LDS_D = 65536
LDS_X = 98304
LDS_H = LDS_X + 8192
LDS_TOTAL = LDS_H + 2304
RBASE = 1024
TBASE = 2048
PBASE = 4096
YBASE = PBASE + 56 * 16384
YS = 3584
HBASE = YBASE + 256 * YS
STAMPBASE = 3 << 20
WS_SIZE = 4 << 20
OOB = 0x10000000
assert HBASE + 56 * 2048 <= (2 << 20)
POLL_MAX = 1 << 16
STAGES = eval(opts.get('stages', '[[0,1],[2,3],[4,5],[6,7],[8,9],[10,11],[12,13],[14],[15]]'))
PRO = int(opts.get('pro', 9))
NISS = eval(opts.get('niss', '[2,2,2,3,1,0,0,0,0]'))
PW = int(opts.get('pw', 1))
KB = int(opts.get('kb', 2))
KFALL = int(opts.get('kfall', 40))

o = []
def e(s): o.append('    ' + s)
def lab(s): o.append(s + ':')
nstamp = [0]
def stamp(i):
    if STAMPS:
        nstamp[0] = max(nstamp[0], i + 1)
        e(f's_memrealtime s[{68+2*i}:{69+2*i}]')

hdr = open('standalone__moe_arch_mod__decode.s.ref').read().split('\n')
for l in hdr:
    if l.startswith('; @launch'):
        o.append(f'; @launch grid=({NWG},1,1) block=(256,1,1) lds={LDS_TOTAL}')
        break
    o.append(l)
o += ['.amdgcn_target "amdgcn-amd-amdhsa--gfx950"', '.text', f'.globl {NAME}', '.p2align 8',
      f'.type {NAME},@function', f'{NAME}:']

SM, SD, SX, SW, SO, SR = 4, 8, 12, 16, 20, 24
sTAG = 28
sEXP = 30
sTB = 32
sCT, sMEM, sC3, sWV, sTMP, sTMP2, sP, sCNT, sTASK, sROW0, sQ, sKK, sSEL0, sMW, sXCD, sSLOT = range(36, 52)
sLO, sHI = 52, 54
sNOP2, sMD, sMX, sPOS, sQ2, sK3 = 56, 57, 58, 59, 60, 61
sLOC = 62
sT64 = 64
sY = 66; sTROW = 67; sMA = 3; sH = 27; sCB = 96
vL, vT0, vT1, vT2, vA, vB, vX, vD, vRD1, vRDA, vL16, vTR, vPUB2, vFF, vHP, vP1 = range(1, 17)
vWV = 17; vOUT = 18; vXR = 19; vRS = 20; vXL = 21; vRA = 22; vRDB = 23
vXF = 24
vACC = 32
vW = 48
vWD = 64
vG = 96
vP = 128
vPP = 140
vGR = 144
vQ = 150; vTA = 151; vTB = 152; vY4 = 154; vHW = 155; vHR = 156; vPF = 157
vH = 160
vRG = 192
vRX = 64
NV = 196

def srdc(s, sz):
    e(f's_mov_b32 s{s+2}, {sz}'); e(f's_mov_b32 s{s+3}, 0x20000')
def common_tag():
    e(f's_mul_i32 s{sTAG}, s{sTAG}, 1664525')
    e(f's_add_u32 s{sTAG}, s{sTAG}, 1013904223')
    e(f'v_mov_b32 v{vTB}, s{sTAG}')
    e(f'v_mov_b32 v{vTB+1}, s{sTAG+1}')
    e(f'v_lshlrev_b32 v{vT1}, 22, v0')
    e(f's_lshl_b32 s{sTMP}, s{sTASK}, 3')
    e(f'buffer_store_dwordx2 v[{vTB}:{vTB+1}], v{vT1}, s[{SW}:{SW+3}], s{sTMP} offen offset:{TBASE} sc1')
    e(f's_and_b32 s{sEXP}, s{sTAG}, 0xffff')
    e(f's_lshr_b32 s{sEXP+1}, s{sTAG}, 16')
    e(f's_mov_b32 s{sTB}, s{sTAG}')
    e(f's_lshr_b32 s{sTB+1}, s{sTAG}, 8')
    e(f's_lshr_b32 s{sTB+2}, s{sTAG}, 16')
    e(f's_lshr_b32 s{sTB+3}, s{sTAG}, 24')
    e(f's_mov_b32 s{sT64}, s{sTAG}')
    e(f's_mul_i32 s{sT64+1}, s{sTAG}, 0x9e3779b1')
def common_consts():
    srdc(SO, 16384)
    e(f's_mov_b32 s{sLO}, 0x00ff00ff'); e(f's_mov_b32 s{sLO+1}, 0x00ff00ff')
    e(f's_not_b64 s[{sHI}:{sHI+1}], s[{sLO}:{sLO+1}]')
    e(f's_mov_b32 s{sSEL0}, 0x0c0c0400')
    e(f'v_mov_b32 v{vFF}, 0xff')
    e(f's_lshl_b32 s{sTMP}, s{sXCD}, 2')
    e(f's_lshr_b32 s{sCB}, {opts.get("perm", "0x76243510")}, s{sTMP}')
    e(f's_and_b32 s{sCB}, s{sCB}, 7')
    e(f's_lshl_b32 s{sTASK}, s{sCB}, 5')
    e(f's_add_u32 s{sTASK}, s{sTASK}, s{sSLOT}')
    e(f's_getreg_b32 s{sTAG+1}, hwreg(HW_REG_XCC_ID, 0, 4)')
    e(f's_lshl_b32 s{sTROW}, s{sCB}, 8')
    e(f'v_and_b32 v{vTR}, 31, v{vL}')
    e(f'v_lshlrev_b32 v{vTR}, 3, v{vTR}')
    e(f's_mul_i32 s{sY}, s{sTASK}, {YS}')
    e(f's_add_u32 s{sY}, s{sY}, {YBASE}')
    e(f'v_and_b32 v{vT1}, 7, v{vL}')
    e(f'v_lshlrev_b32 v{vRA}, 4, v{vT1}')
    e(f'v_lshlrev_b32 v{vOUT}, 11, v{vT1}')
    e(f'v_lshrrev_b32 v{vT1}, 4, v{vL}')
    e(f'v_lshl_add_u32 v{vOUT}, v{vT1}, 1, v{vOUT}')
    e(f's_lshl_b32 s{sTMP}, s{sTASK}, 3')
    e(f'v_add_u32 v{vOUT}, s{sTMP}, v{vOUT}')
    e(f'v_and_b32 v{vY4}, 0x1ff, v{vL16}')
    e(f'v_and_b32 v{vP1}, 0x37f, v{vL16}')

def rsetup():
    e(f's_lshl_b32 s{sTMP}, s{sSLOT}, 2')
    e(f's_lshr_b32 s{sQ}, 0x3520, s{sTMP}')
    e(f's_and_b32 s{sQ}, s{sQ}, 15')
    e(f's_lshl3_add_u32 s{sQ}, s{sXCD}, s{sQ}')
    e(f's_lshr_b32 s{sTMP2}, 0x0121, s{sTMP}')
    e(f's_lshr_b32 s{sQ2}, 0x0888, s{sTMP}')
    e(f's_lshl2_add_u32 s{sTMP}, s{sTMP}, 7')
    e(f's_cmp_eq_u32 s{sXCD}, 7')
    e(f's_cselect_b32 s{sQ}, s{sTMP}, s{sQ}')
    e(f's_cselect_b32 s{sTMP2}, s{sQ2}, s{sTMP2}')
    e(f's_cselect_b32 s{sK3}, 0, s{sSLOT}')
    e(f's_and_b32 s{sTMP2}, s{sTMP2}, 15')
    e(f's_lshl_b32 s{sTMP}, s{sTMP2}, 1')
    e(f's_cmp_eq_u32 s{sK3}, 3')
    e(f's_cselect_b32 s{sTMP}, 1, s{sTMP}')
    e(f'v_bfe_u32 v{vT0}, v{vL}, 3, 1')
    e(f'v_mul_u32_u24 v{vT1}, s{sTMP}, v{vT0}')
    e(f'v_lshl_add_u32 v{vQ}, v{vT1}, 13, v{vP1}')
    e(f'v_mul_u32_u24 v{vT0}, s{sTMP2}, v{vT0}')
    e(f'v_lshl_add_u32 v{vHP}, v{vT0}, 11, v{vRA}')
    e(f'v_lshrrev_b32 v{vT1}, 4, v{vL}')
    e(f'v_lshl_add_u32 v{vHP}, v{vT1}, 7, v{vHP}')
    e(f's_lshl2_add_u32 s{sTMP}, s{sQ}, s{sWV}')
    e(f's_lshl_b32 s{sTMP}, s{sTMP}, 9')
    e(f's_add_u32 s{sTMP}, s{sTMP}, {HBASE}')
    e(f'v_add_u32 v{vHP}, s{sTMP}, v{vHP}')
    e(f's_lshl4_add_u32 s{sQ}, s{sQ}, s{sWV}')
    e(f's_lshl_b32 s{sQ}, s{sQ}, 10')
    e(f's_add_u32 s{sQ}, s{sQ}, {PBASE}')
    e(f's_add_u32 s{sQ2}, s{sQ}, 4096')
    e(f'v_min_u32 v{vPF}, 55, v{vL}')
    e(f's_lshl2_add_u32 s{sTMP}, s{sSLOT}, s{sWV}')
    e(f's_mul_i32 s{sTMP}, s{sTMP}, 56')
    e(f'v_add_lshl_u32 v{vPF}, v{vPF}, s{sTMP}, 7')
def rprefetch():
    for so, imm in ((sQ, 0), (sQ2, 0), (sQ, 128), (sQ2, 128)):
        e(f'buffer_load_dword v{vTA}, v{vQ}, s[{SW}:{SW+3}], s{so} offen offset:{imm}')
    if 'nopre' not in opts:
        e(f's_mov_b32 s{sTMP}, {HBASE}')
        e(f'buffer_load_dword v{vTA}, v{vPF}, s[{SW}:{SW+3}], s{sTMP} offen')
    if 'f1early' in opts: yprefetch()
def yprefetch():
    e(f's_mul_i32 s{sTMP}, s{sCB}, {32*YS}')
    e(f's_add_u32 s{sTMP}, s{sTMP}, {YBASE}')
    e(f'buffer_load_dword v{vTA}, v{vPF}, s[{SW}:{SW+3}], s{sTMP} offen')

stamp(0)
e(f's_and_b32 s{sTMP}, s2, 8')
e(f's_add_u32 s{sTMP}, s{sTMP}, 16')
e(f's_load_dwordx2 s[{SM}:{SM+1}], s[0:1], s{sTMP}')
e(f's_load_dwordx2 s[{SX}:{SX+1}], s[0:1], 0')
e(f's_load_dwordx2 s[{SW}:{SW+1}], s[0:1], 56')
e(f's_load_dwordx2 s[{SD}:{SD+1}], s[0:1], 32')
e(f's_load_dwordx2 s[{SO}:{SO+1}], s[0:1], 40')
e(f's_cmp_ge_u32 s2, {NWG}')
e('s_cbranch_scc1 L_end')
if 'nocpf' not in opts:
    e(f's_getpc_b64 s[{sT64}:{sT64+1}]')
    lab('L_pc')
    e(f'v_cmp_gt_u32 vcc, (L_codeend-L_pc)/128, v0')
    e(f's_and_saveexec_b64 s[{sLOC}:{sLOC+1}], vcc')
    e('s_cbranch_execz L_nocpf')
    e(f'v_lshlrev_b32 v{vT0}, 7, v0')
    e(f'global_load_dword v{vTA}, v{vT0}, s[{sT64}:{sT64+1}] offset:124')
    lab('L_nocpf')
    e(f's_mov_b64 exec, s[{sLOC}:{sLOC+1}]')
e(f'v_lshrrev_b32 v{vWV}, 6, v0')
e(f'v_and_b32 v{vL}, 63, v0')
e(f'v_readfirstlane_b32 s{sWV}, v{vWV}')
e(f's_and_b32 s{sXCD}, s2, 7')
e(f's_lshr_b32 s{sSLOT}, s2, 3')
e(f's_lshr_b32 s{sPOS}, s2, 5')
srdc(SM, 1024*3584*2); srdc(SX, 16384); srdc(SW, WS_SIZE)
e(f'v_lshlrev_b32 v{vL16}, 4, v{vL}')
e(f's_cmp_eq_u32 s{sXCD}, 7')
e('s_cbranch_scc1 L_x7')
e(f's_cmp_lt_u32 s{sPOS}, 5')
e(f's_subb_u32 s{sPOS}, s{sPOS}, 1')
e(f's_cmp_lt_u32 s{sSLOT}, 8')
e(f's_cselect_b32 s{sPOS}, 3, s{sPOS}')
e(f's_cselect_b32 s{sC3}, 1, 0')
e(f's_lshl3_add_u32 s{sCT}, s{sXCD}, s{sPOS}')
e('s_branch L_dec')
lab('L_x7')
e(f's_cmp_lt_u32 s{sSLOT}, 4')
e('s_cbranch_scc1 L_router')
e(f's_lshl3_add_u32 s{sCT}, s{sPOS}, -1')
e(f's_mov_b32 s{sC3}, 0')
lab('L_dec')
e(f's_lshl2_add_u32 s{sTMP}, s{sC3}, 3')
e(f's_and_b32 s{sMEM}, s{sSLOT}, s{sTMP}')
e(f's_lshr_b32 s{sKK}, s{sMEM}, 1')
e(f's_or_b32 s{sTMP}, s{sMEM}, 1')
e(f's_cmp_lg_u32 s{sC3}, 0')
e(f's_cselect_b32 s{sROW0}, s{sKK}, s{sTMP}')
e(f'v_lshrrev_b32 v{vT1}, 5, v{vL}')
e(f'v_bfe_u32 v{vT2}, v{vL}, 3, 2')
e(f'v_lshl_add_u32 v{vT0}, v{vT1}, 3, v{vT2}')
e(f'v_lshrrev_b32 v{vT2}, 3, v{vL}')
e(f'v_and_b32 v{vT2}, 6, v{vT2}')
e(f'v_sub_u32 v{vT2}, v{vL}, v{vT2}')
e(f'v_and_b32 v{vT2}, 7, v{vT2}')
e(f'v_lshlrev_b32 v{vT2}, 4, v{vT2}')
e(f's_and_b32 s{sTMP}, s{sWV}, 2')
e(f's_add_u32 s{sTMP}, s{sTMP}, s{sWV}')
e(f's_lshl_b32 s{sTMP2}, s{sROW0}, 6')
e(f's_add_u32 s{sTMP}, s{sTMP}, s{sTMP2}')
e(f's_mul_i32 s{sTMP}, s{sTMP}, {4*7168}')
e(f's_lshl_b32 s{sTMP2}, s{sCT}, 7')
e(f's_add_u32 s{sTMP}, s{sTMP}, s{sTMP2}')
e(f'v_mul_u32_u24 v{vB}, 7168, v{vT0}')
e(f'v_add3_u32 v{vB}, v{vB}, v{vT2}, s{sTMP}')
e(f's_cmp_lg_u32 s{sC3}, 0')
e(f's_cselect_b32 s{sTMP}, 0, {256*7168}')
e(f'v_subrev_u32 v{vA}, s{sTMP}, v{vB}')
e(f's_lshl_b32 s{sMW}, s{sWV}, 14')
e(f's_lshl_b32 s{sTMP2}, s{sC3}, 13')
e(f's_add_u32 s{sMA}, s{sMW}, s{sTMP2}')

cur_m0 = [None]
def set_m0(key, expr_reg, add):
    if cur_m0[0] == (key, add): return False
    cur_m0[0] = (key, add)
    if add: e(f's_add_u32 m0, s{expr_reg}, {add}')
    else: e(f's_mov_b32 m0, s{expr_reg}')
    return True
def issue(item):
    k, i = item
    if k == 'F':
        if i == 0: e(f'buffer_load_dword v{vTA}, v{vP1}, s[{SW}:{SW+3}], s{sP} offen{FSC}')
        elif i == 2: e(f'buffer_load_dword v{vTA}, v{vL16}, s[{SW}:{SW+3}], s{sH} offen{FSC}')
        else: e(f'buffer_load_dword v{vTA}, v{vPUB2}, s[{SW}:{SW+3}], 0 offen{FSC}')
        return
    if k == 'W':
        ch = set_m0('W', sMW, (i >> 2) * 4096) if i >= 8 else set_m0('A', sMA, (i >> 2) * 4096)
        imm = (i & 3) * 1024
        so = (i & 7) * 32 * 7168 - imm
        v, srd, nt = (vA if i < 8 else vB), SM, NT1
    elif k == 'D':
        ch = set_m0('D', sMD, (i >> 2) * 4096)
        gp, e4, chh = i >> 2, (i >> 1) & 1, i & 1
        imm = (i & 3) * 1024
        so = (16*gp + 4*e4) * 2048 + chh * 128 - imm + 4096
        v, srd, nt = vD, SD, NT2
    else:
        ch = set_m0('X', sMX, i * 4096)
        imm = 0; so = 0
        v, srd, nt = (vXL if i == 0 else vX), SX, ''
    if so == 0:
        sof = '0'
        if ch: e('s_nop 0')
    else:
        e(f's_mov_b32 s{sTMP}, {so}'); sof = f's{sTMP}'
    e(f'buffer_load_dwordx4 v{v}, s[{srd}:{srd+3}], {sof} offen offset:{imm}{nt} lds')

def addr_x():
    e(f'v_and_b32 v{vT1}, 7, v{vL}')
    e(f'v_lshlrev_b32 v{vX}, 11, v{vT1}')
    e(f'v_and_b32 v{vT1}, 8, v{vL}')
    e(f'v_lshl_add_u32 v{vX}, v{vT1}, 3, v{vX}')
    e(f'v_and_b32 v{vT1}, 48, v{vL}')
    e(f's_lshl2_add_u32 s{sTMP}, s{sROW0}, s{sWV}')
    e(f's_lshl_b32 s{sTMP}, s{sTMP}, 7')
    e(f'v_add3_u32 v{vX}, v{vX}, v{vT1}, s{sTMP}')
    e(f's_cmp_lg_u32 s{sC3}, 0')
    e(f's_cselect_b32 s{sTMP}, 0, 512')
    e(f'v_subrev_u32 v{vXL}, s{sTMP}, v{vX}')
    e(f's_lshl_b32 s{sMX}, s{sWV}, 10')
    e(f's_add_u32 s{sMX}, s{sMX}, {LDS_X}')

FS = [('F', 0), ('F', 2)] + ([('F', 1)] if 'f1prod' in opts else [])
FPOS = int(opts.get('fpos', 16))
NDR = max(0, PRO + sum(NISS) - 16 - len(FS))
DORD = [0, 2, 4, 6][:NDR] + [1, 3, 5, 7] + [0, 2, 4, 6][NDR:]
BEARLY = [1, 3, 5, 7][:KB]
stream = [('W', s) for s in range(FPOS)] + FS + [('W', s) for s in range(FPOS, 16)] + [('D', u) for u in DORD]
sched = []; pos = PRO
for i_, st in enumerate(STAGES):
    n = NISS[i_]
    sched.append(stream[pos:pos+n]); pos = min(pos + n, len(stream))
tail_items = stream[pos:]
H = 4
e(f's_mov_b32 m0, s{sMA}')
e('s_waitcnt lgkmcnt(0)')
stamp(1)
cur_m0[0] = ('A', 0)
issued = stream[:H]
for it in issued: issue(it)
e(f's_load_dword s{sTAG}, s[{SW}:{SW+1}], 0')
addr_x()
issue(('X', 0)); issue(('X', 1))
assert PRO >= 8
for it in stream[H:8]: issue(it)
rest = stream[8:PRO]
assert all(k == 'W' for k, _ in rest)
if rest:
    e(f's_cmp_lg_u32 s{sC3}, 0')
    e('s_cbranch_scc1 L_pre')
    for it in rest: issue(it)
issued = issued + [('X', 0), ('X', 1)] + stream[H:PRO] + [('T', 0)]
lab('L_pre')
cur_m0[0] = None
stamp(2)
common_consts()
srdc(SD, 3584*1024*2 + 4096)
e(f's_sub_u32 s{SD}, s{SD}, 4096')
e(f's_subb_u32 s{SD+1}, s{SD+1}, 0')
e(f's_sub_u32 s{sK3}, s{sSLOT}, 4')
e(f's_cselect_b32 s{sNOP2}, {OOB}, 0')
e(f's_cselect_b32 s{sK3}, 0, s{sK3}')
e(f's_lshl2_add_u32 s{sTMP}, s{sK3}, s{sWV}')
e(f's_lshl_b32 s{sTMP}, s{sTMP}, 16')
e(f's_add_u32 s{sTMP}, s{sTMP}, s{sTROW}')
e(f's_add_u32 s{sTMP}, s{sTMP}, s{sNOP2}')
e(f'v_lshlrev_b32 v{vD}, 11, v{vT0}')
e(f'v_add3_u32 v{vD}, v{vD}, v{vT2}, s{sTMP}')
e(f's_lshl_b32 s{sMD}, s{sWV}, 13')
e(f's_add_u32 s{sMD}, s{sMD}, {LDS_D}')
e(f'v_bfe_u32 v{vT1}, v{vL}, 2, 3')
e(f'v_lshlrev_b32 v{vT0}, 7, v{vT1}')
e(f'v_and_b32 v{vT2}, 1, v{vL}')
e(f'v_lshl_add_u32 v{vT0}, v{vT2}, 3, v{vT0}')
e(f'v_and_b32 v{vT1}, 6, v{vT1}')
e(f'v_bfe_u32 v{vT2}, v{vL}, 1, 1')
e(f'v_add_u32 v{vT1}, v{vT1}, v{vT2}')
e(f'v_lshl_add_u32 v{vT2}, v{vWV}, 1, v{vT1}')
e(f'v_and_b32 v{vT2}, 7, v{vT2}')
e(f'v_lshl_add_u32 v{vRD1}, v{vT2}, 4, v{vT0}')
e(f'v_lshrrev_b32 v{vT2}, 5, v{vL}')
e(f'v_lshl_add_u32 v{vRD1}, v{vT2}, 15, v{vRD1}')
e(f'v_lshl_add_u32 v{vT0}, v{vT2}, 12, v{vT0}')
e(f's_lshr_b32 s{sTMP}, s{sWV}, 1')
e(f's_lshl_b32 s{sTMP}, s{sTMP}, 10')
e(f's_add_u32 s{sTMP}, s{sTMP}, {LDS_D}')
e(f'v_add_u32 v{vT0}, s{sTMP}, v{vT0}')
e(f'v_lshl_add_u32 v{vT1}, v{vWV}, 2, v{vT1}')
e(f'v_and_b32 v{vT2}, 7, v{vT1}')
e(f'v_lshl_add_u32 v{vRDA}, v{vT2}, 4, v{vT0}')
e(f'v_add_u32 v{vT1}, 2, v{vT1}')
e(f'v_and_b32 v{vT2}, 7, v{vT1}')
e(f'v_lshl_add_u32 v{vRDB}, v{vT2}, 4, v{vT0}')
e(f'v_add_u32 v{vXL}, {LDS_X}, v{vL16}')
e(f's_lshl2_add_u32 s{sP}, s{sCT}, s{sKK}')
e(f's_lshl2_add_u32 s{sP}, s{sP}, s{sWV}')
e(f's_lshl_b32 s{sP}, s{sP}, 10')
e(f's_and_b32 s{sTMP2}, s{sMEM}, 1')
e(f's_lshl_b32 s{sTMP2}, s{sTMP2}, 7')
e(f's_add_u32 s{sP}, s{sP}, s{sTMP2}')
e(f's_add_u32 s{sP}, s{sP}, {PBASE}')
e(f's_lshl2_add_u32 s{sH}, s{sK3}, s{sWV}')
e(f's_lshl_b32 s{sH}, s{sH}, 10')
e(f's_add_u32 s{sH}, s{sH}, {HBASE}')
e(f'v_mul_u32_u24 v{vHR}, 17, v{vRA}')
e(f'v_add_u32 v{vHR}, {LDS_H}, v{vHR}')
e(f'v_lshl_add_u32 v{vHW}, v{vWV}, 6, v{vHR}')
e(f'v_and_b32 v{vT1}, 56, v{vL}')
e(f'v_add_u32 v{vHW}, v{vHW}, v{vT1}')
e(f'v_and_b32 v{vT1}, 48, v{vL}')
e(f'v_add_u32 v{vHR}, v{vHR}, v{vT1}')
for i in range(32): e(f'v_mov_b32 v{vH+i}, 0')
e(f'v_bfe_u32 v{vT0}, v{vL}, 3, 1')
e(f'v_lshrrev_b32 v{vT2}, 4, v{vL}')
e(f'v_lshl_add_u32 v{vPUB2}, v{vT0}, 2, v{vT2}')
e(f'v_mul_u32_u24 v{vPUB2}, {YS}, v{vPUB2}')
e(f's_lshl2_add_u32 s{sTMP}, s{sCB}, s{sWV}')
e(f's_mul_i32 s{sTMP}, s{sTMP}, {8*YS}')
e(f's_lshl_b32 s{sTMP2}, s{sK3}, 7')
e(f's_add_u32 s{sTMP}, s{sTMP}, s{sTMP2}')
e(f's_add_u32 s{sTMP}, s{sTMP}, s{sNOP2}')
e(f's_add_u32 s{sTMP}, s{sTMP}, {YBASE}')
e(f'v_add3_u32 v{vPUB2}, v{vPUB2}, v{vRA}, s{sTMP}')
for i in range(8): e(f'v_mov_b32 v{vACC+i}, 0')
e(f's_cmp_eq_u32 s{sNOP2}, 0')
e('s_cbranch_scc1 L_nors')
rsetup()
lab('L_nors')
e('s_waitcnt lgkmcnt(0)')
if 'echo' in opts: stamp(11)
common_tag()
iB = [i for i, st in enumerate(STAGES) if st[0] == 8][0]
if KB:
    e(f's_and_b32 s{sTMP}, s{sCB}, 3')
    e(f's_cmp_eq_u32 s{sTMP}, 1')
    e('s_cbranch_scc0 L_nob')
    cur_m0[0] = None
    for u in BEARLY: issue(('D', u))
    lab('L_nob')
e(f's_cmp_lg_u32 s{sC3}, 0')
e('s_cbranch_scc0 L_compA')
cur_m0[0] = None
pre = [x for sc_ in sched[:iB] for x in sc_]
assert ('W', 15) in pre + issued
nonw = [x for x in pre if x[0] != 'W']
for it in nonw: issue(it)
e(f's_waitcnt vmcnt({4 + len(nonw)})')
e('s_branch L_compB')
lab('L_compA')
cur_m0[0] = None
for si, stage in enumerate(STAGES):
    if stage[0] == 8:
        lab('L_compB'); cur_m0[0] = None
        upto = list(issued)
    idx = max(issued.index(('W', stage[-1])), issued.index(('X', int(stage[-1] >= 8))))
    e(f's_waitcnt vmcnt({len(issued)-1-idx})')
    for it in sched[si]: issue(it); issued.append(it)
    e('s_barrier')
    if stage[0] == 8: stamp(3)
    if stage[0] == 0 and 'echo' in opts: stamp(12)
    if stage[0] == 6 and 'echo' in opts: stamp(13)
    ts = sorted(set(s >> 1 for s in stage))
    for t in ts:
        if (2*t) in stage:
            e(f'ds_read_b128 v[{vXF+4*(t&1)}:{vXF+4*(t&1)+3}], v{vXL} offset:{t*1024}')
    for i, s in enumerate(stage):
        b = vW + 4*i
        e(f'ds_read_b64_tr_b16 v[{b}:{b+1}], v{vRD1} offset:{s*1024}')
        e(f'ds_read_b64_tr_b16 v[{b+2}:{b+3}], v{vRD1} offset:{16384+s*1024}')
    for i, s in enumerate(stage):
        b = vW + 4*i
        e(f's_waitcnt lgkmcnt({2*(len(stage)-1-i)})')
        acc = vACC + 4*(s & 1); t = s >> 1
        xf = vXF + 4*(t & 1)
        e(f'v_mfma_f32_16x16x32_bf16 v[{acc}:{acc+3}], v[{b}:{b+3}], v[{xf}:{xf+3}], v[{acc}:{acc+3}]')
stamp(4)
e(f's_mov_b32 s{sCNT}, {POLL_MAX}')
e('s_nop 6')
for r in range(4):
    e(f'v_add_f32_dpp v{vPP+r}, v{vACC+4+r}, v{vACC+r} row_ror:8 row_mask:0xf bank_mask:0xf')
for r in range(4):
    e(f'v_bfi_b32 v{vPP+r}, v{vFF}, s{sTB+r}, v{vPP+r}')
def pub1(sc):
    e(f's_mov_b64 exec, s[{sLO}:{sLO+1}]')
    e(f'buffer_store_dwordx4 v[{vPP}:{vPP+3}], v{vL16}, s[{SW}:{SW+3}], s{sP} offen{sc}')
    e('s_mov_b64 exec, -1')
pub1('')
stamp(5)
e(f's_cmp_lg_u32 s{sNOP2}, 0')
e('s_cbranch_scc1 L_reduce')
seq = issued[issued.index(('W', 15))+1:] + [('S', 0)]
if 'puback' in opts: e('s_waitcnt vmcnt(0)')
if 'nopubbar' not in opts: e('s_barrier')
def tbl_load():
    e(f'buffer_load_dwordx2 v[{vTB}:{vTB+1}], v{vTR}, s[{SW}:{SW+3}], s{sTROW} offen offset:{TBASE} sc1')
def tbl_check(lbl):
    e(f'v_cmp_eq_u64 s[{sLOC}:{sLOC+1}], s[{sTAG}:{sTAG+1}], v[{vTB}:{vTB+1}]')
    if 'nolocal' in opts: e(f's_mov_b64 s[{sLOC}:{sLOC+1}], 0')
    e(f's_cmp_eq_u64 s[{sLOC}:{sLOC+1}], -1')
    e(f's_cbranch_scc1 {lbl}')
    pub1(' sc1')
    lab(lbl)
tbl_load(); seq.append(('T', 1))
e(f'buffer_load_ushort v{vXR}, v{vOUT}, s[{SX}:{SX+3}], 0 offen'); seq.append(('R', 0))
e(f'buffer_load_dwordx4 v[{vRG}:{vRG+3}], v{vRA}, s[{SW}:{SW+3}], 0 offen offset:{RBASE} sc1'); seq.append(('R', 1))
if KB:
    assert tail_items[:KB] == [('D', u) for u in BEARLY], tail_items
    e(f's_and_b32 s{sTMP}, s{sCB}, 3')
    e(f's_cmp_eq_u32 s{sTMP}, 1')
    e('s_cbranch_scc1 L_skipb')
for n_, it in enumerate(tail_items):
    if KB and n_ == KB: lab('L_skipb'); cur_m0[0] = None
    if 'dwin' in opts and n_ >= int(opts['dwin']): e(f's_waitcnt vmcnt({int(opts["dwin"])-1})')
    issue(it); seq.append(it)
afterD = len(seq) - 1 - seq.index(('D', DORD[-1]))
e(f's_waitcnt vmcnt({afterD + PW})')
def hloads():
    e(f'buffer_load_dwordx4 v[{vG}:{vG+3}], v{vL16}, s[{SW}:{SW+3}], s{sH} offen sc1')
hloads()
e(f's_waitcnt vmcnt({afterD + 1})')
e('s_barrier')
stamp(6)
for s in range(4):
    for sub, va in ((0, vRDA), (1, vRDB)):
        b = vWD + 8*s + 4*sub
        e(f'ds_read_b64_tr_b16 v[{b}:{b+1}], v{va} offset:{s*8192}')
        e(f'ds_read_b64_tr_b16 v[{b+2}:{b+3}], v{va} offset:{s*8192+2048}')
tbl_check('L_tc1')
e('s_branch L_pollhw')
lab('L_pollh')
e(f's_sub_u32 s{sCNT}, s{sCNT}, 1')
e('s_cbranch_scc1 L_pollh_done')
hloads()
lab('L_pollhw')
e('s_waitcnt vmcnt(0)')
e(f'v_cmp_ne_u64 vcc, s[{sT64}:{sT64+1}], v[{vG+2}:{vG+3}]')
e('s_cbranch_vccnz L_pollh')
lab('L_pollh_done')
e(f'ds_write_b64 v{vHW}, v[{vG}:{vG+1}]')
stamp(7)
e(f's_mov_b64 exec, s[{sLO}:{sLO+1}]')
e('s_waitcnt lgkmcnt(0)')
e('s_barrier')
for s in range(4): e(f'ds_read_b128 v[{vH+4*s}:{vH+4*s+3}], v{vHR} offset:{64*s}')
e(f's_mov_b64 exec, s[{sHI}:{sHI+1}]')
for s in range(4): e(f'ds_read_b128 v[{vH+16+4*s}:{vH+16+4*s+3}], v{vHR} offset:{64*s}')
e('s_mov_b64 exec, -1')
for k in range(8):
    sub, s = k >> 2, k & 3
    e(f's_waitcnt lgkmcnt({7-k})')
    b = vWD + 8*s + 4*sub
    c = '0' if k == 0 else f'v[{vACC}:{vACC+3}]'
    e(f'v_mfma_f32_16x16x32_bf16 v[{vACC}:{vACC+3}], v[{b}:{b+3}], v[{vH+4*k}:{vH+4*k+3}], {c}')
e(f's_cmp_eq_u64 s[{sLOC}:{sLOC+1}], -1')
e('s_nop 6')
for r in range(4):
    e(f'v_bfi_b32 v{vP+r}, v{vFF}, s{sTB+r}, v{vACC+r}')
e('s_cbranch_scc0 L_far')
e(f'buffer_store_dwordx4 v[{vP}:{vP+3}], v{vPUB2}, s[{SW}:{SW+3}], 0 offen')
if 'cleanp' in opts:
    e(f's_cmp_eq_u32 s{sWV}, 0')
    e('s_cbranch_scc1 L_fin')
    pub1(' sc1')
lab('L_fin')
stamp(8)
e(f's_cmp_lg_u32 s{sWV}, 0')
e('s_cbranch_scc1 L_fin_done')
e(f's_mov_b32 s{sCNT}, {POLL_MAX}')
def check(g):
    e(f'v_perm_b32 v{vP+4}, v{g+1}, v{g}, s{sSEL0}')
    e(f'v_perm_b32 v{vP+5}, v{g+3}, v{g+2}, s{sSEL0}')
    e(f'v_cmpx_eq_u64 vcc, s[{sEXP}:{sEXP+1}], v[{vP+4}:{vP+5}]')
def padd(a, b):
    e(f'v_pk_add_f32 v[{vG+4*a}:{vG+4*a+1}], v[{vG+4*a}:{vG+4*a+1}], v[{vG+4*b}:{vG+4*b+1}]')
    e(f'v_pk_add_f32 v[{vG+4*a+2}:{vG+4*a+3}], v[{vG+4*a+2}:{vG+4*a+3}], v[{vG+4*b+2}:{vG+4*b+3}]')
def yloads():
    for i in range(4):
        e(f'buffer_load_dwordx4 v[{vG+4*i}:{vG+4*i+3}], v{vL16 if i < 3 else vY4}, s[{SW}:{SW+3}], s{sY} offen offset:{i*1024} sc1')
yloads()
lab('L_rchk')
e(f'v_perm_b32 v{vP+4}, v{vRG+1}, v{vRG}, s{sSEL0}')
e(f'v_perm_b32 v{vP+5}, v{vRG+3}, v{vRG+2}, s{sSEL0}')
e(f'v_cmp_ne_u64 vcc, s[{sEXP}:{sEXP+1}], v[{vP+4}:{vP+5}]')
e('s_cbranch_vccnz L_rpoll')
lab('L_rok')
e(f'v_and_b32 v{vRS}, 0xffff0000, v{vRG}')
e(f'v_lshlrev_b32 v{vXR}, 16, v{vXR}')
e(f'v_fma_f32 v{vXR}, v{vXR}, 0, v{vXR}')
e('s_branch L_poll2w')
lab('L_poll2')
e(f's_sub_u32 s{sCNT}, s{sCNT}, 1')
e('s_cbranch_scc1 L_poll2_done')
yloads()
lab('L_poll2w')
for i in range(4):
    e(f's_waitcnt vmcnt({3-i})')
    check(vG + 4*i)
    if i in (1, 2): padd(0, i)
e('s_cmp_eq_u64 exec, -1')
e('s_mov_b64 exec, -1')
e('s_cbranch_scc0 L_poll2')
lab('L_poll2_done')
stamp(9)
e('s_mov_b32 exec_hi, 0')
padd(0, 3)
e('s_mov_b32 exec_hi, -1')
e('s_nop 0')
e(f'v_permlane32_swap_b32 v{vG}, v{vG+2}')
e(f'v_permlane32_swap_b32 v{vG+1}, v{vG+3}')
e(f'v_add_f32 v{vG}, v{vG}, v{vG+2}')
e(f'v_add_f32 v{vG+1}, v{vG+1}, v{vG+3}')
e('s_nop 1')
e(f'v_permlane16_swap_b32 v{vG}, v{vG+1}')
e(f'v_add_f32 v{vG}, v{vG}, v{vG+1}')
e('s_nop 1')
e(f'v_add_f32_dpp v{vG}, v{vG}, v{vG} row_ror:8 row_mask:0xf bank_mask:0xf')
e(f'v_cvt_pk_bf16_f32 v{vG}, v{vG}, v{vG}')
e(f'v_lshlrev_b32 v{vG}, 16, v{vG}')
e(f'v_mul_f32 v{vG}, v{vG}, v{vRS}')
e(f'v_cvt_pk_bf16_f32 v{vG}, v{vG}, v{vG}')
e(f'v_lshlrev_b32 v{vG}, 16, v{vG}')
e(f'v_add_f32 v{vG}, v{vG}, v{vXR}')
e(f'v_cvt_pk_bf16_f32 v{vG}, v{vG}, v{vG}')
e(f's_mov_b64 exec, s[{sLO}:{sLO+1}]')
e(f'buffer_store_short v{vG}, v{vOUT}, s[{SO}:{SO+3}], 0 offen{OUTSC}')
e(f's_cmp_lg_u32 s{sTASK}, 0')
e('s_cbranch_scc1 L_fin_done')
e('s_mov_b64 exec, 1')
e(f'v_mov_b32 v{vT1}, s{sTAG}')
e(f'buffer_store_dword v{vT1}, v{vL16}, s[{SW}:{SW+3}], 0 offen')
lab('L_fin_done')
if 'echo' in opts:
    i_, j_ = map(int, opts['echo'].split(','))
    e('s_waitcnt vmcnt(0)')
    stamp(10)
    e(f's_cmp_lg_u32 s{sWV}, 0')
    e('s_cbranch_scc1 L_end')
    e(f's_cmp_lg_u32 s2, {opts.get("ewg", 68)}')
    e('s_cbranch_scc1 L_end')
    e('s_waitcnt lgkmcnt(0)')
    e(f's_sub_u32 s96, s{68+2*i_}, s{68+2*j_}')
    e(f's_mul_i32 s96, s96, {opts.get("ek", 2)}')
    e('s_min_u32 s96, s96, 20000')
    if 'eloc' in opts:
        e(f's_cmp_eq_u64 s[{sLOC}:{sLOC+1}], -1')
        e('s_cselect_b32 s96, 0, 1000')
    lab('L_echo')
    e('s_memrealtime s[98:99]')
    e('s_waitcnt lgkmcnt(0)')
    e('s_sub_u32 s98, s98, s88')
    e('s_cmp_lt_u32 s98, s96')
    e('s_cbranch_scc1 L_echo')
if STAMPS and 'echo' not in opts:
    e('s_waitcnt vmcnt(0)')
    stamp(10)
    e('s_waitcnt lgkmcnt(0)')
    n = 13
    e('s_mov_b64 exec, 1')
    e(f's_lshl_b32 s{sTMP}, s2, 2')
    e(f's_add_u32 s{sTMP}, s{sTMP}, s{sWV}')
    e(f's_lshl_b32 s{sTMP}, s{sTMP}, 6')
    e(f's_add_u32 s{sTMP}, s{sTMP}, {STAMPBASE}')
    for i in range(n):
        e(f'v_mov_b32 v{vT1}, s{68+2*i}')
        e(f'buffer_store_dword v{vT1}, v{vL16}, s[{SW}:{SW+3}], s{sTMP} offen offset:{4*i}')
        e('s_nop 0')
lab('L_end')
e('s_endpgm')
lab('L_far')
e(f'buffer_store_dwordx4 v[{vP}:{vP+3}], v{vPUB2}, s[{SW}:{SW+3}], 0 offen sc1')
e('s_branch L_fin')
lab('L_rpoll')
e(f's_sub_u32 s{sCNT}, s{sCNT}, 1')
e('s_cbranch_scc1 L_fin_done')
e(f'buffer_load_dwordx4 v[{vRG}:{vRG+3}], v{vRA}, s[{SW}:{SW+3}], 0 offen offset:{RBASE} sc1')
e('s_waitcnt vmcnt(0)')
e('s_branch L_rchk')

lab('L_reduce')
e(f'v_mov_b32 v{vGR+4}, s{sT64}'); e(f'v_mov_b32 v{vGR+5}, s{sT64+1}')
e(f's_mov_b32 s{sCNT}, {POLL_MAX}')
e(f's_mov_b32 s{sTMP}, 0xbfb8aa3b')
e(f's_mov_b32 s{sTMP2}, 0xffff0000')
lab('L_poll1')
e(f's_cmp_lg_u32 s{sCNT}, {POLL_MAX - KFALL}')
e('s_cbranch_scc1 L_poll1b')
pub1(' sc1')
lab('L_poll1b')
def ld1(i, so, imm):
    e(f'buffer_load_dwordx4 v[{vG+4*i}:{vG+4*i+3}], v{vQ}, s[{SW}:{SW+3}], s{so} offen offset:{imm} sc1')
e(f's_sub_u32 s{sCNT}, s{sCNT}, 1')
e('s_cbranch_scc1 L_poll1_done')
ld1(0, sQ, 0); ld1(1, sQ2, 0); ld1(2, sQ, 128); ld1(3, sQ2, 128)
for i in range(4):
    e(f's_waitcnt vmcnt({3-i})')
    check(vG + 4*i)
    if i == 1: padd(0, 1)
e('s_cmp_eq_u64 exec, -1')
e('s_mov_b64 exec, -1')
e('s_cbranch_scc0 L_poll1')
lab('L_poll1_done')
stamp(11)
padd(2, 3)
e(f's_cmp_lg_u32 s{sK3}, 3')
e('s_cbranch_scc1 L_act')
for i in (0, 1, 2, 3, 8, 9, 10, 11):
    e(f'v_add_f32_dpp v{vG+i}, v{vG+i}, v{vG+i} row_ror:8 row_mask:0xf bank_mask:0xf')
lab('L_act')
R = vG; U = vG + 8; P = vP
e(f'v_cvt_pk_bf16_f32 v{P}, v{R}, v{R+1}')
e(f'v_cvt_pk_bf16_f32 v{P+1}, v{R+2}, v{R+3}')
e(f'v_lshlrev_b32 v{R}, 16, v{P}')
e(f'v_and_b32 v{R+1}, s{sTMP2}, v{P}')
e(f'v_lshlrev_b32 v{R+2}, 16, v{P+1}')
e(f'v_and_b32 v{R+3}, s{sTMP2}, v{P+1}')
for r in range(4): e(f'v_mul_f32 v{P+r}, s{sTMP}, v{R+r}')
for r in range(4): e(f'v_exp_f32 v{P+r}, v{P+r}')
e(f'v_cvt_pk_bf16_f32 v{P+6}, v{U}, v{U+1}')
e(f'v_cvt_pk_bf16_f32 v{P+7}, v{U+2}, v{U+3}')
e(f'v_pk_add_f32 v[{P}:{P+1}], v[{P}:{P+1}], 1.0 op_sel_hi:[1,0]')
e(f'v_pk_add_f32 v[{P+2}:{P+3}], v[{P+2}:{P+3}], 1.0 op_sel_hi:[1,0]')
for r in range(4): e(f'v_rcp_f32 v{P+r}, v{P+r}')
e(f'v_lshlrev_b32 v{U}, 16, v{P+6}')
e(f'v_and_b32 v{U+1}, s{sTMP2}, v{P+6}')
e(f'v_lshlrev_b32 v{U+2}, 16, v{P+7}')
e(f'v_and_b32 v{U+3}, s{sTMP2}, v{P+7}')
e(f'v_pk_mul_f32 v[{P}:{P+1}], v[{P}:{P+1}], v[{R}:{R+1}]')
e(f'v_pk_mul_f32 v[{P+2}:{P+3}], v[{P+2}:{P+3}], v[{R+2}:{R+3}]')
e(f'v_cvt_pk_bf16_f32 v{P+4}, v{P}, v{P+1}')
e(f'v_cvt_pk_bf16_f32 v{P+5}, v{P+2}, v{P+3}')
e(f'v_lshlrev_b32 v{P}, 16, v{P+4}')
e(f'v_and_b32 v{P+1}, s{sTMP2}, v{P+4}')
e(f'v_lshlrev_b32 v{P+2}, 16, v{P+5}')
e(f'v_and_b32 v{P+3}, s{sTMP2}, v{P+5}')
e(f'v_pk_mul_f32 v[{P}:{P+1}], v[{P}:{P+1}], v[{U}:{U+1}]')
e(f'v_pk_mul_f32 v[{P+2}:{P+3}], v[{P+2}:{P+3}], v[{U+2}:{U+3}]')
e(f'v_cvt_pk_bf16_f32 v{vGR+2}, v{P}, v{P+1}')
e(f'v_cvt_pk_bf16_f32 v{vGR+3}, v{P+2}, v{P+3}')
e(f'buffer_store_dwordx4 v[{vGR+2}:{vGR+5}], v{vHP}, s[{SW}:{SW+3}], 0 offen sc1')
stamp(12)
if 'norbar' not in opts: e('s_barrier')
if 'f1prod' not in opts: yprefetch()
tbl_load()
e(f'buffer_load_ushort v{vXR}, v{vOUT}, s[{SX}:{SX+3}], 0 offen')
e(f'buffer_load_dwordx4 v[{vRG}:{vRG+3}], v{vRA}, s[{SW}:{SW+3}], 0 offen offset:{RBASE} sc1')
e('s_waitcnt vmcnt(0)')
tbl_check('L_tc2')
e('s_branch L_fin')

lab('L_router')
e(f's_load_dwordx2 s[{SR}:{SR+1}], s[0:1], 8')
srdc(SR, 2048)
common_consts()
e(f's_lshl1_add_u32 s{sKK}, s{sSLOT}, s{sWV}')
e(f's_lshl_b32 s{sTMP2}, s{sKK}, 11')
e(f's_mov_b32 s{sP}, {PBASE + 7*16384 + 8192}')
e('s_waitcnt lgkmcnt(0)')
e(f's_load_dword s{sTAG}, s[{SW}:{SW+1}], 0')
e(f'buffer_load_dwordx4 v[{vRX}:{vRX+3}], v{vL16}, s[{SX}:{SX+3}], s{sTMP2} offen')
e(f'buffer_load_dwordx4 v[{vRX+4}:{vRX+7}], v{vL16}, s[{SX}:{SX+3}], s{sTMP2} offen offset:1024')
e(f'buffer_load_dwordx4 v[{vRX+8}:{vRX+11}], v{vL16}, s[{SR}:{SR+3}], 0 offen')
e(f'buffer_load_dwordx4 v[{vRX+12}:{vRX+15}], v{vL16}, s[{SR}:{SR+3}], 0 offen offset:1024')
e(f'v_mov_b32 v{vRS}, 0')
rsetup()
e('s_waitcnt lgkmcnt(0)')
common_tag()
e(f's_cmp_gt_u32 s{sWV}, 1')
e('s_cbranch_scc1 L_reduce')
e('s_waitcnt vmcnt(1)')
for i in range(8):
    e(f'v_dot2c_f32_bf16 v{vRS}, v{vRX+i}, v{vRX+8+i}')
e('s_nop 2')
for sh in (1, 2, 4, 8):
    e(f'v_add_f32_dpp v{vRS}, v{vRS}, v{vRS} row_ror:{sh} row_mask:0xf bank_mask:0xf')
    e('s_nop 1')
e(f'v_mov_b32 v{vT1}, v{vRS}')
e('s_nop 1')
e(f'v_permlane16_swap_b32 v{vRS}, v{vT1}')
e(f'v_add_f32 v{vRS}, v{vRS}, v{vT1}')
e(f'v_mov_b32 v{vT1}, v{vRS}')
e('s_nop 1')
e(f'v_permlane32_swap_b32 v{vRS}, v{vT1}')
e(f'v_add_f32 v{vRS}, v{vRS}, v{vT1}')
e(f'v_cvt_pk_bf16_f32 v{vRS}, v{vRS}, v{vRS}')
e(f'v_lshlrev_b32 v{vRS}, 16, v{vRS}')
e(f'v_mul_f32 v{vRS}, 0xbfb8aa3b, v{vRS}')
e(f'v_exp_f32 v{vRS}, v{vRS}')
e('s_nop 0')
e(f'v_add_f32 v{vRS}, 1.0, v{vRS}')
e(f'v_rcp_f32 v{vRS}, v{vRS}')
e('s_nop 0')
e(f'v_cvt_pk_bf16_f32 v{vRS}, v{vRS}, v{vRS}')
e(f'v_bfi_b32 v{vP}, v{vFF}, s{sTB}, v{vRS}')
for r in range(1, 4): e(f'v_mov_b32 v{vP+r}, s{sTB+r}')
e(f's_lshl_b32 s{sTMP}, s{sKK}, 4')
e('s_mov_b64 exec, 1')
e(f'buffer_store_dwordx4 v[{vP}:{vP+3}], v{vL16}, s[{SW}:{SW+3}], s{sTMP} offen offset:{RBASE} sc1')
e('s_mov_b64 exec, -1')
e('s_branch L_reduce')
lab('L_codeend')
o += ['.section .rodata,"a"', '.p2align 6', f'.amdhsa_kernel {NAME}',
      f'  .amdhsa_next_free_vgpr {NV}', '  .amdhsa_next_free_sgpr 100', f'  .amdhsa_accum_offset {NV}',
      '  .amdhsa_group_segment_fixed_size 0', '  .amdhsa_kernarg_size 64', '  .amdhsa_user_sgpr_count 2',
      '  .amdhsa_user_sgpr_kernarg_segment_ptr 1', '  .amdhsa_system_sgpr_workgroup_id_x 1',
      '  .amdhsa_float_denorm_mode_32 3',
      '.end_amdhsa_kernel']
print('\n'.join(o))
```

```python
import sys
src, dst = sys.argv[1], sys.argv[2]
K = int(sys.argv[3]) if len(sys.argv) > 3 else 8
mode = sys.argv[4] if len(sys.argv) > 4 else 'span'
s = open(src).read()
s = s.replace("standalone__moe_arch_mod__decode_kernel:\n", "standalone__moe_arch_mod__decode_kernel:\n    s_memrealtime s[68:69]\n", 1)
tail = """L_fin_done:
    s_cmp_lg_u32 s39, 0
    s_cbranch_scc1 L_end
    s_mov_b64 exec, -1
    s_waitcnt vmcnt(0)
    s_memrealtime s[72:73]
    s_lshl_b32 s70, s2, 3
    s_add_u32 s70, s70, 0x300000
    s_waitcnt lgkmcnt(0)
    v_mov_b32 v2, s68
    v_mov_b32 v3, s%d
    v_lshlrev_b32 v4, 22, v0
    buffer_store_dwordx2 v[2:3], v4, s[16:19], s70 offen sc1
    s_cmp_lg_u32 s2, 68
    s_cbranch_scc1 L_end
L_e0:
    s_memrealtime s[74:75]
    s_waitcnt lgkmcnt(0)
    s_sub_u32 s74, s74, s72
    s_cmp_lt_u32 s74, 170
    s_cbranch_scc1 L_e0
    v_lshlrev_b32 v4, 5, v1
    s_mov_b32 s70, 0x300000
    buffer_load_dwordx4 v[24:27], v4, s[16:19], s70 offen sc1
    buffer_load_dwordx4 v[28:31], v4, s[16:19], s70 offen offset:16 sc1
    s_sub_u32 s71, s68, 2000
    s_waitcnt vmcnt(0)
""" % (88 if 's[88:89]' in s else 72)
for r in range(24, 32): tail += f"    v_subrev_u32 v{r}, s71, v{r}\n"
op0 = 'v_min_u32' if mode == 'span' else 'v_max_u32'
tail += f"    {op0} v24, v24, v26\n    {op0} v28, v28, v30\n    {op0} v24, v24, v28\n"
tail += "    v_max_u32 v25, v25, v27\n    v_max_u32 v29, v29, v31\n    v_max_u32 v25, v25, v29\n"
for sh in (1, 2, 4, 8):
    tail += f"    s_nop 1\n    {op0}_dpp v24, v24, v24 row_ror:{sh} row_mask:0xf bank_mask:0xf\n    v_max_u32_dpp v25, v25, v25 row_ror:{sh} row_mask:0xf bank_mask:0xf\n"
tail += "    s_nop 1\n"
for i in range(4): tail += f"    v_readlane_b32 s{80+i}, v24, {16*i}\n    v_readlane_b32 s{84+i}, v25, {16*i}\n"
sop = 's_min_u32' if mode == 'span' else 's_max_u32'
tail += "    s_nop 3\n"
for i in range(1, 4): tail += f"    {sop} s80, s80, s{80+i}\n    s_max_u32 s84, s84, s{84+i}\n"
tail += f"""    s_sub_u32 s76, s84, s80
    s_mul_i32 s76, s76, {K}
    s_min_u32 s76, s76, 20000
    s_add_u32 s76, s76, 250
L_e1:
    s_memrealtime s[74:75]
    s_waitcnt lgkmcnt(0)
    s_sub_u32 s74, s74, s72
    s_cmp_lt_u32 s74, s76
    s_cbranch_scc1 L_e1
"""
s = s.replace("L_fin_done:\n", tail)
open(dst, 'w').write(s)
```

```python
import sys
opts = dict(a.split('=') if '=' in a else (a, '1') for a in sys.argv[1:])
STAMPS = 'stamps' in opts
NT1 = '' if 'nont1' in opts else ' nt'
NT2 = '' if 'nont2' in opts else ' nt'
FSC = ' ' + opts.get('fsc', 'none').replace('+', ' ').replace('none', '')
OUTSC = ' ' + opts.get('outsc', '').replace('+', ' ')
NAME = 'standalone__moe_arch_mod__decode_kernel'
NWG = 256
LDS_X = 65536
LDS_H = LDS_X
DREG = {(0, 0): 0, (0, 1): 73728, (1, 0): 16384, (1, 1): 32768}
LDS_TOTAL = 108800
RBASE = 1024
TBASE = 2048
PBASE = 4096
YBASE = PBASE + 56 * 16384
YS = 3584
HBASE = YBASE + 256 * YS
STAMPBASE = 3 << 20
WS_SIZE = 4 << 20
OOB = 0x10000000
assert HBASE + 56 * 2048 <= (2 << 20)
POLL_MAX = 1 << 20
STAGES = eval(opts.get('stages', '[[0,1],[2,3],[4,5],[6,7],[8,9],[10,11],[12,13],[14],[15]]'))
PRO = int(opts.get('pro', 9))
NISS = eval(opts.get('niss', '[2,2,2,3,1,0,0,0,0]'))
PW = int(opts.get('pw', 2))
KB = int(opts.get('kb', 1))
KFALL = int(opts.get('kfall', 40))

o = []
def e(s): o.append('    ' + s)
def lab(s): o.append(s + ':')
nstamp = [0]
SB = lambda i: 68 + 2*i if i < 12 else 30
def stamp(i):
    if 'estamp' in opts and (i == 0 or i == int(opts['estamp'])):
        e('s_memrealtime s[88:89]')
    if STAMPS:
        nstamp[0] = max(nstamp[0], i + 1)
        e(f's_memrealtime s[{SB(i)}:{SB(i)+1}]')

hdr = open('standalone__moe_arch_mod__decode.s.ref').read().split('\n')
for l in hdr:
    if l.startswith('; @launch'):
        o.append(f'; @launch grid=({NWG},1,1) block=(256,1,1) lds={LDS_TOTAL}')
        break
    o.append(l)
o += ['.amdgcn_target "amdgcn-amd-amdhsa--gfx950"', '.text', f'.globl {NAME}', '.p2align 8',
      f'.type {NAME},@function', f'{NAME}:']

SM, SD, SX, SW, SO, SR = 4, 8, 12, 16, 20, 24
sTAG = 28
sEXP = 30
sTB = 32
sCT, sMEM, sC3, sWV, sTMP, sTMP2, sP, sCNT, sTASK, sROW0, sQ, sKK, sSEL0, sMW, sXCD, sSLOT = range(36, 52)
sLO, sHI = 52, 54
sNOP2, sMD, sMX, sPOS, sQ2, sK3 = 56, 57, 58, 59, 60, 61
sLOC = 62
sT64 = 64
sY = 66; sTROW = 67; sMA = 3; sH = 27; sCB = 96; sTI = 92
vL, vT0, vT1, vT2, vA, vB, vX, vD, vRD1, vRDA, vL16, vTR, vPUB2, vFF, vHP, vP1 = range(1, 17)
vWV = 17; vOUT = 18; vXR = 19; vRS = 20; vXL = 21; vRA = 22; vRDB = 23
vXF = 24
vACC = 32
vW = 48
vWD = 64
vG = 96
vP = 128
vPP = 140
vGR = 144
vQ = 150; vTA = 151; vTB = 152; vY4 = 154; vHW = 155; vHR = 156; vPF = 157; vRB = 158
vH = 160
vRG = 192
vRX = 64
NV = 196

def srdc(s, sz):
    e(f's_mov_b32 s{s+2}, {sz}'); e(f's_mov_b32 s{s+3}, 0x20000')
def common_tag():
    e(f's_mul_i32 s{sTAG}, s{sTAG}, 1664525')
    e(f's_add_u32 s{sTAG}, s{sTAG}, 1013904223')
    e(f'v_mov_b32 v{vTB}, s{sTAG}')
    e(f'v_mov_b32 v{vTB+1}, s{sTAG+1}')
    e(f'v_lshlrev_b32 v{vT1}, 22, v0')
    e(f's_lshl_b32 s{sTMP}, s{sTASK}, 3')
    e(f'buffer_store_dwordx2 v[{vTB}:{vTB+1}], v{vT1}, s[{SW}:{SW+3}], s{sTMP} offen offset:{TBASE} sc1')
    for r in range(4):
        e(f's_bfe_u32 s{sTB+r}, s{sTAG}, {hex(0x70000 + 7*r)}')
        e(f's_or_b32 s{sTI+r}, s{sTB+r}, 0x80')
    e(f's_mov_b32 s{sT64}, s{sTAG}')
    e(f's_mul_i32 s{sT64+1}, s{sTAG}, 0x9e3779b1')
def common_consts():
    srdc(SO, 16384)
    e(f's_mov_b32 s{sLO}, 0x00ff00ff'); e(f's_mov_b32 s{sLO+1}, 0x00ff00ff')
    e(f's_not_b64 s[{sHI}:{sHI+1}], s[{sLO}:{sLO+1}]')
    e(f'v_mov_b32 v{vFF}, 0xff')
    e(f's_lshl_b32 s{sTMP}, s{sXCD}, 2')
    e(f's_lshr_b32 s{sCB}, {opts.get("perm", "0x76243510")}, s{sTMP}')
    e(f's_and_b32 s{sCB}, s{sCB}, 7')
    e(f's_lshl_b32 s{sTASK}, s{sCB}, 5')
    e(f's_add_u32 s{sTASK}, s{sTASK}, s{sSLOT}')
    e(f's_getreg_b32 s{sTAG+1}, hwreg(HW_REG_XCC_ID, 0, 4)')
    e(f's_lshl_b32 s{sTROW}, s{sCB}, 8')
    e(f'v_and_b32 v{vTR}, 31, v{vL}')
    e(f'v_lshlrev_b32 v{vTR}, 3, v{vTR}')
    e(f's_mul_i32 s{sY}, s{sTASK}, {YS}')
    e(f's_add_u32 s{sY}, s{sY}, {YBASE}')
    e(f'v_and_b32 v{vT1}, 7, v{vL}')
    e(f'v_lshlrev_b32 v{vRA}, 4, v{vT1}')
    e(f'v_and_b32 v{vT1}, 1, v{vL}')
    e(f'v_lshl_add_u32 v{vT1}, v{vWV}, 1, v{vT1}')
    e(f'v_lshlrev_b32 v{vRB}, 4, v{vT1}')
    e(f'v_lshlrev_b32 v{vOUT}, 11, v{vT1}')
    e(f'v_lshrrev_b32 v{vT1}, 4, v{vL}')
    e(f'v_lshl_add_u32 v{vOUT}, v{vT1}, 1, v{vOUT}')
    e(f's_lshl_b32 s{sTMP}, s{sTASK}, 3')
    e(f'v_add_u32 v{vOUT}, s{sTMP}, v{vOUT}')
    e(f'v_lshrrev_b32 v{vT1}, 1, v{vL}')
    e(f'v_lshl_add_u32 v{vY4}, v{vT1}, 7, v{vRB}')
    e(f'v_and_b32 v{vP1}, 0x37f, v{vL16}')

def rsetup():
    e(f's_lshl_b32 s{sTMP}, s{sSLOT}, 2')
    e(f's_lshr_b32 s{sQ}, 0x3520, s{sTMP}')
    e(f's_and_b32 s{sQ}, s{sQ}, 15')
    e(f's_lshl3_add_u32 s{sQ}, s{sXCD}, s{sQ}')
    e(f's_lshr_b32 s{sTMP2}, 0x0121, s{sTMP}')
    e(f's_lshr_b32 s{sQ2}, 0x0888, s{sTMP}')
    e(f's_lshl2_add_u32 s{sTMP}, s{sTMP}, 7')
    e(f's_cmp_eq_u32 s{sXCD}, 7')
    e(f's_cselect_b32 s{sQ}, s{sTMP}, s{sQ}')
    e(f's_cselect_b32 s{sTMP2}, s{sQ2}, s{sTMP2}')
    e(f's_cselect_b32 s{sK3}, 0, s{sSLOT}')
    e(f's_and_b32 s{sTMP2}, s{sTMP2}, 15')
    e(f's_lshl_b32 s{sTMP}, s{sTMP2}, 1')
    e(f's_cmp_eq_u32 s{sK3}, 3')
    e(f's_cselect_b32 s{sTMP}, 1, s{sTMP}')
    e(f'v_bfe_u32 v{vT0}, v{vL}, 3, 1')
    e(f'v_mul_u32_u24 v{vT1}, s{sTMP}, v{vT0}')
    e(f'v_lshl_add_u32 v{vQ}, v{vT1}, 13, v{vP1}')
    e(f'v_mul_u32_u24 v{vT0}, s{sTMP2}, v{vT0}')
    e(f'v_lshl_add_u32 v{vHP}, v{vT0}, 11, v{vRA}')
    e(f'v_lshrrev_b32 v{vT1}, 4, v{vL}')
    e(f'v_lshl_add_u32 v{vHP}, v{vT1}, 7, v{vHP}')
    e(f's_lshl2_add_u32 s{sTMP}, s{sQ}, s{sWV}')
    e(f's_lshl_b32 s{sTMP}, s{sTMP}, 9')
    e(f's_add_u32 s{sTMP}, s{sTMP}, {HBASE}')
    e(f'v_add_u32 v{vHP}, s{sTMP}, v{vHP}')
    e(f's_lshl4_add_u32 s{sQ}, s{sQ}, s{sWV}')
    e(f's_lshl_b32 s{sQ}, s{sQ}, 10')
    e(f's_add_u32 s{sQ}, s{sQ}, {PBASE}')
    e(f's_add_u32 s{sQ2}, s{sQ}, 4096')
    e(f'v_min_u32 v{vPF}, 55, v{vL}')
    e(f's_lshl2_add_u32 s{sTMP}, s{sSLOT}, s{sWV}')
    e(f's_mul_i32 s{sTMP}, s{sTMP}, 56')
    e(f'v_add_lshl_u32 v{vPF}, v{vPF}, s{sTMP}, 7')
def rprefetch():
    for so, imm in ((sQ, 0), (sQ2, 0), (sQ, 128), (sQ2, 128)):
        e(f'buffer_load_dword v{vTA}, v{vQ}, s[{SW}:{SW+3}], s{so} offen offset:{imm}')
    if 'nopre' not in opts:
        e(f's_mov_b32 s{sTMP}, {HBASE}')
        e(f'buffer_load_dword v{vTA}, v{vPF}, s[{SW}:{SW+3}], s{sTMP} offen')
    if 'f1early' in opts: yprefetch()
def yprefetch():
    e(f's_mul_i32 s{sTMP}, s{sCB}, {32*YS}')
    e(f's_add_u32 s{sTMP}, s{sTMP}, {YBASE}')
    e(f'buffer_load_dword v{vTA}, v{vPF}, s[{SW}:{SW+3}], s{sTMP} offen')

stamp(0)
e(f's_and_b32 s{sTMP}, s2, 8')
e(f's_add_u32 s{sTMP}, s{sTMP}, 16')
e(f's_load_dwordx2 s[{SM}:{SM+1}], s[0:1], s{sTMP}')
e(f's_load_dwordx2 s[{SX}:{SX+1}], s[0:1], 0')
e(f's_load_dwordx2 s[{SW}:{SW+1}], s[0:1], 56')
e(f's_load_dwordx2 s[{SD}:{SD+1}], s[0:1], 32')
e(f's_load_dwordx2 s[{SO}:{SO+1}], s[0:1], 40')
e(f's_cmp_ge_u32 s2, {NWG}')
e('s_cbranch_scc1 L_end')
if 'nocpf' not in opts:
    e(f's_getpc_b64 s[{sT64}:{sT64+1}]')
    lab('L_pc')
    e(f'v_cmp_gt_u32 vcc, (L_codeend-L_pc)/128, v0')
    e(f's_and_saveexec_b64 s[{sLOC}:{sLOC+1}], vcc')
    e('s_cbranch_execz L_nocpf')
    e(f'v_lshlrev_b32 v{vT0}, 7, v0')
    e(f'global_load_dword v{vTA}, v{vT0}, s[{sT64}:{sT64+1}] offset:124')
    lab('L_nocpf')
    e(f's_mov_b64 exec, s[{sLOC}:{sLOC+1}]')
e(f'v_lshrrev_b32 v{vWV}, 6, v0')
e(f'v_and_b32 v{vL}, 63, v0')
e(f'v_readfirstlane_b32 s{sWV}, v{vWV}')
e(f's_and_b32 s{sXCD}, s2, 7')
e(f's_lshr_b32 s{sSLOT}, s2, 3')
e(f's_lshr_b32 s{sPOS}, s2, 5')
srdc(SM, 1024*3584*2); srdc(SX, 16384); srdc(SW, WS_SIZE)
e(f'v_lshlrev_b32 v{vL16}, 4, v{vL}')
e(f's_cmp_eq_u32 s{sXCD}, 7')
e('s_cbranch_scc1 L_x7')
e(f's_cmp_lt_u32 s{sPOS}, 5')
e(f's_subb_u32 s{sPOS}, s{sPOS}, 1')
e(f's_cmp_lt_u32 s{sSLOT}, 8')
e(f's_cselect_b32 s{sPOS}, 3, s{sPOS}')
e(f's_cselect_b32 s{sC3}, 1, 0')
e(f's_lshl3_add_u32 s{sCT}, s{sXCD}, s{sPOS}')
e('s_branch L_dec')
lab('L_x7')
e(f's_cmp_lt_u32 s{sSLOT}, 4')
e('s_cbranch_scc1 L_router')
e(f's_lshl3_add_u32 s{sCT}, s{sPOS}, -1')
e(f's_mov_b32 s{sC3}, 0')
lab('L_dec')
e(f's_lshl2_add_u32 s{sTMP}, s{sC3}, 3')
e(f's_and_b32 s{sMEM}, s{sSLOT}, s{sTMP}')
e(f's_lshr_b32 s{sKK}, s{sMEM}, 1')
e(f's_or_b32 s{sTMP}, s{sMEM}, 1')
e(f's_cmp_lg_u32 s{sC3}, 0')
e(f's_cselect_b32 s{sROW0}, s{sKK}, s{sTMP}')
e(f'v_lshrrev_b32 v{vT1}, 5, v{vL}')
e(f'v_bfe_u32 v{vT2}, v{vL}, 3, 2')
e(f'v_lshl_add_u32 v{vT0}, v{vT1}, 3, v{vT2}')
e(f'v_lshrrev_b32 v{vT2}, 3, v{vL}')
e(f'v_and_b32 v{vT2}, 6, v{vT2}')
e(f'v_sub_u32 v{vT2}, v{vL}, v{vT2}')
e(f'v_and_b32 v{vT2}, 7, v{vT2}')
e(f'v_lshlrev_b32 v{vT2}, 4, v{vT2}')
e(f's_and_b32 s{sTMP}, s{sWV}, 2')
e(f's_add_u32 s{sTMP}, s{sTMP}, s{sWV}')
e(f's_lshl_b32 s{sTMP2}, s{sROW0}, 6')
e(f's_add_u32 s{sTMP}, s{sTMP}, s{sTMP2}')
e(f's_mul_i32 s{sTMP}, s{sTMP}, {4*7168}')
e(f's_lshl_b32 s{sTMP2}, s{sCT}, 7')
e(f's_add_u32 s{sTMP}, s{sTMP}, s{sTMP2}')
e(f'v_mul_u32_u24 v{vB}, 7168, v{vT0}')
e(f'v_add3_u32 v{vB}, v{vB}, v{vT2}, s{sTMP}')
e(f's_cmp_lg_u32 s{sC3}, 0')
e(f's_cselect_b32 s{sTMP}, 0, {256*7168}')
e(f'v_subrev_u32 v{vA}, s{sTMP}, v{vB}')
e(f's_lshl_b32 s{sMW}, s{sWV}, 14')
e(f's_lshl_b32 s{sTMP2}, s{sC3}, 13')
e(f's_add_u32 s{sMA}, s{sMW}, s{sTMP2}')

cur_m0 = [None]
def set_m0(key, expr_reg, add):
    if cur_m0[0] == (key, add): return False
    cur_m0[0] = (key, add)
    if add: e(f's_add_u32 m0, s{expr_reg}, {add}')
    else: e(f's_mov_b32 m0, s{expr_reg}')
    return True
def issue(item):
    k, i = item
    if k == 'F':
        if i == 0: e(f'buffer_load_dword v{vTA}, v{vP1}, s[{SW}:{SW+3}], s{sP} offen{FSC}')
        elif i == 2: e(f'buffer_load_dword v{vTA}, v{vL16}, s[{SW}:{SW+3}], s{sH} offen{FSC}')
        else: e(f'buffer_load_dword v{vTA}, v{vPUB2}, s[{SW}:{SW+3}], 0 offen{FSC}')
        return
    if k == 'W':
        ch = set_m0('W', sMW, (i >> 2) * 4096) if i >= 8 else set_m0('A', sMA, (i >> 2) * 4096)
        imm = (i & 3) * 1024
        so = (i & 7) * 32 * 7168 - imm
        v, srd, nt = (vA if i < 8 else vB), SM, NT1
    elif k == 'D':
        gp, e4, chh = i >> 2, (i >> 1) & 1, i & 1
        ch = set_m0('D', sMD, DREG[(gp, chh)] + e4 * 4096)
        imm = 0
        so = (16*gp + 4*e4) * 2048 + chh * 128
        v, srd, nt = vD, SD, NT2
    else:
        ch = set_m0('X', sMX, i * 4096)
        imm = 0; so = 0
        v, srd, nt = (vXL if i == 0 else vX), SX, ''
    if so == 0:
        sof = '0'
        if ch: e('s_nop 0')
    else:
        e(f's_mov_b32 s{sTMP}, {so}'); sof = f's{sTMP}'
    e(f'buffer_load_dwordx4 v{v}, s[{srd}:{srd+3}], {sof} offen offset:{imm}{nt} lds')

def addr_x():
    e(f'v_and_b32 v{vT1}, 7, v{vL}')
    e(f'v_lshlrev_b32 v{vX}, 11, v{vT1}')
    e(f'v_and_b32 v{vT1}, 8, v{vL}')
    e(f'v_lshl_add_u32 v{vX}, v{vT1}, 3, v{vX}')
    e(f'v_and_b32 v{vT1}, 48, v{vL}')
    e(f's_lshl2_add_u32 s{sTMP}, s{sROW0}, s{sWV}')
    e(f's_lshl_b32 s{sTMP}, s{sTMP}, 7')
    e(f'v_add3_u32 v{vX}, v{vX}, v{vT1}, s{sTMP}')
    e(f's_cmp_lg_u32 s{sC3}, 0')
    e(f's_cselect_b32 s{sTMP}, 0, 512')
    e(f'v_subrev_u32 v{vXL}, s{sTMP}, v{vX}')
    e(f's_lshl_b32 s{sMX}, s{sWV}, 10')
    e(f's_add_u32 s{sMX}, s{sMX}, {LDS_X}')

FS = [('F', 0), ('F', 2)] + ([('F', 1)] if 'f1prod' in opts else [])
FPOS = int(opts.get('fpos', 16))
NDR = max(0, PRO + sum(NISS) - 16 - len(FS))
if 'dold' in opts:
    DORD = [0, 2, 4, 6][:NDR] + [1, 3, 5, 7] + [0, 2, 4, 6][NDR:]
    BEARLY = [1, 3, 5, 7][:KB]
    assert KB <= 2 and NDR <= 1
else:
    DORD = [1, 3, 5, 7, 0, 2, 4, 6]
    BEARLY = DORD[NDR:NDR+KB]
    assert KB + NDR <= 2
assert sum(NISS[:4]) + PRO <= 16 + len(FS)
stream = [('W', s) for s in range(FPOS)] + FS + [('W', s) for s in range(FPOS, 16)] + [('D', u) for u in DORD]
sched = []; pos = PRO
for i_, st in enumerate(STAGES):
    n = NISS[i_]
    sched.append(stream[pos:pos+n]); pos = min(pos + n, len(stream))
tail_items = stream[pos:]
H = 4
e(f's_mov_b32 m0, s{sMA}')
e('s_waitcnt lgkmcnt(0)')
stamp(1)
cur_m0[0] = ('A', 0)
issued = stream[:H]
for it in issued: issue(it)
e(f's_load_dword s{sTAG}, s[{SW}:{SW+1}], 0')
addr_x()
issue(('X', 0)); issue(('X', 1))
assert PRO >= 8
for it in stream[H:8]: issue(it)
rest = stream[8:PRO]
assert all(k == 'W' for k, _ in rest)
if rest:
    e(f's_cmp_lg_u32 s{sC3}, 0')
    e('s_cbranch_scc1 L_pre')
    for it in rest: issue(it)
issued = issued + [('X', 0), ('X', 1)] + stream[H:PRO] + [('T', 0)]
lab('L_pre')
cur_m0[0] = None
stamp(2)
common_consts()
srdc(SD, 3584*1024*2)
e(f's_sub_u32 s{sK3}, s{sSLOT}, 4')
e(f's_cselect_b32 s{sNOP2}, {OOB}, 0')
e(f's_cselect_b32 s{sK3}, 0, s{sK3}')
e(f's_lshl2_add_u32 s{sTMP}, s{sK3}, s{sWV}')
e(f's_lshl_b32 s{sTMP}, s{sTMP}, 16')
e(f's_add_u32 s{sTMP}, s{sTMP}, s{sTROW}')
e(f's_add_u32 s{sTMP}, s{sTMP}, s{sNOP2}')
e(f'v_lshlrev_b32 v{vD}, 11, v{vT0}')
e(f'v_add3_u32 v{vD}, v{vD}, v{vT2}, s{sTMP}')
e(f's_lshl_b32 s{sMD}, s{sWV}, 10')
if 'tlbw' in opts:
    e('s_mov_b64 exec, 1')
    e(f's_mov_b32 s{sTMP}, {7*32*7168}')
    e(f'buffer_load_dword v{vTA}, v{vB}, s[{SM}:{SM+3}], s{sTMP} offen')
    e(f'buffer_load_dword v{vTA}, v{vD}, s[{SD}:{SD+3}], 0 offen')
    e(f'buffer_load_ushort v{vTA}, v{vOUT}, s[{SO}:{SO+3}], 0 offen')
    e('s_mov_b64 exec, -1')
    issued = issued[:-1] + [('Z', 0), ('Z', 1), ('Z', 2), ('T', 0)]
e(f'v_bfe_u32 v{vT1}, v{vL}, 2, 3')
e(f'v_lshlrev_b32 v{vT0}, 7, v{vT1}')
e(f'v_and_b32 v{vT2}, 1, v{vL}')
e(f'v_lshl_add_u32 v{vT0}, v{vT2}, 3, v{vT0}')
e(f'v_and_b32 v{vT1}, 6, v{vT1}')
e(f'v_bfe_u32 v{vT2}, v{vL}, 1, 1')
e(f'v_add_u32 v{vT1}, v{vT1}, v{vT2}')
e(f'v_lshl_add_u32 v{vT2}, v{vWV}, 1, v{vT1}')
e(f'v_and_b32 v{vT2}, 7, v{vT2}')
e(f'v_lshl_add_u32 v{vRD1}, v{vT2}, 4, v{vT0}')
e(f'v_lshrrev_b32 v{vT2}, 5, v{vL}')
e(f'v_lshl_add_u32 v{vRD1}, v{vT2}, 15, v{vRD1}')
e(f's_cmp_gt_u32 s{sWV}, 1')
e(f's_cselect_b32 s{sTMP}, {DREG[(0,1)]}, 0')
e(f's_mov_b32 s{sTMP2}, {DREG[(1,0)] - DREG[(0,0)]}')
e(f's_cselect_b32 s{sTMP2}, {DREG[(1,1)] - DREG[(0,1)]}, s{sTMP2}')
e(f'v_mul_lo_u32 v{vT2}, v{vT2}, s{sTMP2}')
e(f'v_add3_u32 v{vT0}, v{vT0}, v{vT2}, s{sTMP}')
e(f'v_lshl_add_u32 v{vT1}, v{vWV}, 2, v{vT1}')
e(f'v_and_b32 v{vT2}, 7, v{vT1}')
e(f'v_lshl_add_u32 v{vRDA}, v{vT2}, 4, v{vT0}')
e(f'v_add_u32 v{vT1}, 2, v{vT1}')
e(f'v_and_b32 v{vT2}, 7, v{vT1}')
e(f'v_lshl_add_u32 v{vRDB}, v{vT2}, 4, v{vT0}')
e(f'v_add_u32 v{vXL}, {LDS_X}, v{vL16}')
e(f's_lshl2_add_u32 s{sP}, s{sCT}, s{sKK}')
e(f's_lshl2_add_u32 s{sP}, s{sP}, s{sWV}')
e(f's_lshl_b32 s{sP}, s{sP}, 10')
e(f's_and_b32 s{sTMP2}, s{sMEM}, 1')
e(f's_lshl_b32 s{sTMP2}, s{sTMP2}, 7')
e(f's_add_u32 s{sP}, s{sP}, s{sTMP2}')
e(f's_add_u32 s{sP}, s{sP}, {PBASE}')
e(f's_lshl2_add_u32 s{sH}, s{sK3}, s{sWV}')
e(f's_lshl_b32 s{sH}, s{sH}, 10')
e(f's_add_u32 s{sH}, s{sH}, {HBASE}')
e(f'v_mul_u32_u24 v{vHR}, 17, v{vRA}')
e(f'v_add_u32 v{vHR}, {LDS_H}, v{vHR}')
e(f'v_lshl_add_u32 v{vHW}, v{vWV}, 6, v{vHR}')
e(f'v_and_b32 v{vT1}, 56, v{vL}')
e(f'v_add_u32 v{vHW}, v{vHW}, v{vT1}')
e(f'v_and_b32 v{vT1}, 48, v{vL}')
e(f'v_add_u32 v{vHR}, v{vHR}, v{vT1}')
for i in range(32): e(f'v_mov_b32 v{vH+i}, 0')
e(f'v_bfe_u32 v{vT0}, v{vL}, 3, 1')
e(f'v_lshrrev_b32 v{vT2}, 4, v{vL}')
e(f'v_lshl_add_u32 v{vPUB2}, v{vT0}, 2, v{vT2}')
e(f'v_mul_u32_u24 v{vPUB2}, {YS}, v{vPUB2}')
e(f's_lshl2_add_u32 s{sTMP}, s{sCB}, s{sWV}')
e(f's_mul_i32 s{sTMP}, s{sTMP}, {8*YS}')
e(f's_lshl_b32 s{sTMP2}, s{sK3}, 7')
e(f's_add_u32 s{sTMP}, s{sTMP}, s{sTMP2}')
e(f's_add_u32 s{sTMP}, s{sTMP}, s{sNOP2}')
e(f's_add_u32 s{sTMP}, s{sTMP}, {YBASE}')
e(f'v_add3_u32 v{vPUB2}, v{vPUB2}, v{vRA}, s{sTMP}')
for i in range(8): e(f'v_mov_b32 v{vACC+i}, 0')
e(f's_cmp_eq_u32 s{sNOP2}, 0')
e('s_cbranch_scc1 L_nors')
rsetup()
lab('L_nors')
e('s_waitcnt lgkmcnt(0)')
if 'estamp' in opts: stamp(21)
common_tag()
iB = [i for i, st in enumerate(STAGES) if st[0] == 8][0]
if KB:
    e(f's_and_b32 s{sTMP}, s{sCB}, 3')
    e(f's_cmp_eq_u32 s{sTMP}, 1')
    e('s_cbranch_scc0 L_nob')
    cur_m0[0] = None
    for u in BEARLY: issue(('D', u))
    lab('L_nob')
e(f's_cmp_lg_u32 s{sC3}, 0')
e('s_cbranch_scc0 L_compA')
cur_m0[0] = None
pre = [x for sc_ in sched[:iB] for x in sc_]
assert ('W', 15) in pre + issued
nonw = [x for x in pre if x[0] != 'W']
for it in nonw: issue(it)
e(f's_waitcnt vmcnt({4 + len(nonw)})')
e('s_branch L_compB')
lab('L_compA')
cur_m0[0] = None
for si, stage in enumerate(STAGES):
    if stage[0] == 8:
        lab('L_compB'); cur_m0[0] = None
        upto = list(issued)
    idx = max(issued.index(('W', stage[-1])), issued.index(('X', int(stage[-1] >= 8))))
    e(f's_waitcnt vmcnt({len(issued)-1-idx})')
    for it in sched[si]: issue(it); issued.append(it)
    e('s_barrier')
    if stage[0] == 8: stamp(3)
    if stage[0] == 0 and 'estamp' in opts: stamp(20)
    if stage[0] == 6 and 'echo' in opts: stamp(13)
    ts = sorted(set(s >> 1 for s in stage))
    for t in ts:
        if (2*t) in stage:
            e(f'ds_read_b128 v[{vXF+4*(t&1)}:{vXF+4*(t&1)+3}], v{vXL} offset:{t*1024}')
    for i, s in enumerate(stage):
        b = vW + 4*i
        e(f'ds_read_b64_tr_b16 v[{b}:{b+1}], v{vRD1} offset:{s*1024}')
        e(f'ds_read_b64_tr_b16 v[{b+2}:{b+3}], v{vRD1} offset:{16384+s*1024}')
    for i, s in enumerate(stage):
        b = vW + 4*i
        e(f's_waitcnt lgkmcnt({2*(len(stage)-1-i)})')
        acc = vACC + 4*(s & 1); t = s >> 1
        xf = vXF + 4*(t & 1)
        e(f'v_mfma_f32_16x16x32_bf16 v[{acc}:{acc+3}], v[{b}:{b+3}], v[{xf}:{xf+3}], v[{acc}:{acc+3}]')
stamp(4)
e(f's_mov_b32 s{sCNT}, {POLL_MAX}')
e('s_nop 6')
for r in range(4):
    e(f'v_add_f32_dpp v{vPP+r}, v{vACC+4+r}, v{vACC+r} row_ror:8 row_mask:0xf bank_mask:0xf')
for r in range(4):
    e(f'v_bfi_b32 v{vPP+r}, v{vFF}, s{sTI+r}, v{vPP+r}')
def pub1(sc):
    e(f's_mov_b64 exec, s[{sLO}:{sLO+1}]')
    e(f'buffer_store_dwordx4 v[{vPP}:{vPP+3}], v{vL16}, s[{SW}:{SW+3}], s{sP} offen{sc}')
    e('s_mov_b64 exec, -1')
pub1('')
stamp(5)
e(f's_cmp_lg_u32 s{sNOP2}, 0')
e('s_cbranch_scc1 L_reduce')
seq = issued[issued.index(('W', 15))+1:] + [('S', 0)]
if 'puback' in opts: e('s_waitcnt vmcnt(0)')
if 'nopubbar' not in opts: e('s_barrier')
def tbl_load():
    e(f'buffer_load_dwordx2 v[{vTB}:{vTB+1}], v{vTR}, s[{SW}:{SW+3}], s{sTROW} offen offset:{TBASE} sc1')
def tbl_check(lbl):
    e(f'v_cmp_eq_u64 s[{sLOC}:{sLOC+1}], s[{sTAG}:{sTAG+1}], v[{vTB}:{vTB+1}]')
    if 'nolocal' in opts: e(f's_mov_b64 s[{sLOC}:{sLOC+1}], 0')
    e(f's_cmp_eq_u64 s[{sLOC}:{sLOC+1}], -1')
    e(f's_cbranch_scc1 {lbl}')
    pub1(' sc1')
    lab(lbl)
tbl_load(); seq.append(('T', 1))
e(f'buffer_load_ushort v{vXR}, v{vOUT}, s[{SX}:{SX+3}], 0 offen'); seq.append(('R', 0))
e(f'buffer_load_dwordx4 v[{vRG}:{vRG+3}], v{vRB}, s[{SW}:{SW+3}], 0 offen offset:{RBASE} sc1'); seq.append(('R', 1))
if KB:
    assert tail_items[:KB] == [('D', u) for u in BEARLY], tail_items
    e(f's_and_b32 s{sTMP}, s{sCB}, 3')
    e(f's_cmp_eq_u32 s{sTMP}, 1')
    e('s_cbranch_scc1 L_skipb')
for n_, it in enumerate(tail_items):
    if KB and n_ == KB: lab('L_skipb'); cur_m0[0] = None
    if 'dwin' in opts and n_ >= int(opts['dwin']): e(f's_waitcnt vmcnt({int(opts["dwin"])-1})')
    issue(it); seq.append(it)
afterD = len(seq) - 1 - seq.index(('D', DORD[-1]))
e(f's_waitcnt vmcnt({afterD + PW})')
def hloads():
    e(f'buffer_load_dwordx4 v[{vG}:{vG+3}], v{vL16}, s[{SW}:{SW+3}], s{sH} offen sc1')
hloads()
e(f's_waitcnt vmcnt({afterD + 1})')
e('s_barrier')
stamp(6)
for s in range(4):
    for sub, va in ((0, vRDA), (1, vRDB)):
        b = vWD + 8*s + 4*sub
        e(f'ds_read_b64_tr_b16 v[{b}:{b+1}], v{va} offset:{s*1024}')
        e(f'ds_read_b64_tr_b16 v[{b+2}:{b+3}], v{va} offset:{s*1024+4096}')
tbl_check('L_tc1')
e('s_branch L_pollhw')
lab('L_pollh')
e(f's_sub_u32 s{sCNT}, s{sCNT}, 1')
e('s_cbranch_scc1 L_pollh_done')
hloads()
lab('L_pollhw')
e('s_waitcnt vmcnt(0)')
e(f'v_cmp_ne_u64 vcc, s[{sT64}:{sT64+1}], v[{vG+2}:{vG+3}]')
e('s_cbranch_vccnz L_pollh')
lab('L_pollh_done')
e(f'ds_write_b64 v{vHW}, v[{vG}:{vG+1}]')
stamp(7)
e(f's_mov_b64 exec, s[{sLO}:{sLO+1}]')
e('s_waitcnt lgkmcnt(0)')
e('s_barrier')
for s in range(4): e(f'ds_read_b128 v[{vH+4*s}:{vH+4*s+3}], v{vHR} offset:{64*s}')
e(f's_mov_b64 exec, s[{sHI}:{sHI+1}]')
for s in range(4): e(f'ds_read_b128 v[{vH+16+4*s}:{vH+16+4*s+3}], v{vHR} offset:{64*s}')
e('s_mov_b64 exec, -1')
for k in range(8):
    sub, s = k >> 2, k & 3
    e(f's_waitcnt lgkmcnt({7-k})')
    b = vWD + 8*s + 4*sub
    c = '0' if k == 0 else f'v[{vACC}:{vACC+3}]'
    e(f'v_mfma_f32_16x16x32_bf16 v[{vACC}:{vACC+3}], v[{b}:{b+3}], v[{vH+4*k}:{vH+4*k+3}], {c}')
e(f's_cmp_eq_u64 s[{sLOC}:{sLOC+1}], -1')
e('s_nop 6')
for r in range(4):
    e(f'v_bfi_b32 v{vP+r}, v{vFF}, s{sTI+r}, v{vACC+r}')
e('s_cbranch_scc0 L_far')
e(f'buffer_store_dwordx4 v[{vP}:{vP+3}], v{vPUB2}, s[{SW}:{SW+3}], 0 offen')
if 'cleanp' in opts:
    e(f's_cmp_eq_u32 s{sWV}, 0')
    e('s_cbranch_scc1 L_fin')
    pub1(' sc1')
lab('L_fin')
stamp(8)
e(f's_mov_b32 s{sCNT}, {POLL_MAX}')
def check(g):
    e(f'v_perm_b32 v{vP+4}, v{g+1}, v{g}, s{sSEL0}')
    e(f'v_perm_b32 v{vP+5}, v{g+3}, v{g+2}, s{sSEL0}')
    e(f'v_cmpx_eq_u64 vcc, s[{sEXP}:{sEXP+1}], v[{vP+4}:{vP+5}]')
def strip(g, first):
    for r in range(4): e(f'v_xor_b32 v{g+r}, s{sTB+r}, v{g+r}')
    if first: e(f'v_or_b32 v{vP+4}, v{g}, v{g+1}')
    else: e(f'v_or3_b32 v{vP+4}, v{vP+4}, v{g}, v{g+1}')
    e(f'v_or3_b32 v{vP+4}, v{vP+4}, v{g+2}, v{g+3}')
def strip_test(lbl):
    e(f'v_and_b32 v{vP+4}, 0x7f, v{vP+4}')
    e(f'v_cmp_ne_u32 vcc, 0, v{vP+4}')
    e(f's_cbranch_vccnz {lbl}')
def padd(a, b):
    e(f'v_pk_add_f32 v[{vG+4*a}:{vG+4*a+1}], v[{vG+4*a}:{vG+4*a+1}], v[{vG+4*b}:{vG+4*b+1}]')
    e(f'v_pk_add_f32 v[{vG+4*a+2}:{vG+4*a+3}], v[{vG+4*a+2}:{vG+4*a+3}], v[{vG+4*b+2}:{vG+4*b+3}]')
def yload():
    e(f'buffer_load_dwordx4 v[{vG+4}:{vG+7}], v{vY4}, s[{SW}:{SW+3}], s{sY} offen sc1')
e('s_mov_b32 exec_hi, 0x00ffffff')
yload()
e('s_mov_b32 exec_hi, -1')
lab('L_rchk')
strip(vRG, True)
strip_test('L_rpoll')
for r in range(4): e(f'v_mov_b32 v{vG+r}, 0')
e(f'v_and_b32 v{vRS}, 0xffff0000, v{vRG}')
e(f'v_lshlrev_b32 v{vXR}, 16, v{vXR}')
e(f'v_fma_f32 v{vXR}, v{vXR}, 0, v{vXR}')
e('s_mov_b32 exec_hi, 0x00ffffff')
e('s_branch L_poll2w')
lab('L_poll2')
e(f's_sub_u32 s{sCNT}, s{sCNT}, 1')
e('s_cbranch_scc1 L_poll2_done')
yload()
lab('L_poll2w')
e('s_waitcnt vmcnt(0)')
for r in range(4): e(f'v_xor_b32 v{vG+r}, s{sTB+r}, v{vG+4+r}')
e(f'v_or_b32 v{vP+4}, v{vG}, v{vG+1}')
e(f'v_or3_b32 v{vP+4}, v{vP+4}, v{vG+2}, v{vG+3}')
strip_test('L_poll2')
lab('L_poll2_done')
e('s_mov_b32 exec_hi, -1')
stamp(9)
e(f'v_permlane32_swap_b32 v{vG}, v{vG+2}')
e(f'v_permlane32_swap_b32 v{vG+1}, v{vG+3}')
e(f'v_add_f32 v{vG}, v{vG}, v{vG+2}')
e(f'v_add_f32 v{vG+1}, v{vG+1}, v{vG+3}')
e('s_nop 1')
e(f'v_permlane16_swap_b32 v{vG}, v{vG+1}')
e(f'v_add_f32 v{vG}, v{vG}, v{vG+1}')
for sh in (8, 4, 2):
    e('s_nop 1')
    e(f'v_add_f32_dpp v{vG}, v{vG}, v{vG} row_ror:{sh} row_mask:0xf bank_mask:0xf')
e(f'v_cvt_pk_bf16_f32 v{vG}, v{vG}, v{vG}')
e(f'v_lshlrev_b32 v{vG}, 16, v{vG}')
e(f'v_mul_f32 v{vG}, v{vG}, v{vRS}')
e(f'v_cvt_pk_bf16_f32 v{vG}, v{vG}, v{vG}')
e(f'v_lshlrev_b32 v{vG}, 16, v{vG}')
e(f'v_add_f32 v{vG}, v{vG}, v{vXR}')
e(f'v_cvt_pk_bf16_f32 v{vG}, v{vG}, v{vG}')
e('s_mov_b32 exec_lo, 0x00030003'); e('s_mov_b32 exec_hi, 0x00030003')
e(f'buffer_store_short v{vG}, v{vOUT}, s[{SO}:{SO+3}], 0 offen{OUTSC}')
e(f's_or_b32 s{sTMP}, s{sTASK}, s{sWV}')
e('s_cbranch_scc1 L_fin_done')
e('s_mov_b64 exec, 1')
e(f'v_mov_b32 v{vT1}, s{sTAG}')
e(f'buffer_store_dword v{vT1}, v{vL16}, s[{SW}:{SW+3}], 0 offen')
lab('L_fin_done')
if 'echo' in opts:
    i_, j_ = map(int, opts['echo'].split(','))
    e('s_waitcnt vmcnt(0)')
    stamp(10)
    e(f's_cmp_lg_u32 s{sWV}, 0')
    e('s_cbranch_scc1 L_end')
    e(f's_cmp_lg_u32 s2, {opts.get("ewg", 68)}')
    e('s_cbranch_scc1 L_end')
    e('s_waitcnt lgkmcnt(0)')
    e(f's_sub_u32 s96, s{68+2*i_}, s{68+2*j_}')
    e(f's_mul_i32 s96, s96, {opts.get("ek", 2)}')
    e('s_min_u32 s96, s96, 20000')
    if 'eloc' in opts:
        e(f's_cmp_eq_u64 s[{sLOC}:{sLOC+1}], -1')
        e('s_cselect_b32 s96, 0, 1000')
    lab('L_echo')
    e('s_memrealtime s[98:99]')
    e('s_waitcnt lgkmcnt(0)')
    e('s_sub_u32 s98, s98, s88')
    e('s_cmp_lt_u32 s98, s96')
    e('s_cbranch_scc1 L_echo')
if STAMPS and 'echo' not in opts:
    e('s_waitcnt vmcnt(0)')
    stamp(10)
    e('s_waitcnt lgkmcnt(0)')
    n = 13
    e('s_mov_b64 exec, 1')
    e(f's_lshl_b32 s{sTMP}, s2, 2')
    e(f's_add_u32 s{sTMP}, s{sTMP}, s{sWV}')
    e(f's_lshl_b32 s{sTMP}, s{sTMP}, 6')
    e(f's_add_u32 s{sTMP}, s{sTMP}, {STAMPBASE}')
    for i in range(n):
        e(f'v_mov_b32 v{vT1}, s{SB(i)}')
        e(f'buffer_store_dword v{vT1}, v{vL16}, s[{SW}:{SW+3}], s{sTMP} offen offset:{4*i}')
        e('s_nop 0')
lab('L_end')
e('s_endpgm')
lab('L_far')
e(f'buffer_store_dwordx4 v[{vP}:{vP+3}], v{vPUB2}, s[{SW}:{SW+3}], 0 offen sc1')
e('s_branch L_fin')
lab('L_rpoll')
e(f's_sub_u32 s{sCNT}, s{sCNT}, 1')
e('s_cbranch_scc1 L_fin_done')
e(f'buffer_load_dwordx4 v[{vRG}:{vRG+3}], v{vRB}, s[{SW}:{SW+3}], 0 offen offset:{RBASE} sc1')
e('s_waitcnt vmcnt(0)')
e('s_branch L_rchk')

lab('L_reduce')
e(f'v_mov_b32 v{vGR+4}, s{sT64}'); e(f'v_mov_b32 v{vGR+5}, s{sT64+1}')
e(f's_mov_b32 s{sCNT}, {POLL_MAX}')
e(f's_mov_b32 s{sTMP}, 0xbfb8aa3b')
e(f's_mov_b32 s{sTMP2}, 0xffff0000')
lab('L_poll1')
e(f's_cmp_lg_u32 s{sCNT}, {POLL_MAX - KFALL}')
e('s_cbranch_scc1 L_poll1b')
pub1(' sc1')
lab('L_poll1b')
def ld1(i, so, imm):
    e(f'buffer_load_dwordx4 v[{vG+4*i}:{vG+4*i+3}], v{vQ}, s[{SW}:{SW+3}], s{so} offen offset:{imm} sc1')
e(f's_sub_u32 s{sCNT}, s{sCNT}, 1')
e('s_cbranch_scc1 L_poll1_done')
ld1(0, sQ, 0); ld1(1, sQ2, 0); ld1(2, sQ, 128); ld1(3, sQ2, 128)
for i in range(4):
    e(f's_waitcnt vmcnt({3-i})')
    strip(vG + 4*i, i == 0)
    if i == 1: padd(0, 1)
strip_test('L_poll1')
lab('L_poll1_done')
stamp(11)
padd(2, 3)
e(f's_cmp_lg_u32 s{sK3}, 3')
e('s_cbranch_scc1 L_act')
for i in (0, 1, 2, 3, 8, 9, 10, 11):
    e(f'v_add_f32_dpp v{vG+i}, v{vG+i}, v{vG+i} row_ror:8 row_mask:0xf bank_mask:0xf')
lab('L_act')
R = vG; U = vG + 8; P = vP
e(f'v_cvt_pk_bf16_f32 v{P}, v{R}, v{R+1}')
e(f'v_cvt_pk_bf16_f32 v{P+1}, v{R+2}, v{R+3}')
e(f'v_lshlrev_b32 v{R}, 16, v{P}')
e(f'v_and_b32 v{R+1}, s{sTMP2}, v{P}')
e(f'v_lshlrev_b32 v{R+2}, 16, v{P+1}')
e(f'v_and_b32 v{R+3}, s{sTMP2}, v{P+1}')
for r in range(4): e(f'v_mul_f32 v{P+r}, s{sTMP}, v{R+r}')
for r in range(4): e(f'v_exp_f32 v{P+r}, v{P+r}')
e(f'v_cvt_pk_bf16_f32 v{P+6}, v{U}, v{U+1}')
e(f'v_cvt_pk_bf16_f32 v{P+7}, v{U+2}, v{U+3}')
e(f'v_pk_add_f32 v[{P}:{P+1}], v[{P}:{P+1}], 1.0 op_sel_hi:[1,0]')
e(f'v_pk_add_f32 v[{P+2}:{P+3}], v[{P+2}:{P+3}], 1.0 op_sel_hi:[1,0]')
for r in range(4): e(f'v_rcp_f32 v{P+r}, v{P+r}')
e(f'v_lshlrev_b32 v{U}, 16, v{P+6}')
e(f'v_and_b32 v{U+1}, s{sTMP2}, v{P+6}')
e(f'v_lshlrev_b32 v{U+2}, 16, v{P+7}')
e(f'v_and_b32 v{U+3}, s{sTMP2}, v{P+7}')
e(f'v_pk_mul_f32 v[{P}:{P+1}], v[{P}:{P+1}], v[{R}:{R+1}]')
e(f'v_pk_mul_f32 v[{P+2}:{P+3}], v[{P+2}:{P+3}], v[{R+2}:{R+3}]')
e(f'v_cvt_pk_bf16_f32 v{P+4}, v{P}, v{P+1}')
e(f'v_cvt_pk_bf16_f32 v{P+5}, v{P+2}, v{P+3}')
e(f'v_lshlrev_b32 v{P}, 16, v{P+4}')
e(f'v_and_b32 v{P+1}, s{sTMP2}, v{P+4}')
e(f'v_lshlrev_b32 v{P+2}, 16, v{P+5}')
e(f'v_and_b32 v{P+3}, s{sTMP2}, v{P+5}')
e(f'v_pk_mul_f32 v[{P}:{P+1}], v[{P}:{P+1}], v[{U}:{U+1}]')
e(f'v_pk_mul_f32 v[{P+2}:{P+3}], v[{P+2}:{P+3}], v[{U+2}:{U+3}]')
e(f'v_cvt_pk_bf16_f32 v{vGR+2}, v{P}, v{P+1}')
e(f'v_cvt_pk_bf16_f32 v{vGR+3}, v{P+2}, v{P+3}')
e(f'buffer_store_dwordx4 v[{vGR+2}:{vGR+5}], v{vHP}, s[{SW}:{SW+3}], 0 offen sc1')
stamp(12)
if 'norbar' not in opts: e('s_barrier')
if 'f1prod' not in opts: yprefetch()
tbl_load()
e(f'buffer_load_ushort v{vXR}, v{vOUT}, s[{SX}:{SX+3}], 0 offen')
e(f'buffer_load_dwordx4 v[{vRG}:{vRG+3}], v{vRB}, s[{SW}:{SW+3}], 0 offen offset:{RBASE} sc1')
e('s_waitcnt vmcnt(0)')
tbl_check('L_tc2')
e('s_branch L_fin')

lab('L_router')
e(f's_load_dwordx2 s[{SR}:{SR+1}], s[0:1], 8')
srdc(SR, 2048)
common_consts()
e(f's_lshl1_add_u32 s{sKK}, s{sSLOT}, s{sWV}')
e(f's_lshl_b32 s{sTMP2}, s{sKK}, 11')
e(f's_mov_b32 s{sP}, {PBASE + 7*16384 + 8192}')
e('s_waitcnt lgkmcnt(0)')
e(f's_load_dword s{sTAG}, s[{SW}:{SW+1}], 0')
e(f'buffer_load_dwordx4 v[{vRX}:{vRX+3}], v{vL16}, s[{SX}:{SX+3}], s{sTMP2} offen')
e(f'buffer_load_dwordx4 v[{vRX+4}:{vRX+7}], v{vL16}, s[{SX}:{SX+3}], s{sTMP2} offen offset:1024')
e(f'buffer_load_dwordx4 v[{vRX+8}:{vRX+11}], v{vL16}, s[{SR}:{SR+3}], 0 offen')
e(f'buffer_load_dwordx4 v[{vRX+12}:{vRX+15}], v{vL16}, s[{SR}:{SR+3}], 0 offen offset:1024')
e(f'v_mov_b32 v{vRS}, 0')
rsetup()
e('s_waitcnt lgkmcnt(0)')
common_tag()
e(f's_cmp_gt_u32 s{sWV}, 1')
e('s_cbranch_scc1 L_reduce')
e('s_waitcnt vmcnt(1)')
for i in range(8):
    e(f'v_dot2c_f32_bf16 v{vRS}, v{vRX+i}, v{vRX+8+i}')
e('s_nop 2')
for sh in (1, 2, 4, 8):
    e(f'v_add_f32_dpp v{vRS}, v{vRS}, v{vRS} row_ror:{sh} row_mask:0xf bank_mask:0xf')
    e('s_nop 1')
e(f'v_mov_b32 v{vT1}, v{vRS}')
e('s_nop 1')
e(f'v_permlane16_swap_b32 v{vRS}, v{vT1}')
e(f'v_add_f32 v{vRS}, v{vRS}, v{vT1}')
e(f'v_mov_b32 v{vT1}, v{vRS}')
e('s_nop 1')
e(f'v_permlane32_swap_b32 v{vRS}, v{vT1}')
e(f'v_add_f32 v{vRS}, v{vRS}, v{vT1}')
e(f'v_cvt_pk_bf16_f32 v{vRS}, v{vRS}, v{vRS}')
e(f'v_lshlrev_b32 v{vRS}, 16, v{vRS}')
e(f'v_mul_f32 v{vRS}, 0xbfb8aa3b, v{vRS}')
e(f'v_exp_f32 v{vRS}, v{vRS}')
e('s_nop 0')
e(f'v_add_f32 v{vRS}, 1.0, v{vRS}')
e(f'v_rcp_f32 v{vRS}, v{vRS}')
e('s_nop 0')
e(f'v_cvt_pk_bf16_f32 v{vRS}, v{vRS}, v{vRS}')
e(f'v_bfi_b32 v{vP}, v{vFF}, s{sTI}, v{vRS}')
for r in range(1, 4): e(f'v_mov_b32 v{vP+r}, s{sTB+r}')
e(f's_lshl_b32 s{sTMP}, s{sKK}, 4')
e('s_mov_b64 exec, 1')
e(f'buffer_store_dwordx4 v[{vP}:{vP+3}], v{vL16}, s[{SW}:{SW+3}], s{sTMP} offen offset:{RBASE} sc1')
e('s_mov_b64 exec, -1')
e('s_branch L_reduce')
lab('L_codeend')
o += ['.section .rodata,"a"', '.p2align 6', f'.amdhsa_kernel {NAME}',
      f'  .amdhsa_next_free_vgpr {NV}', '  .amdhsa_next_free_sgpr 100', f'  .amdhsa_accum_offset {NV}',
      '  .amdhsa_group_segment_fixed_size 0', '  .amdhsa_kernarg_size 64', '  .amdhsa_user_sgpr_count 2',
      '  .amdhsa_user_sgpr_kernarg_segment_ptr 1', '  .amdhsa_system_sgpr_workgroup_id_x 1',
      '  .amdhsa_float_denorm_mode_32 3',
      '.end_amdhsa_kernel']
print('\n'.join(o))
```

```python
import sys
opts = dict(a.split('=') if '=' in a else (a, '1') for a in sys.argv[1:])
STAMPS = 'stamps' in opts
NT1 = '' if 'nont1' in opts else ' nt'
NT2 = '' if 'nont2' in opts else ' nt'
FSC = ' ' + opts.get('fsc', 'none').replace('+', ' ').replace('none', '')
OUTSC = ' ' + opts.get('outsc', '').replace('+', ' ')
NAME = 'standalone__moe_arch_mod__decode_kernel'
NWG = 256
LDS_X = 65536
LDS_H = LDS_X
DREG = {(0, 0): 0, (0, 1): 73728, (1, 0): 16384, (1, 1): 32768}
LDS_TOTAL = 108800
RBASE = 1024
TBASE = 2048
PBASE = 4096
YBASE = PBASE + 56 * 16384
YS = 3584
HBASE = YBASE + 256 * YS
STAMPBASE = 3 << 20
WS_SIZE = 4 << 20
OOB = 0x10000000
assert HBASE + 56 * 2048 <= (2 << 20)
POLL_MAX = 1 << 20
STAGES = eval(opts.get('stages', '[[0,1],[2,3],[4,5],[6,7],[8,9],[10,11],[12,13],[14],[15]]'))
PRO = int(opts.get('pro', 9))
NISS = eval(opts.get('niss', '[2,2,2,3,1,0,0,0,0]'))
PW = int(opts.get('pw', 2))
KB = int(opts.get('kb', 1))
KFALL = int(opts.get('kfall', 40))


DOC = """
; ---------------------------------------------------------------------------------------------------------
; ---------------------------------------------------------------------------------------------------------
"""
o = []
def e(s): o.append('    ' + s)
def lab(s): o.append(s + ':')
nstamp = [0]
SB = lambda i: 68 + 2*i if i < 12 else 30
def stamp(i):
    if 'estamp' in opts and (i == 0 or i == int(opts['estamp'])):
        e('s_memrealtime s[88:89]')
    if STAMPS:
        nstamp[0] = max(nstamp[0], i + 1)
        e(f's_memrealtime s[{SB(i)}:{SB(i)+1}]')

hdr = open('standalone__moe_arch_mod__decode.s.ref').read().split('\n')
for l in hdr:
    if l.startswith('; @launch'):
        o.append(f'; @launch grid=({NWG},1,1) block=(256,1,1) lds={LDS_TOTAL}')
        break
    o.append(l)
o += DOC.strip().split('\n')
o += ['.amdgcn_target "amdgcn-amd-amdhsa--gfx950"', '.text', f'.globl {NAME}', '.p2align 8',
      f'.type {NAME},@function', f'{NAME}:']

SM, SD, SX, SW, SO, SR = 4, 8, 12, 16, 20, 24
sTAG = 28
sEXP = 30
sTB = 32
sCT, sMEM, sC3, sWV, sTMP, sTMP2, sP, sCNT, sTASK, sROW0, sQ, sKK, sSEL0, sMW, sXCD, sSLOT = range(36, 52)
sLO, sHI = 52, 54
sNOP2, sMD, sMX, sPOS, sQ2, sK3 = 56, 57, 58, 59, 60, 61
sLOC = 62
sT64 = 64
sY = 66; sTROW = 67; sMA = 3; sH = 27; sCB = 96; sTI = 92
vL, vT0, vT1, vT2, vA, vB, vX, vD, vRD1, vRDA, vL16, vTR, vPUB2, vFF, vHP, vP1 = range(1, 17)
vWV = 17; vOUT = 18; vXR = 19; vRS = 20; vXL = 21; vRA = 22; vRDB = 23
vXF = 24
vACC = 32
vW = 48
vWD = 64
vG = 96
vP = 128
vPP = 140
vGR = 144
vQ = 150; vTA = 151; vTB = 152; vY4 = 154; vHW = 155; vHR = 156; vPF = 157; vRB = 158
vH = 160
vRG = 192
vRX = 64
NV = 196

def srdc(s, sz):
    e(f's_mov_b32 s{s+2}, {sz}'); e(f's_mov_b32 s{s+3}, 0x20000')
def common_tag():
    e(f's_mul_i32 s{sTAG}, s{sTAG}, 1664525')
    e(f's_add_u32 s{sTAG}, s{sTAG}, 1013904223')
    e(f'v_mov_b32 v{vTB}, s{sTAG}')
    e(f'v_mov_b32 v{vTB+1}, s{sTAG+1}')
    e(f'v_lshlrev_b32 v{vT1}, 22, v0')
    e(f's_lshl_b32 s{sTMP}, s{sTASK}, 3')
    e(f'buffer_store_dwordx2 v[{vTB}:{vTB+1}], v{vT1}, s[{SW}:{SW+3}], s{sTMP} offen offset:{TBASE} sc1')
    for r in range(4):
        e(f's_bfe_u32 s{sTB+r}, s{sTAG}, {hex(0x70000 + 7*r)}')
        e(f's_or_b32 s{sTI+r}, s{sTB+r}, 0x80')
    e(f's_mov_b32 s{sT64}, s{sTAG}')
    e(f's_mul_i32 s{sT64+1}, s{sTAG}, 0x9e3779b1')
def common_consts():
    srdc(SO, 16384)
    e(f's_mov_b32 s{sLO}, 0x00ff00ff'); e(f's_mov_b32 s{sLO+1}, 0x00ff00ff')
    e(f's_not_b64 s[{sHI}:{sHI+1}], s[{sLO}:{sLO+1}]')
    e(f'v_mov_b32 v{vFF}, 0xff')
    e(f's_lshl_b32 s{sTMP}, s{sXCD}, 2')
    e(f's_lshr_b32 s{sCB}, {opts.get("perm", "0x76243510")}, s{sTMP}')
    e(f's_and_b32 s{sCB}, s{sCB}, 7')
    e(f's_lshl_b32 s{sTASK}, s{sCB}, 5')
    e(f's_add_u32 s{sTASK}, s{sTASK}, s{sSLOT}')
    e(f's_getreg_b32 s{sTAG+1}, hwreg(HW_REG_XCC_ID, 0, 4)')
    e(f's_lshl_b32 s{sTROW}, s{sCB}, 8')
    e(f'v_and_b32 v{vTR}, 31, v{vL}')
    e(f'v_lshlrev_b32 v{vTR}, 3, v{vTR}')
    e(f's_mul_i32 s{sY}, s{sTASK}, {YS}')
    e(f's_add_u32 s{sY}, s{sY}, {YBASE}')
    e(f'v_and_b32 v{vT1}, 7, v{vL}')
    e(f'v_lshlrev_b32 v{vRA}, 4, v{vT1}')
    e(f'v_and_b32 v{vT1}, 1, v{vL}')
    e(f'v_lshl_add_u32 v{vT1}, v{vWV}, 1, v{vT1}')
    e(f'v_lshlrev_b32 v{vRB}, 4, v{vT1}')
    e(f'v_lshlrev_b32 v{vOUT}, 11, v{vT1}')
    e(f'v_lshrrev_b32 v{vT1}, 4, v{vL}')
    e(f'v_lshl_add_u32 v{vOUT}, v{vT1}, 1, v{vOUT}')
    e(f's_lshl_b32 s{sTMP}, s{sTASK}, 3')
    e(f'v_add_u32 v{vOUT}, s{sTMP}, v{vOUT}')
    e(f'v_lshrrev_b32 v{vT1}, 1, v{vL}')
    e(f'v_lshl_add_u32 v{vY4}, v{vT1}, 7, v{vRB}')
    e(f'v_and_b32 v{vP1}, 0x37f, v{vL16}')

def rsetup():
    e(f's_lshl_b32 s{sTMP}, s{sSLOT}, 2')
    e(f's_lshr_b32 s{sQ}, 0x3520, s{sTMP}')
    e(f's_and_b32 s{sQ}, s{sQ}, 15')
    e(f's_lshl3_add_u32 s{sQ}, s{sXCD}, s{sQ}')
    e(f's_lshr_b32 s{sTMP2}, 0x0121, s{sTMP}')
    e(f's_lshr_b32 s{sQ2}, 0x0888, s{sTMP}')
    e(f's_lshl2_add_u32 s{sTMP}, s{sTMP}, 7')
    e(f's_cmp_eq_u32 s{sXCD}, 7')
    e(f's_cselect_b32 s{sQ}, s{sTMP}, s{sQ}')
    e(f's_cselect_b32 s{sTMP2}, s{sQ2}, s{sTMP2}')
    e(f's_cselect_b32 s{sK3}, 0, s{sSLOT}')
    e(f's_and_b32 s{sTMP2}, s{sTMP2}, 15')
    e(f's_lshl_b32 s{sTMP}, s{sTMP2}, 1')
    e(f's_cmp_eq_u32 s{sK3}, 3')
    e(f's_cselect_b32 s{sTMP}, 1, s{sTMP}')
    e(f'v_bfe_u32 v{vT0}, v{vL}, 3, 1')
    e(f'v_mul_u32_u24 v{vT1}, s{sTMP}, v{vT0}')
    e(f'v_lshl_add_u32 v{vQ}, v{vT1}, 13, v{vP1}')
    e(f'v_mul_u32_u24 v{vT0}, s{sTMP2}, v{vT0}')
    e(f'v_lshl_add_u32 v{vHP}, v{vT0}, 11, v{vRA}')
    e(f'v_lshrrev_b32 v{vT1}, 4, v{vL}')
    e(f'v_lshl_add_u32 v{vHP}, v{vT1}, 7, v{vHP}')
    e(f's_lshl2_add_u32 s{sTMP}, s{sQ}, s{sWV}')
    e(f's_lshl_b32 s{sTMP}, s{sTMP}, 9')
    e(f's_add_u32 s{sTMP}, s{sTMP}, {HBASE}')
    e(f'v_add_u32 v{vHP}, s{sTMP}, v{vHP}')
    e(f's_lshl4_add_u32 s{sQ}, s{sQ}, s{sWV}')
    e(f's_lshl_b32 s{sQ}, s{sQ}, 10')
    e(f's_add_u32 s{sQ}, s{sQ}, {PBASE}')
    e(f's_add_u32 s{sQ2}, s{sQ}, 4096')
    e(f'v_min_u32 v{vPF}, 55, v{vL}')
    e(f's_lshl2_add_u32 s{sTMP}, s{sSLOT}, s{sWV}')
    e(f's_mul_i32 s{sTMP}, s{sTMP}, 56')
    e(f'v_add_lshl_u32 v{vPF}, v{vPF}, s{sTMP}, 7')
def rprefetch():
    for so, imm in ((sQ, 0), (sQ2, 0), (sQ, 128), (sQ2, 128)):
        e(f'buffer_load_dword v{vTA}, v{vQ}, s[{SW}:{SW+3}], s{so} offen offset:{imm}')
    if 'nopre' not in opts:
        e(f's_mov_b32 s{sTMP}, {HBASE}')
        e(f'buffer_load_dword v{vTA}, v{vPF}, s[{SW}:{SW+3}], s{sTMP} offen')
    if 'f1early' in opts: yprefetch()
def yprefetch():
    e(f's_mul_i32 s{sTMP}, s{sCB}, {32*YS}')
    e(f's_add_u32 s{sTMP}, s{sTMP}, {YBASE}')
    e(f'buffer_load_dword v{vTA}, v{vPF}, s[{SW}:{SW+3}], s{sTMP} offen')

stamp(0)
e(f's_and_b32 s{sTMP}, s2, 8')
e(f's_add_u32 s{sTMP}, s{sTMP}, 16')
e(f's_load_dwordx2 s[{SM}:{SM+1}], s[0:1], s{sTMP}')
e(f's_load_dwordx2 s[{SX}:{SX+1}], s[0:1], 0')
e(f's_load_dwordx2 s[{SW}:{SW+1}], s[0:1], 56')
e(f's_load_dwordx2 s[{SD}:{SD+1}], s[0:1], 32')
e(f's_load_dwordx2 s[{SO}:{SO+1}], s[0:1], 40')
e(f's_cmp_ge_u32 s2, {NWG}')
e('s_cbranch_scc1 L_end')
if 'nocpf' not in opts:
    e(f's_getpc_b64 s[{sT64}:{sT64+1}]')
    lab('L_pc')
    e(f'v_cmp_gt_u32 vcc, (L_codeend-L_pc)/128, v0')
    e(f's_and_saveexec_b64 s[{sLOC}:{sLOC+1}], vcc')
    e('s_cbranch_execz L_nocpf')
    e(f'v_lshlrev_b32 v{vT0}, 7, v0')
    e(f'global_load_dword v{vTA}, v{vT0}, s[{sT64}:{sT64+1}] offset:124')
    lab('L_nocpf')
    e(f's_mov_b64 exec, s[{sLOC}:{sLOC+1}]')
e(f'v_lshrrev_b32 v{vWV}, 6, v0')
e(f'v_and_b32 v{vL}, 63, v0')
e(f'v_readfirstlane_b32 s{sWV}, v{vWV}')
e(f's_and_b32 s{sXCD}, s2, 7')
e(f's_lshr_b32 s{sSLOT}, s2, 3')
e(f's_lshr_b32 s{sPOS}, s2, 5')
srdc(SM, 1024*3584*2); srdc(SX, 16384); srdc(SW, WS_SIZE)
e(f'v_lshlrev_b32 v{vL16}, 4, v{vL}')
e(f's_cmp_eq_u32 s{sXCD}, 7')
e('s_cbranch_scc1 L_x7')
e(f's_cmp_lt_u32 s{sPOS}, 5')
e(f's_subb_u32 s{sPOS}, s{sPOS}, 1')
e(f's_cmp_lt_u32 s{sSLOT}, 8')
e(f's_cselect_b32 s{sPOS}, 3, s{sPOS}')
e(f's_cselect_b32 s{sC3}, 1, 0')
e(f's_lshl3_add_u32 s{sCT}, s{sXCD}, s{sPOS}')
e('s_branch L_dec')
lab('L_x7')
e(f's_cmp_lt_u32 s{sSLOT}, 4')
e('s_cbranch_scc1 L_router')
e(f's_lshl3_add_u32 s{sCT}, s{sPOS}, -1')
e(f's_mov_b32 s{sC3}, 0')
lab('L_dec')
e(f's_lshl2_add_u32 s{sTMP}, s{sC3}, 3')
e(f's_and_b32 s{sMEM}, s{sSLOT}, s{sTMP}')
e(f's_lshr_b32 s{sKK}, s{sMEM}, 1')
e(f's_or_b32 s{sTMP}, s{sMEM}, 1')
e(f's_cmp_lg_u32 s{sC3}, 0')
e(f's_cselect_b32 s{sROW0}, s{sKK}, s{sTMP}')
e(f'v_lshrrev_b32 v{vT1}, 5, v{vL}')
e(f'v_bfe_u32 v{vT2}, v{vL}, 3, 2')
e(f'v_lshl_add_u32 v{vT0}, v{vT1}, 3, v{vT2}')
e(f'v_lshrrev_b32 v{vT2}, 3, v{vL}')
e(f'v_and_b32 v{vT2}, 6, v{vT2}')
e(f'v_sub_u32 v{vT2}, v{vL}, v{vT2}')
e(f'v_and_b32 v{vT2}, 7, v{vT2}')
e(f'v_lshlrev_b32 v{vT2}, 4, v{vT2}')
e(f's_and_b32 s{sTMP}, s{sWV}, 2')
e(f's_add_u32 s{sTMP}, s{sTMP}, s{sWV}')
e(f's_lshl_b32 s{sTMP2}, s{sROW0}, 6')
e(f's_add_u32 s{sTMP}, s{sTMP}, s{sTMP2}')
e(f's_mul_i32 s{sTMP}, s{sTMP}, {4*7168}')
e(f's_lshl_b32 s{sTMP2}, s{sCT}, 7')
e(f's_add_u32 s{sTMP}, s{sTMP}, s{sTMP2}')
e(f'v_mul_u32_u24 v{vB}, 7168, v{vT0}')
e(f'v_add3_u32 v{vB}, v{vB}, v{vT2}, s{sTMP}')
e(f's_cmp_lg_u32 s{sC3}, 0')
e(f's_cselect_b32 s{sTMP}, 0, {256*7168}')
e(f'v_subrev_u32 v{vA}, s{sTMP}, v{vB}')
e(f's_lshl_b32 s{sMW}, s{sWV}, 14')
e(f's_lshl_b32 s{sTMP2}, s{sC3}, 13')
e(f's_add_u32 s{sMA}, s{sMW}, s{sTMP2}')

cur_m0 = [None]
def set_m0(key, expr_reg, add):
    if cur_m0[0] == (key, add): return False
    cur_m0[0] = (key, add)
    if add: e(f's_add_u32 m0, s{expr_reg}, {add}')
    else: e(f's_mov_b32 m0, s{expr_reg}')
    return True
def issue(item):
    k, i = item
    if k == 'F':
        if i == 0: e(f'buffer_load_dword v{vTA}, v{vP1}, s[{SW}:{SW+3}], s{sP} offen{FSC}')
        elif i == 2: e(f'buffer_load_dword v{vTA}, v{vL16}, s[{SW}:{SW+3}], s{sH} offen{FSC}')
        else: e(f'buffer_load_dword v{vTA}, v{vPUB2}, s[{SW}:{SW+3}], 0 offen{FSC}')
        return
    if k == 'W':
        ch = set_m0('W', sMW, (i >> 2) * 4096) if i >= 8 else set_m0('A', sMA, (i >> 2) * 4096)
        imm = (i & 3) * 1024
        so = (i & 7) * 32 * 7168 - imm
        v, srd, nt = (vA if i < 8 else vB), SM, NT1
    elif k == 'D':
        gp, e4, chh = i >> 2, (i >> 1) & 1, i & 1
        ch = set_m0('D', sMD, DREG[(gp, chh)] + e4 * 4096)
        imm = 0
        so = (16*gp + 4*e4) * 2048 + chh * 128
        v, srd, nt = vD, SD, NT2
    else:
        ch = set_m0('X', sMX, i * 4096)
        imm = 0; so = 0
        v, srd, nt = (vXL if i == 0 else vX), SX, ''
    if so == 0:
        sof = '0'
        if ch: e('s_nop 0')
    else:
        e(f's_mov_b32 s{sTMP}, {so}'); sof = f's{sTMP}'
    e(f'buffer_load_dwordx4 v{v}, s[{srd}:{srd+3}], {sof} offen offset:{imm}{nt} lds')

def addr_x():
    e(f'v_and_b32 v{vT1}, 7, v{vL}')
    e(f'v_lshlrev_b32 v{vX}, 11, v{vT1}')
    e(f'v_and_b32 v{vT1}, 8, v{vL}')
    e(f'v_lshl_add_u32 v{vX}, v{vT1}, 3, v{vX}')
    e(f'v_and_b32 v{vT1}, 48, v{vL}')
    e(f's_lshl2_add_u32 s{sTMP}, s{sROW0}, s{sWV}')
    e(f's_lshl_b32 s{sTMP}, s{sTMP}, 7')
    e(f'v_add3_u32 v{vX}, v{vX}, v{vT1}, s{sTMP}')
    e(f's_cmp_lg_u32 s{sC3}, 0')
    e(f's_cselect_b32 s{sTMP}, 0, 512')
    e(f'v_subrev_u32 v{vXL}, s{sTMP}, v{vX}')
    e(f's_lshl_b32 s{sMX}, s{sWV}, 10')
    e(f's_add_u32 s{sMX}, s{sMX}, {LDS_X}')

FS = [('F', 0), ('F', 2)] + ([('F', 1)] if 'f1prod' in opts else [])
FPOS = int(opts.get('fpos', 16))
NDR = max(0, PRO + sum(NISS) - 16 - len(FS))
if 'dold' in opts:
    DORD = [0, 2, 4, 6][:NDR] + [1, 3, 5, 7] + [0, 2, 4, 6][NDR:]
    BEARLY = [1, 3, 5, 7][:KB]
    assert KB <= 2 and NDR <= 1
else:
    DORD = [1, 3, 5, 7, 0, 2, 4, 6]
    BEARLY = DORD[NDR:NDR+KB]
    assert KB + NDR <= 2
assert sum(NISS[:4]) + PRO <= 16 + len(FS)
stream = [('W', s) for s in range(FPOS)] + FS + [('W', s) for s in range(FPOS, 16)] + [('D', u) for u in DORD]
sched = []; pos = PRO
for i_, st in enumerate(STAGES):
    n = NISS[i_]
    sched.append(stream[pos:pos+n]); pos = min(pos + n, len(stream))
tail_items = stream[pos:]
H = 4
e(f's_mov_b32 m0, s{sMA}')
e('s_waitcnt lgkmcnt(0)')
stamp(1)
cur_m0[0] = ('A', 0)
issued = stream[:H]
for it in issued: issue(it)
e(f's_load_dword s{sTAG}, s[{SW}:{SW+1}], 0')
addr_x()
issue(('X', 0)); issue(('X', 1))
assert PRO >= 8
for it in stream[H:8]: issue(it)
rest = stream[8:PRO]
assert all(k == 'W' for k, _ in rest)
if rest:
    e(f's_cmp_lg_u32 s{sC3}, 0')
    e('s_cbranch_scc1 L_pre')
    for it in rest: issue(it)
issued = issued + [('X', 0), ('X', 1)] + stream[H:PRO] + [('T', 0)]
lab('L_pre')
cur_m0[0] = None
stamp(2)
common_consts()
srdc(SD, 3584*1024*2)
e(f's_sub_u32 s{sK3}, s{sSLOT}, 4')
e(f's_cselect_b32 s{sNOP2}, {OOB}, 0')
e(f's_cselect_b32 s{sK3}, 0, s{sK3}')
e(f's_lshl2_add_u32 s{sTMP}, s{sK3}, s{sWV}')
e(f's_lshl_b32 s{sTMP}, s{sTMP}, 16')
e(f's_add_u32 s{sTMP}, s{sTMP}, s{sTROW}')
e(f's_add_u32 s{sTMP}, s{sTMP}, s{sNOP2}')
e(f'v_lshlrev_b32 v{vD}, 11, v{vT0}')
e(f'v_add3_u32 v{vD}, v{vD}, v{vT2}, s{sTMP}')
e(f's_lshl_b32 s{sMD}, s{sWV}, 10')
if 'tlbw' in opts:
    e('s_mov_b64 exec, 1')
    e(f's_mov_b32 s{sTMP}, {7*32*7168}')
    e(f'buffer_load_dword v{vTA}, v{vB}, s[{SM}:{SM+3}], s{sTMP} offen')
    e(f'buffer_load_dword v{vTA}, v{vD}, s[{SD}:{SD+3}], 0 offen')
    e(f'buffer_load_ushort v{vTA}, v{vOUT}, s[{SO}:{SO+3}], 0 offen')
    e('s_mov_b64 exec, -1')
    issued = issued[:-1] + [('Z', 0), ('Z', 1), ('Z', 2), ('T', 0)]
e(f'v_bfe_u32 v{vT1}, v{vL}, 2, 3')
e(f'v_lshlrev_b32 v{vT0}, 7, v{vT1}')
e(f'v_and_b32 v{vT2}, 1, v{vL}')
e(f'v_lshl_add_u32 v{vT0}, v{vT2}, 3, v{vT0}')
e(f'v_and_b32 v{vT1}, 6, v{vT1}')
e(f'v_bfe_u32 v{vT2}, v{vL}, 1, 1')
e(f'v_add_u32 v{vT1}, v{vT1}, v{vT2}')
e(f'v_lshl_add_u32 v{vT2}, v{vWV}, 1, v{vT1}')
e(f'v_and_b32 v{vT2}, 7, v{vT2}')
e(f'v_lshl_add_u32 v{vRD1}, v{vT2}, 4, v{vT0}')
e(f'v_lshrrev_b32 v{vT2}, 5, v{vL}')
e(f'v_lshl_add_u32 v{vRD1}, v{vT2}, 15, v{vRD1}')
e(f's_cmp_gt_u32 s{sWV}, 1')
e(f's_cselect_b32 s{sTMP}, {DREG[(0,1)]}, 0')
e(f's_mov_b32 s{sTMP2}, {DREG[(1,0)] - DREG[(0,0)]}')
e(f's_cselect_b32 s{sTMP2}, {DREG[(1,1)] - DREG[(0,1)]}, s{sTMP2}')
e(f'v_mul_lo_u32 v{vT2}, v{vT2}, s{sTMP2}')
e(f'v_add3_u32 v{vT0}, v{vT0}, v{vT2}, s{sTMP}')
e(f'v_lshl_add_u32 v{vT1}, v{vWV}, 2, v{vT1}')
e(f'v_and_b32 v{vT2}, 7, v{vT1}')
e(f'v_lshl_add_u32 v{vRDA}, v{vT2}, 4, v{vT0}')
e(f'v_add_u32 v{vT1}, 2, v{vT1}')
e(f'v_and_b32 v{vT2}, 7, v{vT1}')
e(f'v_lshl_add_u32 v{vRDB}, v{vT2}, 4, v{vT0}')
e(f'v_add_u32 v{vXL}, {LDS_X}, v{vL16}')
e(f's_lshl2_add_u32 s{sP}, s{sCT}, s{sKK}')
e(f's_lshl2_add_u32 s{sP}, s{sP}, s{sWV}')
e(f's_lshl_b32 s{sP}, s{sP}, 10')
e(f's_and_b32 s{sTMP2}, s{sMEM}, 1')
e(f's_lshl_b32 s{sTMP2}, s{sTMP2}, 7')
e(f's_add_u32 s{sP}, s{sP}, s{sTMP2}')
e(f's_add_u32 s{sP}, s{sP}, {PBASE}')
e(f's_lshl2_add_u32 s{sH}, s{sK3}, s{sWV}')
e(f's_lshl_b32 s{sH}, s{sH}, 10')
e(f's_add_u32 s{sH}, s{sH}, {HBASE}')
e(f'v_mul_u32_u24 v{vHR}, 17, v{vRA}')
e(f'v_add_u32 v{vHR}, {LDS_H}, v{vHR}')
e(f'v_lshl_add_u32 v{vHW}, v{vWV}, 6, v{vHR}')
e(f'v_and_b32 v{vT1}, 56, v{vL}')
e(f'v_add_u32 v{vHW}, v{vHW}, v{vT1}')
e(f'v_and_b32 v{vT1}, 48, v{vL}')
e(f'v_add_u32 v{vHR}, v{vHR}, v{vT1}')
for i in range(32): e(f'v_mov_b32 v{vH+i}, 0')
e(f'v_bfe_u32 v{vT0}, v{vL}, 3, 1')
e(f'v_lshrrev_b32 v{vT2}, 4, v{vL}')
e(f'v_lshl_add_u32 v{vPUB2}, v{vT0}, 2, v{vT2}')
e(f'v_mul_u32_u24 v{vPUB2}, {YS}, v{vPUB2}')
e(f's_lshl2_add_u32 s{sTMP}, s{sCB}, s{sWV}')
e(f's_mul_i32 s{sTMP}, s{sTMP}, {8*YS}')
e(f's_lshl_b32 s{sTMP2}, s{sK3}, 7')
e(f's_add_u32 s{sTMP}, s{sTMP}, s{sTMP2}')
e(f's_add_u32 s{sTMP}, s{sTMP}, s{sNOP2}')
e(f's_add_u32 s{sTMP}, s{sTMP}, {YBASE}')
e(f'v_add3_u32 v{vPUB2}, v{vPUB2}, v{vRA}, s{sTMP}')
for i in range(8): e(f'v_mov_b32 v{vACC+i}, 0')
e(f's_cmp_eq_u32 s{sNOP2}, 0')
e('s_cbranch_scc1 L_nors')
rsetup()
lab('L_nors')
e('s_waitcnt lgkmcnt(0)')
if 'estamp' in opts: stamp(21)
common_tag()
iB = [i for i, st in enumerate(STAGES) if st[0] == 8][0]
if KB:
    e(f's_and_b32 s{sTMP}, s{sCB}, 3')
    e(f's_cmp_eq_u32 s{sTMP}, 1')
    e('s_cbranch_scc0 L_nob')
    cur_m0[0] = None
    for u in BEARLY: issue(('D', u))
    lab('L_nob')
e(f's_cmp_lg_u32 s{sC3}, 0')
e('s_cbranch_scc0 L_compA')
cur_m0[0] = None
pre = [x for sc_ in sched[:iB] for x in sc_]
assert ('W', 15) in pre + issued
nonw = [x for x in pre if x[0] != 'W']
for it in nonw: issue(it)
e(f's_waitcnt vmcnt({4 + len(nonw)})')
e('s_branch L_compB')
lab('L_compA')
cur_m0[0] = None
for si, stage in enumerate(STAGES):
    if stage[0] == 8:
        lab('L_compB'); cur_m0[0] = None
        upto = list(issued)
    idx = max(issued.index(('W', stage[-1])), issued.index(('X', int(stage[-1] >= 8))))
    e(f's_waitcnt vmcnt({len([x for x in issued[idx+1:] if x[0] != chr(84)])})')
    for it in sched[si]: issue(it); issued.append(it)
    e('s_barrier')
    if stage[0] == 8: stamp(3)
    if stage[0] == 0 and 'estamp' in opts: stamp(20)
    if stage[0] == 6 and 'echo' in opts: stamp(13)
    ts = sorted(set(s >> 1 for s in stage))
    for t in ts:
        if (2*t) in stage:
            e(f'ds_read_b128 v[{vXF+4*(t&1)}:{vXF+4*(t&1)+3}], v{vXL} offset:{t*1024}')
    for i, s in enumerate(stage):
        b = vW + 4*i
        e(f'ds_read_b64_tr_b16 v[{b}:{b+1}], v{vRD1} offset:{s*1024}')
        e(f'ds_read_b64_tr_b16 v[{b+2}:{b+3}], v{vRD1} offset:{16384+s*1024}')
    for i, s in enumerate(stage):
        b = vW + 4*i
        e(f's_waitcnt lgkmcnt({2*(len(stage)-1-i)})')
        acc = vACC + 4*(s & 1); t = s >> 1
        xf = vXF + 4*(t & 1)
        e(f'v_mfma_f32_16x16x32_bf16 v[{acc}:{acc+3}], v[{b}:{b+3}], v[{xf}:{xf+3}], v[{acc}:{acc+3}]')
stamp(4)
e(f's_mov_b32 s{sCNT}, {POLL_MAX}')
e('s_nop 6')
for r in range(4):
    e(f'v_add_f32_dpp v{vPP+r}, v{vACC+4+r}, v{vACC+r} row_ror:8 row_mask:0xf bank_mask:0xf')
for r in range(4):
    e(f'v_bfi_b32 v{vPP+r}, v{vFF}, s{sTI+r}, v{vPP+r}')
def pub1(sc):
    e(f's_mov_b64 exec, s[{sLO}:{sLO+1}]')
    e(f'buffer_store_dwordx4 v[{vPP}:{vPP+3}], v{vL16}, s[{SW}:{SW+3}], s{sP} offen{sc}')
    e('s_mov_b64 exec, -1')
pub1('')
stamp(5)
e(f's_cmp_lg_u32 s{sNOP2}, 0')
e('s_cbranch_scc1 L_reduce')
seq = issued[issued.index(('W', 15))+1:] + [('S', 0)]
if 'puback' in opts: e('s_waitcnt vmcnt(0)')
if 'nopubbar' not in opts: e('s_barrier')
def tbl_load():
    e(f'buffer_load_dwordx2 v[{vTB}:{vTB+1}], v{vTR}, s[{SW}:{SW+3}], s{sTROW} offen offset:{TBASE} sc1')
def tbl_check(lbl):
    e(f'v_cmp_eq_u64 s[{sLOC}:{sLOC+1}], s[{sTAG}:{sTAG+1}], v[{vTB}:{vTB+1}]')
    if 'nolocal' in opts: e(f's_mov_b64 s[{sLOC}:{sLOC+1}], 0')
    e(f's_cmp_eq_u64 s[{sLOC}:{sLOC+1}], -1')
    e(f's_cbranch_scc1 {lbl}')
    pub1(' sc1')
    lab(lbl)
def small_loads():
    tbl_load(); seq.append(('T', 1))
    e(f'buffer_load_ushort v{vXR}, v{vOUT}, s[{SX}:{SX+3}], 0 offen'); seq.append(('R', 0))
    e(f'buffer_load_dwordx4 v[{vRG}:{vRG+3}], v{vRB}, s[{SW}:{SW+3}], 0 offen offset:{RBASE} sc1'); seq.append(('R', 1))
if 'smalllast' not in opts: small_loads()
if KB:
    assert tail_items[:KB] == [('D', u) for u in BEARLY], tail_items
    e(f's_and_b32 s{sTMP}, s{sCB}, 3')
    e(f's_cmp_eq_u32 s{sTMP}, 1')
    e('s_cbranch_scc1 L_skipb')
for n_, it in enumerate(tail_items):
    if KB and n_ == KB: lab('L_skipb'); cur_m0[0] = None
    if 'dwin' in opts and n_ >= int(opts['dwin']): e(f's_waitcnt vmcnt({int(opts["dwin"])-1})')
    issue(it); seq.append(it)
if 'smalllast' in opts: small_loads()
afterD = len(seq) - 1 - seq.index(('D', DORD[-1]))
e(f's_waitcnt vmcnt({afterD + PW})')
def hloads():
    e(f'buffer_load_dwordx4 v[{vG}:{vG+3}], v{vL16}, s[{SW}:{SW+3}], s{sH} offen sc1')
hloads()
e(f's_waitcnt vmcnt({afterD + 1})')
e('s_barrier')
stamp(6)
for s in range(4):
    for sub, va in ((0, vRDA), (1, vRDB)):
        b = vWD + 8*s + 4*sub
        e(f'ds_read_b64_tr_b16 v[{b}:{b+1}], v{va} offset:{s*1024}')
        e(f'ds_read_b64_tr_b16 v[{b+2}:{b+3}], v{va} offset:{s*1024+4096}')
e('s_waitcnt vmcnt(1)')
tbl_check('L_tc1')
e('s_branch L_pollhw')
lab('L_pollh')
e(f's_sub_u32 s{sCNT}, s{sCNT}, 1')
e('s_cbranch_scc1 L_pollh_done')
hloads()
lab('L_pollhw')
e('s_waitcnt vmcnt(0)')
e(f'v_cmp_ne_u64 vcc, s[{sT64}:{sT64+1}], v[{vG+2}:{vG+3}]')
e('s_cbranch_vccnz L_pollh')
lab('L_pollh_done')
e(f'ds_write_b64 v{vHW}, v[{vG}:{vG+1}]')
stamp(7)
e(f's_mov_b64 exec, s[{sLO}:{sLO+1}]')
e('s_waitcnt lgkmcnt(0)')
e('s_barrier')
for s in range(4): e(f'ds_read_b128 v[{vH+4*s}:{vH+4*s+3}], v{vHR} offset:{64*s}')
e(f's_mov_b64 exec, s[{sHI}:{sHI+1}]')
for s in range(4): e(f'ds_read_b128 v[{vH+16+4*s}:{vH+16+4*s+3}], v{vHR} offset:{64*s}')
e('s_mov_b64 exec, -1')
for k in range(8):
    sub, s = k >> 2, k & 3
    e(f's_waitcnt lgkmcnt({7-k})')
    b = vWD + 8*s + 4*sub
    c = '0' if k == 0 else f'v[{vACC}:{vACC+3}]'
    e(f'v_mfma_f32_16x16x32_bf16 v[{vACC}:{vACC+3}], v[{b}:{b+3}], v[{vH+4*k}:{vH+4*k+3}], {c}')
e(f's_cmp_eq_u64 s[{sLOC}:{sLOC+1}], -1')
e('s_nop 6')
for r in range(4):
    e(f'v_bfi_b32 v{vP+r}, v{vFF}, s{sTI+r}, v{vACC+r}')
e('s_cbranch_scc0 L_far')
e(f'buffer_store_dwordx4 v[{vP}:{vP+3}], v{vPUB2}, s[{SW}:{SW+3}], 0 offen')
if 'cleanp' in opts:
    e(f's_cmp_eq_u32 s{sWV}, 0')
    e('s_cbranch_scc1 L_fin')
    pub1(' sc1')
lab('L_fin')
stamp(8)
e(f's_mov_b32 s{sCNT}, {POLL_MAX}')
def check(g):
    e(f'v_perm_b32 v{vP+4}, v{g+1}, v{g}, s{sSEL0}')
    e(f'v_perm_b32 v{vP+5}, v{g+3}, v{g+2}, s{sSEL0}')
    e(f'v_cmpx_eq_u64 vcc, s[{sEXP}:{sEXP+1}], v[{vP+4}:{vP+5}]')
def strip(g, first):
    for r in range(4): e(f'v_xor_b32 v{g+r}, s{sTB+r}, v{g+r}')
    if first: e(f'v_or_b32 v{vP+4}, v{g}, v{g+1}')
    else: e(f'v_or3_b32 v{vP+4}, v{vP+4}, v{g}, v{g+1}')
    e(f'v_or3_b32 v{vP+4}, v{vP+4}, v{g+2}, v{g+3}')
def strip_test(lbl):
    e(f'v_and_b32 v{vP+4}, 0x7f, v{vP+4}')
    e(f'v_cmp_ne_u32 vcc, 0, v{vP+4}')
    e(f's_cbranch_vccnz {lbl}')
def padd(a, b):
    e(f'v_pk_add_f32 v[{vG+4*a}:{vG+4*a+1}], v[{vG+4*a}:{vG+4*a+1}], v[{vG+4*b}:{vG+4*b+1}]')
    e(f'v_pk_add_f32 v[{vG+4*a+2}:{vG+4*a+3}], v[{vG+4*a+2}:{vG+4*a+3}], v[{vG+4*b+2}:{vG+4*b+3}]')
def yload():
    e(f'buffer_load_dwordx4 v[{vG+4}:{vG+7}], v{vY4}, s[{SW}:{SW+3}], s{sY} offen sc1')
e('s_mov_b32 exec_hi, 0x00ffffff')
yload()
e('s_mov_b32 exec_hi, -1')
lab('L_rchk')
strip(vRG, True)
strip_test('L_rpoll')
for r in range(4): e(f'v_mov_b32 v{vG+r}, 0')
e(f'v_and_b32 v{vRS}, 0xffff0000, v{vRG}')
e(f'v_lshlrev_b32 v{vXR}, 16, v{vXR}')
e(f'v_fma_f32 v{vXR}, v{vXR}, 0, v{vXR}')
e('s_mov_b32 exec_hi, 0x00ffffff')
e('s_branch L_poll2w')
lab('L_poll2')
e(f's_sub_u32 s{sCNT}, s{sCNT}, 1')
e('s_cbranch_scc1 L_poll2_done')
yload()
lab('L_poll2w')
e('s_waitcnt vmcnt(0)')
for r in range(4): e(f'v_xor_b32 v{vG+r}, s{sTB+r}, v{vG+4+r}')
e(f'v_or_b32 v{vP+4}, v{vG}, v{vG+1}')
e(f'v_or3_b32 v{vP+4}, v{vP+4}, v{vG+2}, v{vG+3}')
strip_test('L_poll2')
lab('L_poll2_done')
e('s_mov_b32 exec_hi, -1')
stamp(9)
e(f'v_permlane32_swap_b32 v{vG}, v{vG+2}')
e(f'v_permlane32_swap_b32 v{vG+1}, v{vG+3}')
e(f'v_add_f32 v{vG}, v{vG}, v{vG+2}')
e(f'v_add_f32 v{vG+1}, v{vG+1}, v{vG+3}')
e('s_nop 1')
e(f'v_permlane16_swap_b32 v{vG}, v{vG+1}')
e(f'v_add_f32 v{vG}, v{vG}, v{vG+1}')
for sh in (8, 4, 2):
    e('s_nop 1')
    e(f'v_add_f32_dpp v{vG}, v{vG}, v{vG} row_ror:{sh} row_mask:0xf bank_mask:0xf')
e(f'v_cvt_pk_bf16_f32 v{vG}, v{vG}, v{vG}')
e(f'v_lshlrev_b32 v{vG}, 16, v{vG}')
e(f'v_mul_f32 v{vG}, v{vG}, v{vRS}')
e(f'v_cvt_pk_bf16_f32 v{vG}, v{vG}, v{vG}')
e(f'v_lshlrev_b32 v{vG}, 16, v{vG}')
e(f'v_add_f32 v{vG}, v{vG}, v{vXR}')
e(f'v_cvt_pk_bf16_f32 v{vG}, v{vG}, v{vG}')
e('s_mov_b32 exec_lo, 0x00030003'); e('s_mov_b32 exec_hi, 0x00030003')
e(f'buffer_store_short v{vG}, v{vOUT}, s[{SO}:{SO+3}], 0 offen{OUTSC}')
e(f's_or_b32 s{sTMP}, s{sTASK}, s{sWV}')
e('s_cbranch_scc1 L_fin_done')
e('s_mov_b64 exec, 1')
e(f'v_mov_b32 v{vT1}, s{sTAG}')
e(f'buffer_store_dword v{vT1}, v{vL16}, s[{SW}:{SW+3}], 0 offen')
lab('L_fin_done')
if 'echo' in opts:
    i_, j_ = map(int, opts['echo'].split(','))
    e('s_waitcnt vmcnt(0)')
    stamp(10)
    e(f's_cmp_lg_u32 s{sWV}, 0')
    e('s_cbranch_scc1 L_end')
    e(f's_cmp_lg_u32 s2, {opts.get("ewg", 68)}')
    e('s_cbranch_scc1 L_end')
    e('s_waitcnt lgkmcnt(0)')
    e(f's_sub_u32 s96, s{68+2*i_}, s{68+2*j_}')
    e(f's_mul_i32 s96, s96, {opts.get("ek", 2)}')
    e('s_min_u32 s96, s96, 20000')
    if 'eloc' in opts:
        e(f's_cmp_eq_u64 s[{sLOC}:{sLOC+1}], -1')
        e('s_cselect_b32 s96, 0, 1000')
    lab('L_echo')
    e('s_memrealtime s[98:99]')
    e('s_waitcnt lgkmcnt(0)')
    e('s_sub_u32 s98, s98, s88')
    e('s_cmp_lt_u32 s98, s96')
    e('s_cbranch_scc1 L_echo')
if STAMPS and 'echo' not in opts:
    e('s_waitcnt vmcnt(0)')
    stamp(10)
    e('s_waitcnt lgkmcnt(0)')
    n = 13
    e('s_mov_b64 exec, 1')
    e(f's_lshl_b32 s{sTMP}, s2, 2')
    e(f's_add_u32 s{sTMP}, s{sTMP}, s{sWV}')
    e(f's_lshl_b32 s{sTMP}, s{sTMP}, 6')
    e(f's_add_u32 s{sTMP}, s{sTMP}, {STAMPBASE}')
    for i in range(n):
        e(f'v_mov_b32 v{vT1}, s{SB(i)}')
        e(f'buffer_store_dword v{vT1}, v{vL16}, s[{SW}:{SW+3}], s{sTMP} offen offset:{4*i}')
        e('s_nop 0')
lab('L_end')
e('s_endpgm')
lab('L_far')
e(f'buffer_store_dwordx4 v[{vP}:{vP+3}], v{vPUB2}, s[{SW}:{SW+3}], 0 offen sc1')
e('s_branch L_fin')
lab('L_rpoll')
e(f's_sub_u32 s{sCNT}, s{sCNT}, 1')
e('s_cbranch_scc1 L_fin_done')
e(f'buffer_load_dwordx4 v[{vRG}:{vRG+3}], v{vRB}, s[{SW}:{SW+3}], 0 offen offset:{RBASE} sc1')
e('s_waitcnt vmcnt(0)')
e('s_branch L_rchk')

lab('L_reduce')
e(f'v_mov_b32 v{vGR+4}, s{sT64}'); e(f'v_mov_b32 v{vGR+5}, s{sT64+1}')
e(f's_mov_b32 s{sCNT}, {POLL_MAX}')
e(f's_mov_b32 s{sTMP}, 0xbfb8aa3b')
e(f's_mov_b32 s{sTMP2}, 0xffff0000')
lab('L_poll1')
e(f's_cmp_lg_u32 s{sCNT}, {POLL_MAX - KFALL}')
e('s_cbranch_scc1 L_poll1b')
pub1(' sc1')
lab('L_poll1b')
def ld1(i, so, imm):
    e(f'buffer_load_dwordx4 v[{vG+4*i}:{vG+4*i+3}], v{vQ}, s[{SW}:{SW+3}], s{so} offen offset:{imm} sc1')
e(f's_sub_u32 s{sCNT}, s{sCNT}, 1')
e('s_cbranch_scc1 L_poll1_done')
ld1(0, sQ, 0); ld1(1, sQ2, 0); ld1(2, sQ, 128); ld1(3, sQ2, 128)
for i in range(4):
    e(f's_waitcnt vmcnt({3-i})')
    strip(vG + 4*i, i == 0)
    if i == 1: padd(0, 1)
strip_test('L_poll1')
lab('L_poll1_done')
stamp(11)
padd(2, 3)
e(f's_cmp_lg_u32 s{sK3}, 3')
e('s_cbranch_scc1 L_act')
for i in (0, 1, 2, 3, 8, 9, 10, 11):
    e(f'v_add_f32_dpp v{vG+i}, v{vG+i}, v{vG+i} row_ror:8 row_mask:0xf bank_mask:0xf')
lab('L_act')
R = vG; U = vG + 8; P = vP
e(f'v_cvt_pk_bf16_f32 v{P}, v{R}, v{R+1}')
e(f'v_cvt_pk_bf16_f32 v{P+1}, v{R+2}, v{R+3}')
e(f'v_lshlrev_b32 v{R}, 16, v{P}')
e(f'v_and_b32 v{R+1}, s{sTMP2}, v{P}')
e(f'v_lshlrev_b32 v{R+2}, 16, v{P+1}')
e(f'v_and_b32 v{R+3}, s{sTMP2}, v{P+1}')
for r in range(4): e(f'v_mul_f32 v{P+r}, s{sTMP}, v{R+r}')
for r in range(4): e(f'v_exp_f32 v{P+r}, v{P+r}')
e(f'v_cvt_pk_bf16_f32 v{P+6}, v{U}, v{U+1}')
e(f'v_cvt_pk_bf16_f32 v{P+7}, v{U+2}, v{U+3}')
e(f'v_pk_add_f32 v[{P}:{P+1}], v[{P}:{P+1}], 1.0 op_sel_hi:[1,0]')
e(f'v_pk_add_f32 v[{P+2}:{P+3}], v[{P+2}:{P+3}], 1.0 op_sel_hi:[1,0]')
for r in range(4): e(f'v_rcp_f32 v{P+r}, v{P+r}')
e(f'v_lshlrev_b32 v{U}, 16, v{P+6}')
e(f'v_and_b32 v{U+1}, s{sTMP2}, v{P+6}')
e(f'v_lshlrev_b32 v{U+2}, 16, v{P+7}')
e(f'v_and_b32 v{U+3}, s{sTMP2}, v{P+7}')
e(f'v_pk_mul_f32 v[{P}:{P+1}], v[{P}:{P+1}], v[{R}:{R+1}]')
e(f'v_pk_mul_f32 v[{P+2}:{P+3}], v[{P+2}:{P+3}], v[{R+2}:{R+3}]')
e(f'v_cvt_pk_bf16_f32 v{P+4}, v{P}, v{P+1}')
e(f'v_cvt_pk_bf16_f32 v{P+5}, v{P+2}, v{P+3}')
e(f'v_lshlrev_b32 v{P}, 16, v{P+4}')
e(f'v_and_b32 v{P+1}, s{sTMP2}, v{P+4}')
e(f'v_lshlrev_b32 v{P+2}, 16, v{P+5}')
e(f'v_and_b32 v{P+3}, s{sTMP2}, v{P+5}')
e(f'v_pk_mul_f32 v[{P}:{P+1}], v[{P}:{P+1}], v[{U}:{U+1}]')
e(f'v_pk_mul_f32 v[{P+2}:{P+3}], v[{P+2}:{P+3}], v[{U+2}:{U+3}]')
e(f'v_cvt_pk_bf16_f32 v{vGR+2}, v{P}, v{P+1}')
e(f'v_cvt_pk_bf16_f32 v{vGR+3}, v{P+2}, v{P+3}')
e(f'buffer_store_dwordx4 v[{vGR+2}:{vGR+5}], v{vHP}, s[{SW}:{SW+3}], 0 offen sc1')
stamp(12)
if 'norbar' not in opts: e('s_barrier')
if 'f1prod' not in opts: yprefetch()
tbl_load()
e(f'buffer_load_ushort v{vXR}, v{vOUT}, s[{SX}:{SX+3}], 0 offen')
e(f'buffer_load_dwordx4 v[{vRG}:{vRG+3}], v{vRB}, s[{SW}:{SW+3}], 0 offen offset:{RBASE} sc1')
e('s_waitcnt vmcnt(0)')
tbl_check('L_tc2')
e('s_branch L_fin')

lab('L_router')
e(f's_load_dwordx2 s[{SR}:{SR+1}], s[0:1], 8')
srdc(SR, 2048)
common_consts()
e(f's_lshl1_add_u32 s{sKK}, s{sSLOT}, s{sWV}')
e(f's_lshl_b32 s{sTMP2}, s{sKK}, 11')
e(f's_mov_b32 s{sP}, {PBASE + 7*16384 + 8192}')
e('s_waitcnt lgkmcnt(0)')
e(f's_load_dword s{sTAG}, s[{SW}:{SW+1}], 0')
e(f'buffer_load_dwordx4 v[{vRX}:{vRX+3}], v{vL16}, s[{SX}:{SX+3}], s{sTMP2} offen')
e(f'buffer_load_dwordx4 v[{vRX+4}:{vRX+7}], v{vL16}, s[{SX}:{SX+3}], s{sTMP2} offen offset:1024')
e(f'buffer_load_dwordx4 v[{vRX+8}:{vRX+11}], v{vL16}, s[{SR}:{SR+3}], 0 offen')
e(f'buffer_load_dwordx4 v[{vRX+12}:{vRX+15}], v{vL16}, s[{SR}:{SR+3}], 0 offen offset:1024')
e(f'v_mov_b32 v{vRS}, 0')
rsetup()
e('s_waitcnt lgkmcnt(0)')
common_tag()
e(f's_cmp_gt_u32 s{sWV}, 1')
e('s_cbranch_scc1 L_reduce')
e('s_waitcnt vmcnt(0)')
for i in range(8):
    e(f'v_dot2c_f32_bf16 v{vRS}, v{vRX+i}, v{vRX+8+i}')
e('s_nop 2')
for sh in (1, 2, 4, 8):
    e(f'v_add_f32_dpp v{vRS}, v{vRS}, v{vRS} row_ror:{sh} row_mask:0xf bank_mask:0xf')
    e('s_nop 1')
e(f'v_mov_b32 v{vT1}, v{vRS}')
e('s_nop 1')
e(f'v_permlane16_swap_b32 v{vRS}, v{vT1}')
e(f'v_add_f32 v{vRS}, v{vRS}, v{vT1}')
e(f'v_mov_b32 v{vT1}, v{vRS}')
e('s_nop 1')
e(f'v_permlane32_swap_b32 v{vRS}, v{vT1}')
e(f'v_add_f32 v{vRS}, v{vRS}, v{vT1}')
e(f'v_cvt_pk_bf16_f32 v{vRS}, v{vRS}, v{vRS}')
e(f'v_lshlrev_b32 v{vRS}, 16, v{vRS}')
e(f'v_mul_f32 v{vRS}, 0xbfb8aa3b, v{vRS}')
e(f'v_exp_f32 v{vRS}, v{vRS}')
e('s_nop 0')
e(f'v_add_f32 v{vRS}, 1.0, v{vRS}')
e(f'v_rcp_f32 v{vRS}, v{vRS}')
e('s_nop 0')
e(f'v_cvt_pk_bf16_f32 v{vRS}, v{vRS}, v{vRS}')
e(f'v_bfi_b32 v{vP}, v{vFF}, s{sTI}, v{vRS}')
for r in range(1, 4): e(f'v_mov_b32 v{vP+r}, s{sTB+r}')
e(f's_lshl_b32 s{sTMP}, s{sKK}, 4')
e('s_mov_b64 exec, 1')
e(f'buffer_store_dwordx4 v[{vP}:{vP+3}], v{vL16}, s[{SW}:{SW+3}], s{sTMP} offen offset:{RBASE} sc1')
e('s_mov_b64 exec, -1')
e('s_branch L_reduce')
lab('L_codeend')
o += ['.section .rodata,"a"', '.p2align 6', f'.amdhsa_kernel {NAME}',
      f'  .amdhsa_next_free_vgpr {NV}', '  .amdhsa_next_free_sgpr 100', f'  .amdhsa_accum_offset {NV}',
      '  .amdhsa_group_segment_fixed_size 0', '  .amdhsa_kernarg_size 64', '  .amdhsa_user_sgpr_count 2',
      '  .amdhsa_user_sgpr_kernarg_segment_ptr 1', '  .amdhsa_system_sgpr_workgroup_id_x 1',
      '  .amdhsa_float_denorm_mode_32 3',
      '.end_amdhsa_kernel']
print('\n'.join(o))
```

```python
import sys
opts = dict(a.split('=') if '=' in a else (a, '1') for a in sys.argv[1:])
STAMPS = 'stamps' in opts
NT1 = '' if 'nont1' in opts else ' nt'
NT2 = '' if 'nont2' in opts else ' nt'
FSC = ' ' + opts.get('fsc', 'none').replace('+', ' ').replace('none', '')
OUTSC = ' ' + opts.get('outsc', '').replace('+', ' ')
TS = '' if 'tplain' in opts else ' sc1'
HS = opts.get('hs', 'sc1').replace('+', ' '); HL = opts.get('hl', 'sc1').replace('+', ' ')
NAME = 'standalone__moe_arch_mod__decode_kernel'
NWG = 256
LDS_X = 65536
LDS_H = LDS_X
DREG = {(0, 0): 0, (0, 1): 73728, (1, 0): 16384, (1, 1): 32768}
LDS_TOTAL = 108800
RBASE = 1024
TBASE = 2048
PBASE = 4096
YBASE = PBASE + 56 * 16384
YS = 3584
HBASE = YBASE + 256 * YS
STAMPBASE = 3 << 20
WS_SIZE = 4 << 20
OOB = 0x10000000
assert HBASE + 56 * 2048 <= (2 << 20)
POLL_MAX = 1 << 20
STAGES = eval(opts.get('stages', '[[0,1],[2,3],[4,5],[6,7],[8,9],[10,11],[12,13],[14],[15]]'))
PRO = int(opts.get('pro', 10))
NISS = eval(opts.get('niss', '[2,2,2,2,1,0,0,0,0]'))
PW = int(opts.get('pw', 2))
KB = int(opts.get('kb', 1))
KFALL = int(opts.get('kfall', 40))


DOC = """
; ---------------------------------------------------------------------------------------------------------
; ---------------------------------------------------------------------------------------------------------
"""
o = []
def e(s): o.append('    ' + s)
def lab(s): o.append(s + ':')
nstamp = [0]
SB = lambda i: 68 + 2*i if i < 12 else 30
def stamp(i):
    if 'estamp' in opts and (i == 0 or i == int(opts['estamp'])):
        e('s_memrealtime s[88:89]')
    if STAMPS:
        nstamp[0] = max(nstamp[0], i + 1)
        e(f's_memrealtime s[{SB(i)}:{SB(i)+1}]')

hdr = open('standalone__moe_arch_mod__decode.s.ref').read().split('\n')
for l in hdr:
    if l.startswith('; @launch'):
        o.append(f'; @launch grid=({NWG},1,1) block=(256,1,1) lds={LDS_TOTAL}')
        break
    o.append(l)
o += DOC.strip().split('\n')
o += ['.amdgcn_target "amdgcn-amd-amdhsa--gfx950"', '.text', f'.globl {NAME}', '.p2align 8',
      f'.type {NAME},@function', f'{NAME}:']

SM, SD, SX, SW, SO, SR = 4, 8, 12, 16, 20, 24
sTAG = 28
sEXP = 30
sTB = 32
sCT, sMEM, sC3, sWV, sTMP, sTMP2, sP, sCNT, sTASK, sROW0, sQ, sKK, sSEL0, sMW, sXCD, sSLOT = range(36, 52)
sLO, sHI = 52, 54
sNOP2, sMD, sMX, sPOS, sQ2, sK3 = 56, 57, 58, 59, 60, 61
sLOC = 62
sT64 = 64
sY = 66; sTROW = 67; sMA = 3; sH = 27; sCB = 96; sTI = 92
vL, vT0, vT1, vT2, vA, vB, vX, vD, vRD1, vRDA, vL16, vTR, vPUB2, vFF, vHP, vP1 = range(1, 17)
vWV = 17; vOUT = 18; vXR = 19; vRS = 20; vXL = 21; vRA = 22; vRDB = 23
vXF = 24
vACC = 32
vW = 48
vWD = 64
vG = 96
vP = 128
vPP = 140
vGR = 144
vQ = 150; vTA = 151; vTB = 152; vY4 = 154; vHW = 155; vHR = 156; vPF = 157; vRB = 158
vH = 160
vRG = 192
vRX = 64
NV = 196

def srdc(s, sz):
    e(f's_mov_b32 s{s+2}, {sz}'); e(f's_mov_b32 s{s+3}, 0x20000')
def common_tag():
    e(f's_mul_i32 s{sTAG}, s{sTAG}, 1664525')
    e(f's_add_u32 s{sTAG}, s{sTAG}, 1013904223')
    e(f'v_mov_b32 v{vTB}, s{sTAG}')
    e(f'v_mov_b32 v{vTB+1}, s{sTAG+1}')
    e(f'v_lshlrev_b32 v{vT1}, 22, v0')
    e(f's_lshl_b32 s{sTMP}, s{sTASK}, 3')
    e(f'buffer_store_dwordx2 v[{vTB}:{vTB+1}], v{vT1}, s[{SW}:{SW+3}], s{sTMP} offen offset:{TBASE}{TS}')
    for r in range(4):
        e(f's_bfe_u32 s{sTB+r}, s{sTAG}, {hex(0x70000 + 7*r)}')
        e(f's_or_b32 s{sTI+r}, s{sTB+r}, 0x80')
    e(f's_mov_b32 s{sT64}, s{sTAG}')
    e(f's_mul_i32 s{sT64+1}, s{sTAG}, 0x9e3779b1')
def common_consts():
    srdc(SO, 16384)
    e(f's_mov_b32 s{sLO}, 0x00ff00ff'); e(f's_mov_b32 s{sLO+1}, 0x00ff00ff')
    e(f's_not_b64 s[{sHI}:{sHI+1}], s[{sLO}:{sLO+1}]')
    e(f'v_mov_b32 v{vFF}, 0xff')
    e(f's_lshl_b32 s{sTMP}, s{sXCD}, 2')
    e(f's_lshr_b32 s{sCB}, {opts.get("perm", "0x76243510")}, s{sTMP}')
    e(f's_and_b32 s{sCB}, s{sCB}, 7')
    e(f's_lshl_b32 s{sTASK}, s{sCB}, 5')
    e(f's_add_u32 s{sTASK}, s{sTASK}, s{sSLOT}')
    e(f's_getreg_b32 s{sTAG+1}, hwreg(HW_REG_XCC_ID, 0, 4)')
    e(f's_lshl_b32 s{sTROW}, s{sCB}, 8')
    e(f'v_and_b32 v{vTR}, 31, v{vL}')
    e(f'v_lshlrev_b32 v{vTR}, 3, v{vTR}')
    e(f's_mul_i32 s{sY}, s{sTASK}, {YS}')
    e(f's_add_u32 s{sY}, s{sY}, {YBASE}')
    e(f'v_and_b32 v{vT1}, 7, v{vL}')
    e(f'v_lshlrev_b32 v{vRA}, 4, v{vT1}')
    e(f'v_and_b32 v{vT1}, 1, v{vL}')
    e(f'v_lshl_add_u32 v{vT1}, v{vWV}, 1, v{vT1}')
    e(f'v_lshlrev_b32 v{vRB}, 4, v{vT1}')
    e(f'v_lshlrev_b32 v{vOUT}, 11, v{vT1}')
    e(f'v_lshrrev_b32 v{vT1}, 4, v{vL}')
    e(f'v_lshl_add_u32 v{vOUT}, v{vT1}, 1, v{vOUT}')
    e(f's_lshl_b32 s{sTMP}, s{sTASK}, 3')
    e(f'v_add_u32 v{vOUT}, s{sTMP}, v{vOUT}')
    e(f'v_lshrrev_b32 v{vT1}, 1, v{vL}')
    e(f'v_lshl_add_u32 v{vY4}, v{vT1}, 7, v{vRB}')
    e(f'v_and_b32 v{vP1}, 0x37f, v{vL16}')

def rsetup():
    e(f's_lshl_b32 s{sTMP}, s{sSLOT}, 2')
    e(f's_lshr_b32 s{sQ}, 0x3520, s{sTMP}')
    e(f's_and_b32 s{sQ}, s{sQ}, 15')
    e(f's_lshl3_add_u32 s{sQ}, s{sXCD}, s{sQ}')
    e(f's_lshr_b32 s{sTMP2}, 0x0121, s{sTMP}')
    e(f's_lshr_b32 s{sQ2}, 0x0888, s{sTMP}')
    e(f's_lshl2_add_u32 s{sTMP}, s{sTMP}, 7')
    e(f's_cmp_eq_u32 s{sXCD}, 7')
    e(f's_cselect_b32 s{sQ}, s{sTMP}, s{sQ}')
    e(f's_cselect_b32 s{sTMP2}, s{sQ2}, s{sTMP2}')
    e(f's_cselect_b32 s{sK3}, 0, s{sSLOT}')
    e(f's_and_b32 s{sTMP2}, s{sTMP2}, 15')
    e(f's_lshl_b32 s{sTMP}, s{sTMP2}, 1')
    e(f's_cmp_eq_u32 s{sK3}, 3')
    e(f's_cselect_b32 s{sTMP}, 1, s{sTMP}')
    e(f'v_bfe_u32 v{vT0}, v{vL}, 3, 1')
    e(f'v_mul_u32_u24 v{vT1}, s{sTMP}, v{vT0}')
    e(f'v_lshl_add_u32 v{vQ}, v{vT1}, 13, v{vP1}')
    e(f'v_mul_u32_u24 v{vT0}, s{sTMP2}, v{vT0}')
    e(f'v_lshl_add_u32 v{vHP}, v{vT0}, 11, v{vRA}')
    e(f'v_lshrrev_b32 v{vT1}, 4, v{vL}')
    e(f'v_lshl_add_u32 v{vHP}, v{vT1}, 7, v{vHP}')
    e(f's_lshl2_add_u32 s{sTMP}, s{sQ}, s{sWV}')
    e(f's_lshl_b32 s{sTMP}, s{sTMP}, 9')
    e(f's_add_u32 s{sTMP}, s{sTMP}, {HBASE}')
    e(f'v_add_u32 v{vHP}, s{sTMP}, v{vHP}')
    e(f's_lshl4_add_u32 s{sQ}, s{sQ}, s{sWV}')
    e(f's_lshl_b32 s{sQ}, s{sQ}, 10')
    e(f's_add_u32 s{sQ}, s{sQ}, {PBASE}')
    e(f's_add_u32 s{sQ2}, s{sQ}, 4096')
    e(f'v_min_u32 v{vPF}, 55, v{vL}')
    e(f's_lshl2_add_u32 s{sTMP}, s{sSLOT}, s{sWV}')
    e(f's_mul_i32 s{sTMP}, s{sTMP}, 56')
    e(f'v_add_lshl_u32 v{vPF}, v{vPF}, s{sTMP}, 7')
def rprefetch():
    for so, imm in ((sQ, 0), (sQ2, 0), (sQ, 128), (sQ2, 128)):
        e(f'buffer_load_dword v{vTA}, v{vQ}, s[{SW}:{SW+3}], s{so} offen offset:{imm}')
    if 'nopre' not in opts:
        e(f's_mov_b32 s{sTMP}, {HBASE}')
        e(f'buffer_load_dword v{vTA}, v{vPF}, s[{SW}:{SW+3}], s{sTMP} offen')
    if 'f1early' in opts: yprefetch()
def yprefetch():
    e(f's_mul_i32 s{sTMP}, s{sCB}, {32*YS}')
    e(f's_add_u32 s{sTMP}, s{sTMP}, {YBASE}')
    e(f'buffer_load_dword v{vTA}, v{vPF}, s[{SW}:{SW+3}], s{sTMP} offen')

stamp(0)
e(f's_and_b32 s{sTMP}, s2, 8')
e(f's_add_u32 s{sTMP}, s{sTMP}, 16')
e(f's_load_dwordx2 s[{SM}:{SM+1}], s[0:1], s{sTMP}')
e(f's_load_dwordx2 s[{SX}:{SX+1}], s[0:1], 0')
e(f's_load_dwordx2 s[{SW}:{SW+1}], s[0:1], 56')
e(f's_load_dwordx2 s[{SD}:{SD+1}], s[0:1], 32')
e(f's_load_dwordx2 s[{SO}:{SO+1}], s[0:1], 40')
e(f's_cmp_ge_u32 s2, {NWG}')
e('s_cbranch_scc1 L_end')
if 'nocpf' not in opts:
    e(f's_getpc_b64 s[{sT64}:{sT64+1}]')
    lab('L_pc')
    e(f'v_cmp_gt_u32 vcc, (L_codeend-L_pc)/128, v0')
    e(f's_and_saveexec_b64 s[{sLOC}:{sLOC+1}], vcc')
    e('s_cbranch_execz L_nocpf')
    e(f'v_lshlrev_b32 v{vT0}, 7, v0')
    e(f'global_load_dword v{vTA}, v{vT0}, s[{sT64}:{sT64+1}] offset:124')
    lab('L_nocpf')
    e(f's_mov_b64 exec, s[{sLOC}:{sLOC+1}]')
e(f'v_lshrrev_b32 v{vWV}, 6, v0')
e(f'v_and_b32 v{vL}, 63, v0')
e(f'v_readfirstlane_b32 s{sWV}, v{vWV}')
e(f's_and_b32 s{sXCD}, s2, 7')
e(f's_lshr_b32 s{sSLOT}, s2, 3')
e(f's_lshr_b32 s{sPOS}, s2, 5')
srdc(SM, 1024*3584*2); srdc(SX, 16384); srdc(SW, WS_SIZE)
e(f'v_lshlrev_b32 v{vL16}, 4, v{vL}')
e(f's_cmp_eq_u32 s{sXCD}, 7')
e('s_cbranch_scc1 L_x7')
e(f's_cmp_lt_u32 s{sPOS}, 5')
e(f's_subb_u32 s{sPOS}, s{sPOS}, 1')
e(f's_cmp_lt_u32 s{sSLOT}, 8')
e(f's_cselect_b32 s{sPOS}, 3, s{sPOS}')
e(f's_cselect_b32 s{sC3}, 1, 0')
e(f's_lshl3_add_u32 s{sCT}, s{sXCD}, s{sPOS}')
e('s_branch L_dec')
lab('L_x7')
e(f's_cmp_lt_u32 s{sSLOT}, 4')
e('s_cbranch_scc1 L_router')
e(f's_lshl3_add_u32 s{sCT}, s{sPOS}, -1')
e(f's_mov_b32 s{sC3}, 0')
lab('L_dec')
e(f's_lshl2_add_u32 s{sTMP}, s{sC3}, 3')
e(f's_and_b32 s{sMEM}, s{sSLOT}, s{sTMP}')
e(f's_lshr_b32 s{sKK}, s{sMEM}, 1')
e(f's_or_b32 s{sTMP}, s{sMEM}, 1')
e(f's_cmp_lg_u32 s{sC3}, 0')
e(f's_cselect_b32 s{sROW0}, s{sKK}, s{sTMP}')
e(f'v_lshrrev_b32 v{vT1}, 5, v{vL}')
e(f'v_bfe_u32 v{vT2}, v{vL}, 3, 2')
e(f'v_lshl_add_u32 v{vT0}, v{vT1}, 3, v{vT2}')
e(f'v_lshrrev_b32 v{vT2}, 3, v{vL}')
e(f'v_and_b32 v{vT2}, 6, v{vT2}')
e(f'v_sub_u32 v{vT2}, v{vL}, v{vT2}')
e(f'v_and_b32 v{vT2}, 7, v{vT2}')
e(f'v_lshlrev_b32 v{vT2}, 4, v{vT2}')
e(f's_and_b32 s{sTMP}, s{sWV}, 2')
e(f's_add_u32 s{sTMP}, s{sTMP}, s{sWV}')
e(f's_lshl_b32 s{sTMP2}, s{sROW0}, 6')
e(f's_add_u32 s{sTMP}, s{sTMP}, s{sTMP2}')
e(f's_mul_i32 s{sTMP}, s{sTMP}, {4*7168}')
e(f's_lshl_b32 s{sTMP2}, s{sCT}, 7')
e(f's_add_u32 s{sTMP}, s{sTMP}, s{sTMP2}')
e(f'v_mul_u32_u24 v{vB}, 7168, v{vT0}')
e(f'v_add3_u32 v{vB}, v{vB}, v{vT2}, s{sTMP}')
e(f's_cmp_lg_u32 s{sC3}, 0')
e(f's_cselect_b32 s{sTMP}, 0, {256*7168}')
e(f'v_subrev_u32 v{vA}, s{sTMP}, v{vB}')
e(f's_lshl_b32 s{sMW}, s{sWV}, 14')
e(f's_lshl_b32 s{sTMP2}, s{sC3}, 13')
e(f's_add_u32 s{sMA}, s{sMW}, s{sTMP2}')

cur_m0 = [None]
def set_m0(key, expr_reg, add):
    if cur_m0[0] == (key, add): return False
    cur_m0[0] = (key, add)
    if add: e(f's_add_u32 m0, s{expr_reg}, {add}')
    else: e(f's_mov_b32 m0, s{expr_reg}')
    return True
def issue(item):
    k, i = item
    if k == 'F':
        if i == 0: e(f'buffer_load_dword v{vTA}, v{vP1}, s[{SW}:{SW+3}], s{sP} offen{FSC}')
        elif i == 2: e(f'buffer_load_dword v{vTA}, v{vL16}, s[{SW}:{SW+3}], s{sH} offen{FSC}')
        else: e(f'buffer_load_dword v{vTA}, v{vPUB2}, s[{SW}:{SW+3}], 0 offen{FSC}')
        return
    if k == 'W':
        ch = set_m0('W', sMW, (i >> 2) * 4096) if i >= 8 else set_m0('A', sMA, (i >> 2) * 4096)
        imm = (i & 3) * 1024
        so = (i & 7) * 32 * 7168 - imm
        v, srd, nt = (vA if i < 8 else vB), SM, NT1
    elif k == 'D':
        gp, e4, chh = i >> 2, (i >> 1) & 1, i & 1
        ch = set_m0('D', sMD, DREG[(gp, chh)] + e4 * 4096)
        imm = 0
        so = (16*gp + 4*e4) * 2048 + chh * 128
        v, srd, nt = vD, SD, NT2
    else:
        ch = set_m0('X', sMX, i * 4096)
        imm = 0; so = 0
        v, srd, nt = (vXL if i == 0 else vX), SX, ''
    if so == 0:
        sof = '0'
        if ch: e('s_nop 0')
    else:
        e(f's_mov_b32 s{sTMP}, {so}'); sof = f's{sTMP}'
    e(f'buffer_load_dwordx4 v{v}, s[{srd}:{srd+3}], {sof} offen offset:{imm}{nt} lds')

def addr_x():
    e(f'v_and_b32 v{vT1}, 7, v{vL}')
    e(f'v_lshlrev_b32 v{vX}, 11, v{vT1}')
    e(f'v_and_b32 v{vT1}, 8, v{vL}')
    e(f'v_lshl_add_u32 v{vX}, v{vT1}, 3, v{vX}')
    e(f'v_and_b32 v{vT1}, 48, v{vL}')
    e(f's_lshl2_add_u32 s{sTMP}, s{sROW0}, s{sWV}')
    e(f's_lshl_b32 s{sTMP}, s{sTMP}, 7')
    e(f'v_add3_u32 v{vX}, v{vX}, v{vT1}, s{sTMP}')
    e(f's_cmp_lg_u32 s{sC3}, 0')
    e(f's_cselect_b32 s{sTMP}, 0, 512')
    e(f'v_subrev_u32 v{vXL}, s{sTMP}, v{vX}')
    e(f's_lshl_b32 s{sMX}, s{sWV}, 10')
    e(f's_add_u32 s{sMX}, s{sMX}, {LDS_X}')

FS = [('F', 0)] + ([] if 'nopre' in opts else [('F', 2)]) + ([('F', 1)] if 'f1prod' in opts else [])
FPOS = int(opts.get('fpos', 16))
NDR = max(0, PRO + sum(NISS) - 16 - len(FS))
if 'dold' in opts:
    DORD = [0, 2, 4, 6][:NDR] + [1, 3, 5, 7] + [0, 2, 4, 6][NDR:]
    BEARLY = [1, 3, 5, 7][:KB]
    assert KB <= 2 and NDR <= 1
else:
    DORD = [1, 3, 5, 7, 0, 2, 4, 6]
    BEARLY = DORD[NDR:NDR+KB]
    assert KB + NDR <= 2
assert sum(NISS[:4]) + PRO <= 16 + len(FS)
stream = [('W', s) for s in range(FPOS)] + FS + [('W', s) for s in range(FPOS, 16)] + [('D', u) for u in DORD]
sched = []; pos = PRO
for i_, st in enumerate(STAGES):
    n = NISS[i_]
    sched.append(stream[pos:pos+n]); pos = min(pos + n, len(stream))
tail_items = stream[pos:]
H = int(opts.get('h', 4))
e(f's_mov_b32 m0, s{sMA}')
e('s_waitcnt lgkmcnt(0)')
stamp(1)
cur_m0[0] = ('A', 0)
issued = stream[:H]
for it in issued: issue(it)
e(f's_load_dword s{sTAG}, s[{SW}:{SW+1}], 0')
addr_x()
issue(('X', 0)); issue(('X', 1))
assert PRO >= 8
for it in stream[H:8]: issue(it)
rest = stream[8:PRO]
assert all(k == 'W' for k, _ in rest)
if rest:
    e(f's_cmp_lg_u32 s{sC3}, 0')
    e('s_cbranch_scc1 L_pre')
    for it in rest: issue(it)
issued = issued + [('X', 0), ('X', 1)] + stream[H:PRO] + [('T', 0)]
lab('L_pre')
cur_m0[0] = None
stamp(2)
common_consts()
srdc(SD, 3584*1024*2)
e(f's_sub_u32 s{sK3}, s{sSLOT}, 4')
e(f's_cselect_b32 s{sNOP2}, {OOB}, 0')
e(f's_cselect_b32 s{sK3}, 0, s{sK3}')
e(f's_lshl2_add_u32 s{sTMP}, s{sK3}, s{sWV}')
e(f's_lshl_b32 s{sTMP}, s{sTMP}, 16')
e(f's_add_u32 s{sTMP}, s{sTMP}, s{sTROW}')
e(f's_add_u32 s{sTMP}, s{sTMP}, s{sNOP2}')
e(f'v_lshlrev_b32 v{vD}, 11, v{vT0}')
e(f'v_add3_u32 v{vD}, v{vD}, v{vT2}, s{sTMP}')
e(f's_lshl_b32 s{sMD}, s{sWV}, 10')
if 'tlbw' in opts:
    e('s_mov_b64 exec, 1')
    e(f's_mov_b32 s{sTMP}, {7*32*7168}')
    e(f'buffer_load_dword v{vTA}, v{vB}, s[{SM}:{SM+3}], s{sTMP} offen')
    e(f'buffer_load_dword v{vTA}, v{vD}, s[{SD}:{SD+3}], 0 offen')
    e(f'buffer_load_ushort v{vTA}, v{vOUT}, s[{SO}:{SO+3}], 0 offen')
    e('s_mov_b64 exec, -1')
    issued = issued[:-1] + [('Z', 0), ('Z', 1), ('Z', 2), ('T', 0)]
e(f'v_bfe_u32 v{vT1}, v{vL}, 2, 3')
e(f'v_lshlrev_b32 v{vT0}, 7, v{vT1}')
e(f'v_and_b32 v{vT2}, 1, v{vL}')
e(f'v_lshl_add_u32 v{vT0}, v{vT2}, 3, v{vT0}')
e(f'v_and_b32 v{vT1}, 6, v{vT1}')
e(f'v_bfe_u32 v{vT2}, v{vL}, 1, 1')
e(f'v_add_u32 v{vT1}, v{vT1}, v{vT2}')
e(f'v_lshl_add_u32 v{vT2}, v{vWV}, 1, v{vT1}')
e(f'v_and_b32 v{vT2}, 7, v{vT2}')
e(f'v_lshl_add_u32 v{vRD1}, v{vT2}, 4, v{vT0}')
e(f'v_lshrrev_b32 v{vT2}, 5, v{vL}')
e(f'v_lshl_add_u32 v{vRD1}, v{vT2}, 15, v{vRD1}')
e(f's_cmp_gt_u32 s{sWV}, 1')
e(f's_cselect_b32 s{sTMP}, {DREG[(0,1)]}, 0')
e(f's_mov_b32 s{sTMP2}, {DREG[(1,0)] - DREG[(0,0)]}')
e(f's_cselect_b32 s{sTMP2}, {DREG[(1,1)] - DREG[(0,1)]}, s{sTMP2}')
e(f'v_mul_lo_u32 v{vT2}, v{vT2}, s{sTMP2}')
e(f'v_add3_u32 v{vT0}, v{vT0}, v{vT2}, s{sTMP}')
e(f'v_lshl_add_u32 v{vT1}, v{vWV}, 2, v{vT1}')
e(f'v_and_b32 v{vT2}, 7, v{vT1}')
e(f'v_lshl_add_u32 v{vRDA}, v{vT2}, 4, v{vT0}')
e(f'v_add_u32 v{vT1}, 2, v{vT1}')
e(f'v_and_b32 v{vT2}, 7, v{vT1}')
e(f'v_lshl_add_u32 v{vRDB}, v{vT2}, 4, v{vT0}')
e(f'v_add_u32 v{vXL}, {LDS_X}, v{vL16}')
e(f's_lshl2_add_u32 s{sP}, s{sCT}, s{sKK}')
e(f's_lshl2_add_u32 s{sP}, s{sP}, s{sWV}')
e(f's_lshl_b32 s{sP}, s{sP}, 10')
e(f's_and_b32 s{sTMP2}, s{sMEM}, 1')
e(f's_lshl_b32 s{sTMP2}, s{sTMP2}, 7')
e(f's_add_u32 s{sP}, s{sP}, s{sTMP2}')
e(f's_add_u32 s{sP}, s{sP}, {PBASE}')
e(f's_lshl2_add_u32 s{sH}, s{sK3}, s{sWV}')
e(f's_lshl_b32 s{sH}, s{sH}, 10')
e(f's_add_u32 s{sH}, s{sH}, {HBASE}')
e(f'v_mul_u32_u24 v{vHR}, 17, v{vRA}')
e(f'v_add_u32 v{vHR}, {LDS_H}, v{vHR}')
e(f'v_lshl_add_u32 v{vHW}, v{vWV}, 6, v{vHR}')
e(f'v_and_b32 v{vT1}, 56, v{vL}')
e(f'v_add_u32 v{vHW}, v{vHW}, v{vT1}')
e(f'v_and_b32 v{vT1}, 48, v{vL}')
e(f'v_add_u32 v{vHR}, v{vHR}, v{vT1}')
for i in range(32): e(f'v_mov_b32 v{vH+i}, 0')
e(f'v_bfe_u32 v{vT0}, v{vL}, 3, 1')
e(f'v_lshrrev_b32 v{vT2}, 4, v{vL}')
e(f'v_lshl_add_u32 v{vPUB2}, v{vT0}, 2, v{vT2}')
e(f'v_mul_u32_u24 v{vPUB2}, {YS}, v{vPUB2}')
e(f's_lshl2_add_u32 s{sTMP}, s{sCB}, s{sWV}')
e(f's_mul_i32 s{sTMP}, s{sTMP}, {8*YS}')
e(f's_lshl_b32 s{sTMP2}, s{sK3}, 7')
e(f's_add_u32 s{sTMP}, s{sTMP}, s{sTMP2}')
e(f's_add_u32 s{sTMP}, s{sTMP}, s{sNOP2}')
e(f's_add_u32 s{sTMP}, s{sTMP}, {YBASE}')
e(f'v_add3_u32 v{vPUB2}, v{vPUB2}, v{vRA}, s{sTMP}')
for i in range(8): e(f'v_mov_b32 v{vACC+i}, 0')
e(f's_cmp_eq_u32 s{sNOP2}, 0')
e('s_cbranch_scc1 L_nors')
rsetup()
lab('L_nors')
e('s_waitcnt lgkmcnt(0)')
if 'estamp' in opts: stamp(21)
common_tag()
iB = [i for i, st in enumerate(STAGES) if st[0] == 8][0]
if KB:
    e(f's_and_b32 s{sTMP}, s{sCB}, 3')
    e(f's_cmp_eq_u32 s{sTMP}, 1')
    e('s_cbranch_scc0 L_nob')
    cur_m0[0] = None
    for u in BEARLY: issue(('D', u))
    lab('L_nob')
e(f's_cmp_lg_u32 s{sC3}, 0')
e('s_cbranch_scc0 L_compA')
cur_m0[0] = None
pre = [x for sc_ in sched[:iB] for x in sc_]
assert ('W', 15) in pre + issued
nonw = [x for x in pre if x[0] != 'W']
for it in nonw: issue(it)
e(f's_waitcnt vmcnt({min(4, 8 - H) + len(nonw)})')
e('s_branch L_compB')
lab('L_compA')
cur_m0[0] = None
for si, stage in enumerate(STAGES):
    if stage[0] == 8:
        lab('L_compB'); cur_m0[0] = None
        upto = list(issued)
    idx = max(issued.index(('W', stage[-1])), issued.index(('X', int(stage[-1] >= 8))))
    e(f's_waitcnt vmcnt({len([x for x in issued[idx+1:] if x[0] != chr(84)])})')
    for it in sched[si]: issue(it); issued.append(it)
    e('s_barrier')
    if stage[0] == 8: stamp(3)
    if stage[0] == 0 and 'estamp' in opts: stamp(20)
    if stage[0] == 6 and 'echo' in opts: stamp(13)
    ts = sorted(set(s >> 1 for s in stage))
    for t in ts:
        if (2*t) in stage:
            e(f'ds_read_b128 v[{vXF+4*(t&1)}:{vXF+4*(t&1)+3}], v{vXL} offset:{t*1024}')
    for i, s in enumerate(stage):
        b = vW + 4*i
        e(f'ds_read_b64_tr_b16 v[{b}:{b+1}], v{vRD1} offset:{s*1024}')
        e(f'ds_read_b64_tr_b16 v[{b+2}:{b+3}], v{vRD1} offset:{16384+s*1024}')
    for i, s in enumerate(stage):
        b = vW + 4*i
        e(f's_waitcnt lgkmcnt({2*(len(stage)-1-i)})')
        acc = vACC + 4*(s & 1); t = s >> 1
        xf = vXF + 4*(t & 1)
        e(f'v_mfma_f32_16x16x32_bf16 v[{acc}:{acc+3}], v[{b}:{b+3}], v[{xf}:{xf+3}], v[{acc}:{acc+3}]')
stamp(4)
e(f's_mov_b32 s{sCNT}, {POLL_MAX}')
e('s_nop 6')
for r in range(4):
    e(f'v_add_f32_dpp v{vPP+r}, v{vACC+4+r}, v{vACC+r} row_ror:8 row_mask:0xf bank_mask:0xf')
for r in range(4):
    e(f'v_bfi_b32 v{vPP+r}, v{vFF}, s{sTI+r}, v{vPP+r}')
def pub1(sc):
    e(f's_mov_b64 exec, s[{sLO}:{sLO+1}]')
    e(f'buffer_store_dwordx4 v[{vPP}:{vPP+3}], v{vL16}, s[{SW}:{SW+3}], s{sP} offen{sc}')
    e('s_mov_b64 exec, -1')
pub1('')
stamp(5)
e(f's_cmp_lg_u32 s{sNOP2}, 0')
e('s_cbranch_scc1 L_reduce')
seq = issued[issued.index(('W', 15))+1:] + [('S', 0)]
if 'puback' in opts: e('s_waitcnt vmcnt(0)')
if 'nopubbar' not in opts: e('s_barrier')
def tbl_load():
    e(f'buffer_load_dwordx2 v[{vTB}:{vTB+1}], v{vTR}, s[{SW}:{SW+3}], s{sTROW} offen offset:{TBASE} sc1')
def tbl_check(lbl):
    e(f'v_cmp_eq_u64 s[{sLOC}:{sLOC+1}], s[{sTAG}:{sTAG+1}], v[{vTB}:{vTB+1}]')
    if 'nolocal' in opts: e(f's_mov_b64 s[{sLOC}:{sLOC+1}], 0')
    e(f's_cmp_eq_u64 s[{sLOC}:{sLOC+1}], -1')
    e(f's_cbranch_scc1 {lbl}')
    pub1(' sc1')
    lab(lbl)
def small_loads():
    tbl_load(); seq.append(('T', 1))
    e(f'buffer_load_ushort v{vXR}, v{vOUT}, s[{SX}:{SX+3}], 0 offen'); seq.append(('R', 0))
    e(f'buffer_load_dwordx4 v[{vRG}:{vRG+3}], v{vRB}, s[{SW}:{SW+3}], 0 offen offset:{RBASE} sc1'); seq.append(('R', 1))
if 'smalllast' not in opts: small_loads()
if KB:
    assert tail_items[:KB] == [('D', u) for u in BEARLY], tail_items
    e(f's_and_b32 s{sTMP}, s{sCB}, 3')
    e(f's_cmp_eq_u32 s{sTMP}, 1')
    e('s_cbranch_scc1 L_skipb')
for n_, it in enumerate(tail_items):
    if KB and n_ == KB: lab('L_skipb'); cur_m0[0] = None
    if 'dwin' in opts and n_ >= int(opts['dwin']): e(f's_waitcnt vmcnt({int(opts["dwin"])-1})')
    issue(it); seq.append(it)
if 'smalllast' in opts: small_loads()
afterD = len(seq) - 1 - seq.index(('D', DORD[-1]))
e(f's_waitcnt vmcnt({afterD + PW})')
def hloads():
    e(f'buffer_load_dwordx4 v[{vG}:{vG+3}], v{vL16}, s[{SW}:{SW+3}], s{sH} offen {HL}')
hloads()
e(f's_waitcnt vmcnt({afterD + 1})')
e('s_barrier')
stamp(6)
for s in range(4):
    for sub, va in ((0, vRDA), (1, vRDB)):
        b = vWD + 8*s + 4*sub
        e(f'ds_read_b64_tr_b16 v[{b}:{b+1}], v{va} offset:{s*1024}')
        e(f'ds_read_b64_tr_b16 v[{b+2}:{b+3}], v{va} offset:{s*1024+4096}')
e('s_waitcnt vmcnt(1)')
tbl_check('L_tc1')
e('s_branch L_pollhw')
lab('L_pollh')
e(f's_sub_u32 s{sCNT}, s{sCNT}, 1')
e('s_cbranch_scc1 L_pollh_done')
hloads()
lab('L_pollhw')
e('s_waitcnt vmcnt(0)')
e(f'v_cmp_ne_u64 vcc, s[{sT64}:{sT64+1}], v[{vG+2}:{vG+3}]')
e('s_cbranch_vccnz L_pollh')
lab('L_pollh_done')
e(f'ds_write_b64 v{vHW}, v[{vG}:{vG+1}]')
stamp(7)
e(f's_mov_b64 exec, s[{sLO}:{sLO+1}]')
e('s_waitcnt lgkmcnt(0)')
e('s_barrier')
for s in range(4): e(f'ds_read_b128 v[{vH+4*s}:{vH+4*s+3}], v{vHR} offset:{64*s}')
e(f's_mov_b64 exec, s[{sHI}:{sHI+1}]')
for s in range(4): e(f'ds_read_b128 v[{vH+16+4*s}:{vH+16+4*s+3}], v{vHR} offset:{64*s}')
e('s_mov_b64 exec, -1')
for k in range(8):
    sub, s = k >> 2, k & 3
    e(f's_waitcnt lgkmcnt({7-k})')
    b = vWD + 8*s + 4*sub
    c = '0' if k == 0 else f'v[{vACC}:{vACC+3}]'
    e(f'v_mfma_f32_16x16x32_bf16 v[{vACC}:{vACC+3}], v[{b}:{b+3}], v[{vH+4*k}:{vH+4*k+3}], {c}')
e(f's_cmp_eq_u64 s[{sLOC}:{sLOC+1}], -1')
e('s_nop 6')
for r in range(4):
    e(f'v_bfi_b32 v{vP+r}, v{vFF}, s{sTI+r}, v{vACC+r}')
e('s_cbranch_scc0 L_far')
e(f'buffer_store_dwordx4 v[{vP}:{vP+3}], v{vPUB2}, s[{SW}:{SW+3}], 0 offen')
if 'cleanp' in opts:
    e(f's_cmp_eq_u32 s{sWV}, 0')
    e('s_cbranch_scc1 L_fin')
    pub1(' sc1')
lab('L_fin')
stamp(8)
e(f's_mov_b32 s{sCNT}, {POLL_MAX}')
def check(g):
    e(f'v_perm_b32 v{vP+4}, v{g+1}, v{g}, s{sSEL0}')
    e(f'v_perm_b32 v{vP+5}, v{g+3}, v{g+2}, s{sSEL0}')
    e(f'v_cmpx_eq_u64 vcc, s[{sEXP}:{sEXP+1}], v[{vP+4}:{vP+5}]')
def strip(g, first):
    for r in range(4): e(f'v_xor_b32 v{g+r}, s{sTB+r}, v{g+r}')
    if first: e(f'v_or_b32 v{vP+4}, v{g}, v{g+1}')
    else: e(f'v_or3_b32 v{vP+4}, v{vP+4}, v{g}, v{g+1}')
    e(f'v_or3_b32 v{vP+4}, v{vP+4}, v{g+2}, v{g+3}')
def strip_test(lbl):
    e(f'v_and_b32 v{vP+4}, 0x7f, v{vP+4}')
    e(f'v_cmp_ne_u32 vcc, 0, v{vP+4}')
    e(f's_cbranch_vccnz {lbl}')
def padd(a, b):
    e(f'v_pk_add_f32 v[{vG+4*a}:{vG+4*a+1}], v[{vG+4*a}:{vG+4*a+1}], v[{vG+4*b}:{vG+4*b+1}]')
    e(f'v_pk_add_f32 v[{vG+4*a+2}:{vG+4*a+3}], v[{vG+4*a+2}:{vG+4*a+3}], v[{vG+4*b+2}:{vG+4*b+3}]')
def yload():
    e(f'buffer_load_dwordx4 v[{vG+4}:{vG+7}], v{vY4}, s[{SW}:{SW+3}], s{sY} offen sc1')
e('s_mov_b32 exec_hi, 0x00ffffff')
yload()
e('s_mov_b32 exec_hi, -1')
lab('L_rchk')
strip(vRG, True)
strip_test('L_rpoll')
for r in range(4): e(f'v_mov_b32 v{vG+r}, 0')
e(f'v_and_b32 v{vRS}, 0xffff0000, v{vRG}')
e(f'v_lshlrev_b32 v{vXR}, 16, v{vXR}')
e(f'v_fma_f32 v{vXR}, v{vXR}, 0, v{vXR}')
e('s_mov_b32 exec_hi, 0x00ffffff')
e('s_branch L_poll2w')
lab('L_poll2')
e(f's_sub_u32 s{sCNT}, s{sCNT}, 1')
e('s_cbranch_scc1 L_poll2_done')
yload()
lab('L_poll2w')
e('s_waitcnt vmcnt(0)')
for r in range(4): e(f'v_xor_b32 v{vG+r}, s{sTB+r}, v{vG+4+r}')
e(f'v_or_b32 v{vP+4}, v{vG}, v{vG+1}')
e(f'v_or3_b32 v{vP+4}, v{vP+4}, v{vG+2}, v{vG+3}')
strip_test('L_poll2')
lab('L_poll2_done')
e('s_mov_b32 exec_hi, -1')
stamp(9)
e(f'v_permlane32_swap_b32 v{vG}, v{vG+2}')
e(f'v_permlane32_swap_b32 v{vG+1}, v{vG+3}')
e(f'v_add_f32 v{vG}, v{vG}, v{vG+2}')
e(f'v_add_f32 v{vG+1}, v{vG+1}, v{vG+3}')
e('s_nop 1')
e(f'v_permlane16_swap_b32 v{vG}, v{vG+1}')
e(f'v_add_f32 v{vG}, v{vG}, v{vG+1}')
for sh in (8, 4, 2):
    e('s_nop 1')
    e(f'v_add_f32_dpp v{vG}, v{vG}, v{vG} row_ror:{sh} row_mask:0xf bank_mask:0xf')
e(f'v_cvt_pk_bf16_f32 v{vG}, v{vG}, v{vG}')
e(f'v_lshlrev_b32 v{vG}, 16, v{vG}')
e(f'v_mul_f32 v{vG}, v{vG}, v{vRS}')
e(f'v_cvt_pk_bf16_f32 v{vG}, v{vG}, v{vG}')
e(f'v_lshlrev_b32 v{vG}, 16, v{vG}')
e(f'v_add_f32 v{vG}, v{vG}, v{vXR}')
e(f'v_cvt_pk_bf16_f32 v{vG}, v{vG}, v{vG}')
e('s_mov_b32 exec_lo, 0x00030003'); e('s_mov_b32 exec_hi, 0x00030003')
e(f'buffer_store_short v{vG}, v{vOUT}, s[{SO}:{SO+3}], 0 offen{OUTSC}')
e(f's_or_b32 s{sTMP}, s{sTASK}, s{sWV}')
e('s_cbranch_scc1 L_fin_done')
e('s_mov_b64 exec, 1')
e(f'v_mov_b32 v{vT1}, s{sTAG}')
e(f'buffer_store_dword v{vT1}, v{vL16}, s[{SW}:{SW+3}], 0 offen')
lab('L_fin_done')
if 'echo' in opts:
    i_, j_ = map(int, opts['echo'].split(','))
    e('s_waitcnt vmcnt(0)')
    stamp(10)
    e(f's_cmp_lg_u32 s{sWV}, 0')
    e('s_cbranch_scc1 L_end')
    e(f's_cmp_lg_u32 s2, {opts.get("ewg", 68)}')
    e('s_cbranch_scc1 L_end')
    e('s_waitcnt lgkmcnt(0)')
    e(f's_sub_u32 s96, s{68+2*i_}, s{68+2*j_}')
    e(f's_mul_i32 s96, s96, {opts.get("ek", 2)}')
    e('s_min_u32 s96, s96, 20000')
    if 'eloc' in opts:
        e(f's_cmp_eq_u64 s[{sLOC}:{sLOC+1}], -1')
        e('s_cselect_b32 s96, 0, 1000')
    lab('L_echo')
    e('s_memrealtime s[98:99]')
    e('s_waitcnt lgkmcnt(0)')
    e('s_sub_u32 s98, s98, s88')
    e('s_cmp_lt_u32 s98, s96')
    e('s_cbranch_scc1 L_echo')
if STAMPS and 'echo' not in opts:
    e('s_waitcnt vmcnt(0)')
    stamp(10)
    e('s_waitcnt lgkmcnt(0)')
    n = 13
    e('s_mov_b64 exec, 1')
    e(f's_lshl_b32 s{sTMP}, s2, 2')
    e(f's_add_u32 s{sTMP}, s{sTMP}, s{sWV}')
    e(f's_lshl_b32 s{sTMP}, s{sTMP}, 6')
    e(f's_add_u32 s{sTMP}, s{sTMP}, {STAMPBASE}')
    for i in range(n):
        e(f'v_mov_b32 v{vT1}, s{SB(i)}')
        e(f'buffer_store_dword v{vT1}, v{vL16}, s[{SW}:{SW+3}], s{sTMP} offen offset:{4*i}')
        e('s_nop 0')
lab('L_end')
e('s_endpgm')
lab('L_far')
e(f'buffer_store_dwordx4 v[{vP}:{vP+3}], v{vPUB2}, s[{SW}:{SW+3}], 0 offen sc1')
e('s_branch L_fin')
lab('L_rpoll')
e(f's_sub_u32 s{sCNT}, s{sCNT}, 1')
e('s_cbranch_scc1 L_fin_done')
e(f'buffer_load_dwordx4 v[{vRG}:{vRG+3}], v{vRB}, s[{SW}:{SW+3}], 0 offen offset:{RBASE} sc1')
e('s_waitcnt vmcnt(0)')
e('s_branch L_rchk')

lab('L_reduce')
e(f'v_mov_b32 v{vGR+4}, s{sT64}'); e(f'v_mov_b32 v{vGR+5}, s{sT64+1}')
e(f's_mov_b32 s{sCNT}, {POLL_MAX}')
e(f's_mov_b32 s{sTMP}, 0xbfb8aa3b')
e(f's_mov_b32 s{sTMP2}, 0xffff0000')
lab('L_poll1')
e(f's_cmp_lg_u32 s{sCNT}, {POLL_MAX - KFALL}')
e('s_cbranch_scc1 L_poll1b')
pub1(' sc1')
lab('L_poll1b')
def ld1(i, so, imm):
    e(f'buffer_load_dwordx4 v[{vG+4*i}:{vG+4*i+3}], v{vQ}, s[{SW}:{SW+3}], s{so} offen offset:{imm} sc1')
e(f's_sub_u32 s{sCNT}, s{sCNT}, 1')
e('s_cbranch_scc1 L_poll1_done')
ld1(0, sQ, 0); ld1(1, sQ2, 0); ld1(2, sQ, 128); ld1(3, sQ2, 128)
for i in range(4):
    e(f's_waitcnt vmcnt({3-i})')
    strip(vG + 4*i, i == 0)
    if i == 1: padd(0, 1)
strip_test('L_poll1')
lab('L_poll1_done')
stamp(11)
padd(2, 3)
e(f's_cmp_lg_u32 s{sK3}, 3')
e('s_cbranch_scc1 L_act')
for i in (0, 1, 2, 3, 8, 9, 10, 11):
    e(f'v_add_f32_dpp v{vG+i}, v{vG+i}, v{vG+i} row_ror:8 row_mask:0xf bank_mask:0xf')
lab('L_act')
R = vG; U = vG + 8; P = vP
e(f'v_cvt_pk_bf16_f32 v{P}, v{R}, v{R+1}')
e(f'v_cvt_pk_bf16_f32 v{P+1}, v{R+2}, v{R+3}')
e(f'v_lshlrev_b32 v{R}, 16, v{P}')
e(f'v_and_b32 v{R+1}, s{sTMP2}, v{P}')
e(f'v_lshlrev_b32 v{R+2}, 16, v{P+1}')
e(f'v_and_b32 v{R+3}, s{sTMP2}, v{P+1}')
for r in range(4): e(f'v_mul_f32 v{P+r}, s{sTMP}, v{R+r}')
for r in range(4): e(f'v_exp_f32 v{P+r}, v{P+r}')
e(f'v_cvt_pk_bf16_f32 v{P+6}, v{U}, v{U+1}')
e(f'v_cvt_pk_bf16_f32 v{P+7}, v{U+2}, v{U+3}')
e(f'v_pk_add_f32 v[{P}:{P+1}], v[{P}:{P+1}], 1.0 op_sel_hi:[1,0]')
e(f'v_pk_add_f32 v[{P+2}:{P+3}], v[{P+2}:{P+3}], 1.0 op_sel_hi:[1,0]')
for r in range(4): e(f'v_rcp_f32 v{P+r}, v{P+r}')
e(f'v_lshlrev_b32 v{U}, 16, v{P+6}')
e(f'v_and_b32 v{U+1}, s{sTMP2}, v{P+6}')
e(f'v_lshlrev_b32 v{U+2}, 16, v{P+7}')
e(f'v_and_b32 v{U+3}, s{sTMP2}, v{P+7}')
e(f'v_pk_mul_f32 v[{P}:{P+1}], v[{P}:{P+1}], v[{R}:{R+1}]')
e(f'v_pk_mul_f32 v[{P+2}:{P+3}], v[{P+2}:{P+3}], v[{R+2}:{R+3}]')
e(f'v_cvt_pk_bf16_f32 v{P+4}, v{P}, v{P+1}')
e(f'v_cvt_pk_bf16_f32 v{P+5}, v{P+2}, v{P+3}')
e(f'v_lshlrev_b32 v{P}, 16, v{P+4}')
e(f'v_and_b32 v{P+1}, s{sTMP2}, v{P+4}')
e(f'v_lshlrev_b32 v{P+2}, 16, v{P+5}')
e(f'v_and_b32 v{P+3}, s{sTMP2}, v{P+5}')
e(f'v_pk_mul_f32 v[{P}:{P+1}], v[{P}:{P+1}], v[{U}:{U+1}]')
e(f'v_pk_mul_f32 v[{P+2}:{P+3}], v[{P+2}:{P+3}], v[{U+2}:{U+3}]')
e(f'v_cvt_pk_bf16_f32 v{vGR+2}, v{P}, v{P+1}')
e(f'v_cvt_pk_bf16_f32 v{vGR+3}, v{P+2}, v{P+3}')
e(f'buffer_store_dwordx4 v[{vGR+2}:{vGR+5}], v{vHP}, s[{SW}:{SW+3}], 0 offen {HS}')
stamp(12)
if 'norbar' not in opts: e('s_barrier')
if 'f1prod' not in opts: yprefetch()
tbl_load()
e(f'buffer_load_ushort v{vXR}, v{vOUT}, s[{SX}:{SX+3}], 0 offen')
e(f'buffer_load_dwordx4 v[{vRG}:{vRG+3}], v{vRB}, s[{SW}:{SW+3}], 0 offen offset:{RBASE} sc1')
e('s_waitcnt vmcnt(0)')
tbl_check('L_tc2')
e('s_branch L_fin')

lab('L_router')
e(f's_load_dwordx2 s[{SR}:{SR+1}], s[0:1], 8')
srdc(SR, 2048)
common_consts()
e(f's_lshl1_add_u32 s{sKK}, s{sSLOT}, s{sWV}')
e(f's_lshl_b32 s{sTMP2}, s{sKK}, 11')
e(f's_mov_b32 s{sP}, {PBASE + 7*16384 + 8192}')
e('s_waitcnt lgkmcnt(0)')
e(f's_load_dword s{sTAG}, s[{SW}:{SW+1}], 0')
e(f'buffer_load_dwordx4 v[{vRX}:{vRX+3}], v{vL16}, s[{SX}:{SX+3}], s{sTMP2} offen')
e(f'buffer_load_dwordx4 v[{vRX+4}:{vRX+7}], v{vL16}, s[{SX}:{SX+3}], s{sTMP2} offen offset:1024')
e(f'buffer_load_dwordx4 v[{vRX+8}:{vRX+11}], v{vL16}, s[{SR}:{SR+3}], 0 offen')
e(f'buffer_load_dwordx4 v[{vRX+12}:{vRX+15}], v{vL16}, s[{SR}:{SR+3}], 0 offen offset:1024')
e(f'v_mov_b32 v{vRS}, 0')
rsetup()
e('s_waitcnt lgkmcnt(0)')
common_tag()
e(f's_cmp_gt_u32 s{sWV}, 1')
e('s_cbranch_scc1 L_reduce')
e('s_waitcnt vmcnt(0)')
for i in range(8):
    e(f'v_dot2c_f32_bf16 v{vRS}, v{vRX+i}, v{vRX+8+i}')
e('s_nop 2')
for sh in (1, 2, 4, 8):
    e(f'v_add_f32_dpp v{vRS}, v{vRS}, v{vRS} row_ror:{sh} row_mask:0xf bank_mask:0xf')
    e('s_nop 1')
e(f'v_mov_b32 v{vT1}, v{vRS}')
e('s_nop 1')
e(f'v_permlane16_swap_b32 v{vRS}, v{vT1}')
e(f'v_add_f32 v{vRS}, v{vRS}, v{vT1}')
e(f'v_mov_b32 v{vT1}, v{vRS}')
e('s_nop 1')
e(f'v_permlane32_swap_b32 v{vRS}, v{vT1}')
e(f'v_add_f32 v{vRS}, v{vRS}, v{vT1}')
e(f'v_cvt_pk_bf16_f32 v{vRS}, v{vRS}, v{vRS}')
e(f'v_lshlrev_b32 v{vRS}, 16, v{vRS}')
e(f'v_mul_f32 v{vRS}, 0xbfb8aa3b, v{vRS}')
e(f'v_exp_f32 v{vRS}, v{vRS}')
e('s_nop 0')
e(f'v_add_f32 v{vRS}, 1.0, v{vRS}')
e(f'v_rcp_f32 v{vRS}, v{vRS}')
e('s_nop 0')
e(f'v_cvt_pk_bf16_f32 v{vRS}, v{vRS}, v{vRS}')
e(f'v_bfi_b32 v{vP}, v{vFF}, s{sTI}, v{vRS}')
for r in range(1, 4): e(f'v_mov_b32 v{vP+r}, s{sTB+r}')
e(f's_lshl_b32 s{sTMP}, s{sKK}, 4')
e('s_mov_b64 exec, 1')
e(f'buffer_store_dwordx4 v[{vP}:{vP+3}], v{vL16}, s[{SW}:{SW+3}], s{sTMP} offen offset:{RBASE} sc1')
e('s_mov_b64 exec, -1')
e('s_branch L_reduce')
lab('L_codeend')
o += ['.section .rodata,"a"', '.p2align 6', f'.amdhsa_kernel {NAME}',
      f'  .amdhsa_next_free_vgpr {NV}', '  .amdhsa_next_free_sgpr 100', f'  .amdhsa_accum_offset {NV}',
      '  .amdhsa_group_segment_fixed_size 0', '  .amdhsa_kernarg_size 64', '  .amdhsa_user_sgpr_count 2',
      '  .amdhsa_user_sgpr_kernarg_segment_ptr 1', '  .amdhsa_system_sgpr_workgroup_id_x 1',
      '  .amdhsa_float_denorm_mode_32 3',
      '.end_amdhsa_kernel']
print('\n'.join(o))
```

```python
import sys
opts = dict(a.split('=') if '=' in a else (a, '1') for a in sys.argv[1:])
opts.setdefault('nopre', '1'); opts.setdefault('wpre', '1'); opts.setdefault('niss', '[2,2,2,1,1,0,0,0,0]')
STAMPS = 'stamps' in opts
NT1 = '' if 'nont1' in opts else ' nt'
NT2 = '' if 'nont2' in opts else ' nt'
FSC = ' ' + opts.get('fsc', 'none').replace('+', ' ').replace('none', '')
OUTSC = ' ' + opts.get('outsc', '').replace('+', ' ')
TS = '' if 'tplain' in opts else ' sc1'
HS = opts.get('hs', 'sc1').replace('+', ' '); HL = opts.get('hl', 'sc1').replace('+', ' ')
NAME = 'standalone__moe_arch_mod__decode_kernel'
NWG = 256
LDS_X = 65536
LDS_H = LDS_X
DREG = {(0, 0): 0, (0, 1): 73728, (1, 0): 16384, (1, 1): 32768}
LDS_TOTAL = 108800
RBASE = 1024
VBASE = 512
PROBE1 = 15*16384 + 12288
NPR = int(opts.get('npr', 2))
TBASE = 2048
PBASE = 4096
YBASE = PBASE + 56 * 16384
YS = 3584
HBASE = 0x1C4000
STAMPBASE = 3 << 20
WS_SIZE = 4 << 20
OOB = 0x10000000
assert HBASE >= YBASE + 256 * YS and HBASE + 14 * 16384 <= (2 << 20)
POLL_MAX = 1 << 20
STAGES = eval(opts.get('stages', '[[0,1],[2,3],[4,5],[6,7],[8,9],[10,11],[12,13],[14],[15]]'))
PRO = int(opts.get('pro', 10))
NISS = eval(opts.get('niss', '[2,2,2,2,1,0,0,0,0]'))
PW = int(opts.get('pw', 2))
KB = int(opts.get('kb', 1))
KFALL = int(opts.get('kfall', 40))


DOC = """
; ---------------------------------------------------------------------------------------------------------
; ---------------------------------------------------------------------------------------------------------
"""
o = []
def e(s): o.append('    ' + s)
def lab(s): o.append(s + ':')
nstamp = [0]
SB = lambda i: 68 + 2*i if i < 12 else 30
def stamp(i):
    if 'estamp' in opts and (i == 0 or i == int(opts['estamp'])):
        e('s_memrealtime s[88:89]')
    if STAMPS:
        nstamp[0] = max(nstamp[0], i + 1)
        e(f's_memrealtime s[{SB(i)}:{SB(i)+1}]')

hdr = open('standalone__moe_arch_mod__decode.s.ref').read().split('\n')
for l in hdr:
    if l.startswith('; @launch'):
        o.append(f'; @launch grid=({NWG},1,1) block=(256,1,1) lds={LDS_TOTAL}')
        break
    o.append(l)
o += DOC.strip().split('\n')
o += ['.amdgcn_target "amdgcn-amd-amdhsa--gfx950"', '.text', f'.globl {NAME}', '.p2align 8',
      f'.type {NAME},@function', f'{NAME}:']

SM, SD, SX, SW, SO, SR = 4, 8, 12, 16, 20, 24
sTAG = 28
sEXP = 30
sTB = 32
sCT, sMEM, sC3, sWV, sTMP, sTMP2, sP, sCNT, sTASK, sROW0, sQ, sKK, sSEL0, sMW, sXCD, sSLOT = range(36, 52)
sLO, sHI = 52, 54
sNOP2, sMD, sMX, sPOS, sQ2, sK3 = 56, 57, 58, 59, 60, 61
sLOC = 62
sT64 = 64
sY = 66; sTROW = 67; sMA = 3; sH = 27; sCB = 96; sHA = 97; sHB = 98; sV = 72; sTI = 92
vL, vT0, vT1, vT2, vA, vB, vX, vD, vRD1, vRDA, vL16, vTR, vPUB2, vFF, vHP, vP1 = range(1, 17)
vWV = 17; vOUT = 18; vXR = 19; vRS = 20; vXL = 21; vRA = 22; vRDB = 23
vXF = 24
vACC = 32
vW = 48
vWD = 64
vG = 96
vP = 128
vPP = 140
vGR = 144
vQ = 150; vTA = 151; vTB = 152; vY4 = 154; vHW = 155; vHR = 156; vPF = 157; vRB = 158
vH = 160
vRG = 192
vRX = 64
NV = 196

def srdc(s, sz):
    e(f's_mov_b32 s{s+2}, {sz}'); e(f's_mov_b32 s{s+3}, 0x20000')
def common_tag():
    e(f's_mul_i32 s{sTAG}, s{sTAG}, 1664525')
    e(f's_add_u32 s{sTAG}, s{sTAG}, 1013904223')
    e(f'v_mov_b32 v{vTB}, s{sTAG}')
    e(f'v_mov_b32 v{vTB+1}, s{sTAG+1}')
    e(f'v_lshlrev_b32 v{vT1}, 22, v0')
    e(f's_lshl_b32 s{sTMP}, s{sTASK}, 3')
    e(f'buffer_store_dwordx2 v[{vTB}:{vTB+1}], v{vT1}, s[{SW}:{SW+3}], s{sTMP} offen offset:{TBASE}{TS}')
    for r in range(4):
        e(f's_bfe_u32 s{sTB+r}, s{sTAG}, {hex(0x70000 + 7*r)}')
        e(f's_or_b32 s{sTI+r}, s{sTB+r}, 0x80')
    e(f's_mov_b32 s{sT64}, s{sTAG}')
    e(f's_mul_i32 s{sT64+1}, s{sTAG}, 0x9e3779b1')
def common_consts():
    srdc(SO, 16384)
    e(f's_mov_b32 s{sLO}, 0x00ff00ff'); e(f's_mov_b32 s{sLO+1}, 0x00ff00ff')
    e(f's_not_b64 s[{sHI}:{sHI+1}], s[{sLO}:{sLO+1}]')
    e(f'v_mov_b32 v{vFF}, 0xff')
    e(f's_lshl_b32 s{sTMP}, s{sXCD}, 2')
    e(f's_lshr_b32 s{sCB}, {opts.get("perm", "0x76243510")}, s{sTMP}')
    e(f's_and_b32 s{sCB}, s{sCB}, 7')
    e(f's_lshl_b32 s{sTASK}, s{sCB}, 5')
    e(f's_add_u32 s{sTASK}, s{sTASK}, s{sSLOT}')
    e(f's_getreg_b32 s{sTAG+1}, hwreg(HW_REG_XCC_ID, 0, 4)')
    e(f's_lshl_b32 s{sTROW}, s{sCB}, 8')
    e(f'v_and_b32 v{vTR}, 31, v{vL}')
    e(f'v_lshlrev_b32 v{vTR}, 3, v{vTR}')
    e(f's_mul_i32 s{sY}, s{sTASK}, {YS}')
    e(f's_add_u32 s{sY}, s{sY}, {YBASE}')
    e(f'v_and_b32 v{vT1}, 7, v{vL}')
    e(f'v_lshlrev_b32 v{vRA}, 4, v{vT1}')
    e(f'v_and_b32 v{vT1}, 1, v{vL}')
    e(f'v_lshl_add_u32 v{vT1}, v{vWV}, 1, v{vT1}')
    e(f'v_lshlrev_b32 v{vRB}, 4, v{vT1}')
    e(f'v_lshlrev_b32 v{vOUT}, 11, v{vT1}')
    e(f'v_lshrrev_b32 v{vT1}, 4, v{vL}')
    e(f'v_lshl_add_u32 v{vOUT}, v{vT1}, 1, v{vOUT}')
    e(f's_lshl_b32 s{sTMP}, s{sTASK}, 3')
    e(f'v_add_u32 v{vOUT}, s{sTMP}, v{vOUT}')
    e(f'v_lshrrev_b32 v{vT1}, 1, v{vL}')
    e(f'v_lshl_add_u32 v{vY4}, v{vT1}, 7, v{vRB}')
    e(f'v_and_b32 v{vP1}, 0x37f, v{vL16}')

def rsetup():
    e(f's_lshl_b32 s{sTMP}, s{sSLOT}, 2')
    e(f's_lshr_b32 s{sQ}, 0x3520, s{sTMP}')
    e(f's_and_b32 s{sQ}, s{sQ}, 15')
    e(f's_lshl3_add_u32 s{sQ}, s{sXCD}, s{sQ}')
    e(f's_lshr_b32 s{sTMP2}, 0x0121, s{sTMP}')
    e(f's_lshr_b32 s{sQ2}, 0x0888, s{sTMP}')
    e(f's_lshl2_add_u32 s{sTMP}, s{sTMP}, 7')
    e(f's_cmp_eq_u32 s{sXCD}, 7')
    e(f's_cselect_b32 s{sQ}, s{sTMP}, s{sQ}')
    e(f's_cselect_b32 s{sTMP2}, s{sQ2}, s{sTMP2}')
    e(f's_cselect_b32 s{sK3}, 0, s{sSLOT}')
    e(f's_and_b32 s{sTMP2}, s{sTMP2}, 15')
    e(f's_lshl_b32 s{sTMP}, s{sTMP2}, 1')
    e(f's_cmp_eq_u32 s{sK3}, 3')
    e(f's_cselect_b32 s{sTMP}, 1, s{sTMP}')
    e(f'v_bfe_u32 v{vT0}, v{vL}, 3, 1')
    e(f'v_mul_u32_u24 v{vT1}, s{sTMP}, v{vT0}')
    e(f'v_lshl_add_u32 v{vQ}, v{vT1}, 13, v{vP1}')
    e(f'v_mul_u32_u24 v{vT0}, s{sTMP2}, v{vT0}')
    e(f'v_add_u32 v{vT0}, s{sQ}, v{vT0}')
    e(f'v_lshrrev_b32 v{vT1}, 2, v{vT0}')
    e(f'v_lshl_add_u32 v{vHP}, v{vT1}, 14, v{vRA}')
    e(f'v_and_b32 v{vT1}, 3, v{vT0}')
    e(f'v_lshl_add_u32 v{vHP}, v{vT1}, 11, v{vHP}')
    e(f'v_lshrrev_b32 v{vT1}, 4, v{vL}')
    e(f'v_lshl_add_u32 v{vHP}, v{vT1}, 7, v{vHP}')
    e(f's_lshl_b32 s{sTMP}, s{sWV}, 9')
    e(f's_add_u32 s{sTMP}, s{sTMP}, {HBASE}')
    e(f'v_add_u32 v{vHP}, s{sTMP}, v{vHP}')
    e(f's_lshl4_add_u32 s{sQ}, s{sQ}, s{sWV}')
    e(f's_lshl_b32 s{sQ}, s{sQ}, 10')
    e(f's_add_u32 s{sQ}, s{sQ}, {PBASE}')
    e(f's_add_u32 s{sQ2}, s{sQ}, 4096')
    e(f'v_min_u32 v{vPF}, 55, v{vL}')
    e(f's_lshl2_add_u32 s{sTMP}, s{sSLOT}, s{sWV}')
    e(f's_mul_i32 s{sTMP}, s{sTMP}, 56')
    e(f'v_add_lshl_u32 v{vPF}, v{vPF}, s{sTMP}, 7')
def rprefetch():
    for so, imm in ((sQ, 0), (sQ2, 0), (sQ, 128), (sQ2, 128)):
        e(f'buffer_load_dword v{vTA}, v{vQ}, s[{SW}:{SW+3}], s{so} offen offset:{imm}')
    if 'nopre' not in opts:
        e(f's_mov_b32 s{sTMP}, {HBASE}')
        e(f'buffer_load_dword v{vTA}, v{vPF}, s[{SW}:{SW+3}], s{sTMP} offen')
    if 'f1early' in opts: yprefetch()
def yprefetch():
    e(f's_mul_i32 s{sTMP}, s{sCB}, {32*YS}')
    e(f's_add_u32 s{sTMP}, s{sTMP}, {YBASE}')
    e(f'buffer_load_dword v{vTA}, v{vPF}, s[{SW}:{SW+3}], s{sTMP} offen')

stamp(0)
e(f's_and_b32 s{sTMP}, s2, 8')
e(f's_add_u32 s{sTMP}, s{sTMP}, 16')
e(f's_load_dwordx2 s[{SM}:{SM+1}], s[0:1], s{sTMP}')
e(f's_load_dwordx2 s[{SX}:{SX+1}], s[0:1], 0')
e(f's_load_dwordx2 s[{SW}:{SW+1}], s[0:1], 56')
e(f's_load_dwordx2 s[{SD}:{SD+1}], s[0:1], 32')
e(f's_load_dwordx2 s[{SO}:{SO+1}], s[0:1], 40')
e(f's_cmp_ge_u32 s2, {NWG}')
e('s_cbranch_scc1 L_end')
if 'nocpf' not in opts:
    e(f's_getpc_b64 s[{sT64}:{sT64+1}]')
    lab('L_pc')
    e(f'v_cmp_gt_u32 vcc, (L_codeend-L_pc)/128, v0')
    e(f's_and_saveexec_b64 s[{sLOC}:{sLOC+1}], vcc')
    e('s_cbranch_execz L_nocpf')
    e(f'v_lshlrev_b32 v{vT0}, 7, v0')
    e(f'global_load_dword v{vTA}, v{vT0}, s[{sT64}:{sT64+1}] offset:124')
    lab('L_nocpf')
    e(f's_mov_b64 exec, s[{sLOC}:{sLOC+1}]')
e(f'v_lshrrev_b32 v{vWV}, 6, v0')
e(f'v_and_b32 v{vL}, 63, v0')
e(f'v_readfirstlane_b32 s{sWV}, v{vWV}')
e(f's_and_b32 s{sXCD}, s2, 7')
e(f's_lshr_b32 s{sSLOT}, s2, 3')
e(f's_lshr_b32 s{sPOS}, s2, 5')
srdc(SM, 1024*3584*2); srdc(SX, 16384); srdc(SW, WS_SIZE)
e(f'v_lshlrev_b32 v{vL16}, 4, v{vL}')
e(f's_cmp_eq_u32 s{sXCD}, 7')
e('s_cbranch_scc1 L_x7')
e(f's_cmp_lt_u32 s{sPOS}, 5')
e(f's_subb_u32 s{sPOS}, s{sPOS}, 1')
e(f's_cmp_lt_u32 s{sSLOT}, 8')
e(f's_cselect_b32 s{sPOS}, 3, s{sPOS}')
e(f's_cselect_b32 s{sC3}, 1, 0')
e(f's_lshl3_add_u32 s{sCT}, s{sXCD}, s{sPOS}')
e('s_branch L_dec')
lab('L_x7')
e(f's_cmp_lt_u32 s{sSLOT}, 4')
e('s_cbranch_scc1 L_router')
e(f's_lshl3_add_u32 s{sCT}, s{sPOS}, -1')
e(f's_mov_b32 s{sC3}, 0')
lab('L_dec')
e(f's_lshl2_add_u32 s{sTMP}, s{sC3}, 3')
e(f's_and_b32 s{sMEM}, s{sSLOT}, s{sTMP}')
e(f's_lshr_b32 s{sKK}, s{sMEM}, 1')
e(f's_or_b32 s{sTMP}, s{sMEM}, 1')
e(f's_cmp_lg_u32 s{sC3}, 0')
e(f's_cselect_b32 s{sROW0}, s{sKK}, s{sTMP}')
e(f'v_lshrrev_b32 v{vT1}, 5, v{vL}')
e(f'v_bfe_u32 v{vT2}, v{vL}, 3, 2')
e(f'v_lshl_add_u32 v{vT0}, v{vT1}, 3, v{vT2}')
e(f'v_lshrrev_b32 v{vT2}, 3, v{vL}')
e(f'v_and_b32 v{vT2}, 6, v{vT2}')
e(f'v_sub_u32 v{vT2}, v{vL}, v{vT2}')
e(f'v_and_b32 v{vT2}, 7, v{vT2}')
e(f'v_lshlrev_b32 v{vT2}, 4, v{vT2}')
e(f's_and_b32 s{sTMP}, s{sWV}, 2')
e(f's_add_u32 s{sTMP}, s{sTMP}, s{sWV}')
e(f's_lshl_b32 s{sTMP2}, s{sROW0}, 6')
e(f's_add_u32 s{sTMP}, s{sTMP}, s{sTMP2}')
e(f's_mul_i32 s{sTMP}, s{sTMP}, {4*7168}')
e(f's_lshl_b32 s{sTMP2}, s{sCT}, 7')
e(f's_add_u32 s{sTMP}, s{sTMP}, s{sTMP2}')
e(f'v_mul_u32_u24 v{vB}, 7168, v{vT0}')
e(f'v_add3_u32 v{vB}, v{vB}, v{vT2}, s{sTMP}')
e(f's_cmp_lg_u32 s{sC3}, 0')
e(f's_cselect_b32 s{sTMP}, 0, {256*7168}')
e(f'v_subrev_u32 v{vA}, s{sTMP}, v{vB}')
e(f's_lshl_b32 s{sMW}, s{sWV}, 14')
e(f's_lshl_b32 s{sTMP2}, s{sC3}, 13')
e(f's_add_u32 s{sMA}, s{sMW}, s{sTMP2}')

cur_m0 = [None]
def set_m0(key, expr_reg, add):
    if cur_m0[0] == (key, add): return False
    cur_m0[0] = (key, add)
    if add: e(f's_add_u32 m0, s{expr_reg}, {add}')
    else: e(f's_mov_b32 m0, s{expr_reg}')
    return True
def issue(item):
    k, i = item
    if k == 'F':
        if i == 0: e(f'buffer_load_dword v{vTA}, v{vP1}, s[{SW}:{SW+3}], s{sP} offen{FSC}')
        elif i == 2: e(f'buffer_load_dword v{vTA}, v{vL16}, s[{SW}:{SW+3}], s{sH} offen{FSC}')
        else: e(f'buffer_load_dword v{vTA}, v{vPUB2}, s[{SW}:{SW+3}], 0 offen{FSC}')
        return
    if k == 'W':
        ch = set_m0('W', sMW, (i >> 2) * 4096) if i >= 8 else set_m0('A', sMA, (i >> 2) * 4096)
        imm = (i & 3) * 1024
        so = (i & 7) * 32 * 7168 - imm
        v, srd, nt = (vA if i < 8 else vB), SM, NT1
    elif k == 'D':
        gp, e4, chh = i >> 2, (i >> 1) & 1, i & 1
        ch = set_m0('D', sMD, DREG[(gp, chh)] + e4 * 4096)
        imm = 0
        so = (16*gp + 4*e4) * 2048 + chh * 128
        v, srd, nt = vD, SD, NT2
    else:
        ch = set_m0('X', sMX, i * 4096)
        imm = 0; so = 0
        v, srd, nt = (vXL if i == 0 else vX), SX, ''
    if so == 0:
        sof = '0'
        if ch: e('s_nop 0')
    else:
        e(f's_mov_b32 s{sTMP}, {so}'); sof = f's{sTMP}'
    e(f'buffer_load_dwordx4 v{v}, s[{srd}:{srd+3}], {sof} offen offset:{imm}{nt} lds')

def addr_x():
    e(f'v_and_b32 v{vT1}, 7, v{vL}')
    e(f'v_lshlrev_b32 v{vX}, 11, v{vT1}')
    e(f'v_and_b32 v{vT1}, 8, v{vL}')
    e(f'v_lshl_add_u32 v{vX}, v{vT1}, 3, v{vX}')
    e(f'v_and_b32 v{vT1}, 48, v{vL}')
    e(f's_lshl2_add_u32 s{sTMP}, s{sROW0}, s{sWV}')
    e(f's_lshl_b32 s{sTMP}, s{sTMP}, 7')
    e(f'v_add3_u32 v{vX}, v{vX}, v{vT1}, s{sTMP}')
    e(f's_cmp_lg_u32 s{sC3}, 0')
    e(f's_cselect_b32 s{sTMP}, 0, 512')
    e(f'v_subrev_u32 v{vXL}, s{sTMP}, v{vX}')
    e(f's_lshl_b32 s{sMX}, s{sWV}, 10')
    e(f's_add_u32 s{sMX}, s{sMX}, {LDS_X}')

FS = [('F', 0)] + ([] if 'nopre' in opts else [('F', 2)]) + ([('F', 1)] if 'f1prod' in opts else [])
FPOS = int(opts.get('fpos', 16))
NDR = max(0, PRO + sum(NISS) - 16 - len(FS))
if 'dold' in opts:
    DORD = [0, 2, 4, 6][:NDR] + [1, 3, 5, 7] + [0, 2, 4, 6][NDR:]
    BEARLY = [1, 3, 5, 7][:KB]
    assert KB <= 2 and NDR <= 1
else:
    DORD = [1, 3, 5, 7, 0, 2, 4, 6]
    BEARLY = DORD[NDR:NDR+KB]
    assert KB + NDR <= 2
assert sum(NISS[:4]) + PRO <= 16 + len(FS)
stream = [('W', s) for s in range(FPOS)] + FS + [('W', s) for s in range(FPOS, 16)] + [('D', u) for u in DORD]
sched = []; pos = PRO
for i_, st in enumerate(STAGES):
    n = NISS[i_]
    sched.append(stream[pos:pos+n]); pos = min(pos + n, len(stream))
tail_items = stream[pos:]
H = int(opts.get('h', 4))
e(f's_mov_b32 m0, s{sMA}')
e('s_waitcnt lgkmcnt(0)')
stamp(1)
cur_m0[0] = ('A', 0)
issued = stream[:H]
for it in issued: issue(it)
e(f's_load_dword s{sTAG}, s[{SW}:{SW+1}], 0')
addr_x()
issue(('X', 0)); issue(('X', 1))
assert PRO >= 8
for it in stream[H:8]: issue(it)
rest = stream[8:PRO]
assert all(k == 'W' for k, _ in rest)
if rest:
    e(f's_cmp_lg_u32 s{sC3}, 0')
    e('s_cbranch_scc1 L_pre')
    for it in rest: issue(it)
issued = issued + [('X', 0), ('X', 1)] + stream[H:PRO] + [('T', 0)]
lab('L_pre')
cur_m0[0] = None
stamp(2)
common_consts()
srdc(SD, 3584*1024*2)
e(f's_sub_u32 s{sK3}, s{sSLOT}, 4')
e(f's_cselect_b32 s{sNOP2}, {OOB}, 0')
e(f's_cselect_b32 s{sK3}, 0, s{sK3}')
e(f's_lshl2_add_u32 s{sTMP}, s{sK3}, s{sWV}')
e(f's_lshl_b32 s{sTMP}, s{sTMP}, 16')
e(f's_add_u32 s{sTMP}, s{sTMP}, s{sTROW}')
e(f's_add_u32 s{sTMP}, s{sTMP}, s{sNOP2}')
e(f'v_lshlrev_b32 v{vD}, 11, v{vT0}')
e(f'v_add3_u32 v{vD}, v{vD}, v{vT2}, s{sTMP}')
e(f's_lshl_b32 s{sMD}, s{sWV}, 10')
if 'tlbw' in opts:
    e('s_mov_b64 exec, 1')
    e(f's_mov_b32 s{sTMP}, {7*32*7168}')
    e(f'buffer_load_dword v{vTA}, v{vB}, s[{SM}:{SM+3}], s{sTMP} offen')
    e(f'buffer_load_dword v{vTA}, v{vD}, s[{SD}:{SD+3}], 0 offen')
    e(f'buffer_load_ushort v{vTA}, v{vOUT}, s[{SO}:{SO+3}], 0 offen')
    e('s_mov_b64 exec, -1')
    issued = issued[:-1] + [('Z', 0), ('Z', 1), ('Z', 2), ('T', 0)]
e(f'v_bfe_u32 v{vT1}, v{vL}, 2, 3')
e(f'v_lshlrev_b32 v{vT0}, 7, v{vT1}')
e(f'v_and_b32 v{vT2}, 1, v{vL}')
e(f'v_lshl_add_u32 v{vT0}, v{vT2}, 3, v{vT0}')
e(f'v_and_b32 v{vT1}, 6, v{vT1}')
e(f'v_bfe_u32 v{vT2}, v{vL}, 1, 1')
e(f'v_add_u32 v{vT1}, v{vT1}, v{vT2}')
e(f'v_lshl_add_u32 v{vT2}, v{vWV}, 1, v{vT1}')
e(f'v_and_b32 v{vT2}, 7, v{vT2}')
e(f'v_lshl_add_u32 v{vRD1}, v{vT2}, 4, v{vT0}')
e(f'v_lshrrev_b32 v{vT2}, 5, v{vL}')
e(f'v_lshl_add_u32 v{vRD1}, v{vT2}, 15, v{vRD1}')
e(f's_cmp_gt_u32 s{sWV}, 1')
e(f's_cselect_b32 s{sTMP}, {DREG[(0,1)]}, 0')
e(f's_mov_b32 s{sTMP2}, {DREG[(1,0)] - DREG[(0,0)]}')
e(f's_cselect_b32 s{sTMP2}, {DREG[(1,1)] - DREG[(0,1)]}, s{sTMP2}')
e(f'v_mul_lo_u32 v{vT2}, v{vT2}, s{sTMP2}')
e(f'v_add3_u32 v{vT0}, v{vT0}, v{vT2}, s{sTMP}')
e(f'v_lshl_add_u32 v{vT1}, v{vWV}, 2, v{vT1}')
e(f'v_and_b32 v{vT2}, 7, v{vT1}')
e(f'v_lshl_add_u32 v{vRDA}, v{vT2}, 4, v{vT0}')
e(f'v_add_u32 v{vT1}, 2, v{vT1}')
e(f'v_and_b32 v{vT2}, 7, v{vT1}')
e(f'v_lshl_add_u32 v{vRDB}, v{vT2}, 4, v{vT0}')
e(f'v_add_u32 v{vXL}, {LDS_X}, v{vL16}')
e(f's_lshl2_add_u32 s{sP}, s{sCT}, s{sKK}')
e(f's_lshl2_add_u32 s{sP}, s{sP}, s{sWV}')
e(f's_lshl_b32 s{sP}, s{sP}, 10')
e(f's_and_b32 s{sTMP2}, s{sMEM}, 1')
e(f's_lshl_b32 s{sTMP2}, s{sTMP2}, 7')
e(f's_add_u32 s{sP}, s{sP}, s{sTMP2}')
e(f's_add_u32 s{sP}, s{sP}, {PBASE}')
e(f's_lshl2_add_u32 s{sH}, s{sK3}, s{sWV}')
e(f's_and_b32 s{sTMP}, s{sH}, 0x78')
e(f's_add_u32 s{sH}, s{sH}, s{sTMP}')
e(f's_lshl_b32 s{sH}, s{sH}, 10')
e(f's_bfe_u32 s{sTMP}, s{sTAG+1}, 0x10002')
e(f's_xor_b32 s{sTMP}, s{sTMP}, {opts.get("flip", 0)}')
e(f's_lshl_b32 s{sTMP}, s{sTMP}, 13')
e(f's_add_u32 s{sH}, s{sH}, s{sTMP}')
e(f's_add_u32 s{sH}, s{sH}, {HBASE}')
e(f'v_mul_u32_u24 v{vHR}, 17, v{vRA}')
e(f'v_add_u32 v{vHR}, {LDS_H}, v{vHR}')
e(f'v_lshl_add_u32 v{vHW}, v{vWV}, 6, v{vHR}')
e(f'v_and_b32 v{vT1}, 56, v{vL}')
e(f'v_add_u32 v{vHW}, v{vHW}, v{vT1}')
e(f'v_and_b32 v{vT1}, 48, v{vL}')
e(f'v_add_u32 v{vHR}, v{vHR}, v{vT1}')
for i in range(32): e(f'v_mov_b32 v{vH+i}, 0')
e(f'v_bfe_u32 v{vT0}, v{vL}, 3, 1')
e(f'v_lshrrev_b32 v{vT2}, 4, v{vL}')
e(f'v_lshl_add_u32 v{vPUB2}, v{vT0}, 2, v{vT2}')
e(f'v_mul_u32_u24 v{vPUB2}, {YS}, v{vPUB2}')
e(f's_lshl2_add_u32 s{sTMP}, s{sCB}, s{sWV}')
e(f's_mul_i32 s{sTMP}, s{sTMP}, {8*YS}')
e(f's_lshl_b32 s{sTMP2}, s{sK3}, 7')
e(f's_add_u32 s{sTMP}, s{sTMP}, s{sTMP2}')
e(f's_add_u32 s{sTMP}, s{sTMP}, s{sNOP2}')
e(f's_add_u32 s{sTMP}, s{sTMP}, {YBASE}')
e(f'v_add3_u32 v{vPUB2}, v{vPUB2}, v{vRA}, s{sTMP}')
for i in range(8): e(f'v_mov_b32 v{vACC+i}, 0')
e(f's_cmp_eq_u32 s{sNOP2}, 0')
e('s_cbranch_scc1 L_nors')
rsetup()
if 'wpre' in opts:
    e(f'buffer_load_dword v{vTA}, v{vHP}, s[{SW}:{SW+3}], 0 offen')
    e(f's_mov_b32 s{sTMP}, 0x2000')
    e(f'buffer_load_dword v{vTA}, v{vHP}, s[{SW}:{SW+3}], s{sTMP} offen')
lab('L_nors')
e('s_waitcnt lgkmcnt(0)')
if 'estamp' in opts: stamp(21)
common_tag()
iB = [i for i, st in enumerate(STAGES) if st[0] == 8][0]
if KB:
    e(f's_and_b32 s{sTMP}, s{sCB}, 3')
    e(f's_cmp_eq_u32 s{sTMP}, 1')
    e('s_cbranch_scc0 L_nob')
    cur_m0[0] = None
    for u in BEARLY: issue(('D', u))
    lab('L_nob')
e(f's_cmp_lg_u32 s{sC3}, 0')
e('s_cbranch_scc0 L_compA')
cur_m0[0] = None
pre = [x for sc_ in sched[:iB] for x in sc_]
assert ('W', 15) in pre + issued
nonw = [x for x in pre if x[0] != 'W']
for it in nonw: issue(it)
e(f's_waitcnt vmcnt({min(4, 8 - H) + len(nonw)})')
e('s_branch L_compB')
lab('L_compA')
cur_m0[0] = None
for si, stage in enumerate(STAGES):
    if stage[0] == 8:
        lab('L_compB'); cur_m0[0] = None
        upto = list(issued)
    idx = max(issued.index(('W', stage[-1])), issued.index(('X', int(stage[-1] >= 8))))
    e(f's_waitcnt vmcnt({len([x for x in issued[idx+1:] if x[0] != chr(84)])})')
    for it in sched[si]: issue(it); issued.append(it)
    e('s_barrier')
    if stage[0] == 8: stamp(3)
    if stage[0] == 0 and 'estamp' in opts: stamp(20)
    if stage[0] == 6 and 'echo' in opts: stamp(13)
    ts = sorted(set(s >> 1 for s in stage))
    for t in ts:
        if (2*t) in stage:
            e(f'ds_read_b128 v[{vXF+4*(t&1)}:{vXF+4*(t&1)+3}], v{vXL} offset:{t*1024}')
    for i, s in enumerate(stage):
        b = vW + 4*i
        e(f'ds_read_b64_tr_b16 v[{b}:{b+1}], v{vRD1} offset:{s*1024}')
        e(f'ds_read_b64_tr_b16 v[{b+2}:{b+3}], v{vRD1} offset:{16384+s*1024}')
    for i, s in enumerate(stage):
        b = vW + 4*i
        e(f's_waitcnt lgkmcnt({2*(len(stage)-1-i)})')
        acc = vACC + 4*(s & 1); t = s >> 1
        xf = vXF + 4*(t & 1)
        e(f'v_mfma_f32_16x16x32_bf16 v[{acc}:{acc+3}], v[{b}:{b+3}], v[{xf}:{xf+3}], v[{acc}:{acc+3}]')
stamp(4)
e(f's_mov_b32 s{sCNT}, {POLL_MAX}')
e('s_nop 6')
for r in range(4):
    e(f'v_add_f32_dpp v{vPP+r}, v{vACC+4+r}, v{vACC+r} row_ror:8 row_mask:0xf bank_mask:0xf')
for r in range(4):
    e(f'v_bfi_b32 v{vPP+r}, v{vFF}, s{sTI+r}, v{vPP+r}')
def pub1(sc):
    e(f's_mov_b64 exec, s[{sLO}:{sLO+1}]')
    e(f'buffer_store_dwordx4 v[{vPP}:{vPP+3}], v{vL16}, s[{SW}:{SW+3}], s{sP} offen{sc}')
    e('s_mov_b64 exec, -1')
pub1('')
stamp(5)
e(f's_cmp_lg_u32 s{sNOP2}, 0')
e('s_cbranch_scc1 L_reduce')
seq = issued[issued.index(('W', 15))+1:] + [('S', 0)]
if 'puback' in opts: e('s_waitcnt vmcnt(0)')
if 'nopubbar' not in opts: e('s_barrier')
def tbl_load():
    e(f'buffer_load_dwordx2 v[{vTB}:{vTB+1}], v{vTR}, s[{SW}:{SW+3}], s{sTROW} offen offset:{TBASE} sc1')
def tbl_check(lbl):
    e(f'v_cmp_eq_u64 s[{sLOC}:{sLOC+1}], s[{sTAG}:{sTAG+1}], v[{vTB}:{vTB+1}]')
    if 'nolocal' in opts: e(f's_mov_b64 s[{sLOC}:{sLOC+1}], 0')
    e(f's_cmp_eq_u64 s[{sLOC}:{sLOC+1}], -1')
    e(f's_cbranch_scc1 {lbl}')
    pub1(' sc1')
    lab(lbl)
def small_loads():
    tbl_load(); seq.append(('T', 1))
    e(f'buffer_load_ushort v{vXR}, v{vOUT}, s[{SX}:{SX+3}], 0 offen'); seq.append(('R', 0))
    e(f'buffer_load_dwordx4 v[{vRG}:{vRG+3}], v{vRB}, s[{SW}:{SW+3}], 0 offen offset:{RBASE} sc1'); seq.append(('R', 1))
if 'smalllast' not in opts: small_loads()
if KB:
    assert tail_items[:KB] == [('D', u) for u in BEARLY], tail_items
    e(f's_and_b32 s{sTMP}, s{sCB}, 3')
    e(f's_cmp_eq_u32 s{sTMP}, 1')
    e('s_cbranch_scc1 L_skipb')
for n_, it in enumerate(tail_items):
    if KB and n_ == KB: lab('L_skipb'); cur_m0[0] = None
    if 'dwin' in opts and n_ >= int(opts['dwin']): e(f's_waitcnt vmcnt({int(opts["dwin"])-1})')
    issue(it); seq.append(it)
if 'smalllast' in opts: small_loads()
afterD = len(seq) - 1 - seq.index(('D', DORD[-1]))
e(f's_waitcnt vmcnt({afterD + int(opts.get("vw", 4))})')
e(f's_load_dwordx8 s[{sV}:{sV+7}], s[{SW}:{SW+1}], {VBASE}')
e(f's_mov_b32 s{sTMP2}, 0')
e('s_waitcnt lgkmcnt(0)')
for i in range(4):
    e(f's_cmp_eq_u32 s{sV+2*i}, s{sTAG}')
    e(f's_cselect_b32 s{sTMP}, s{sV+2*i+1}, 0')
    e(f's_add_i32 s{sTMP2}, s{sTMP2}, s{sTMP}')
e(f's_cmp_{"lt" if opts.get("flip", "0") == "1" else "gt"}_i32 s{sTMP2}, 0')
e(f's_cselect_b32 s{sTMP}, 0x2000, 0')
e(f's_xor_b32 s{sH}, s{sH}, s{sTMP}')
e(f's_waitcnt vmcnt({afterD + PW})')
def hloads():
    e(f'buffer_load_dwordx4 v[{vG}:{vG+3}], v{vL16}, s[{SW}:{SW+3}], s{sH} offen {HL}')
hloads()
e(f's_waitcnt vmcnt({afterD + 1})')
e('s_barrier')
stamp(6)
for s in range(4):
    for sub, va in ((0, vRDA), (1, vRDB)):
        b = vWD + 8*s + 4*sub
        e(f'ds_read_b64_tr_b16 v[{b}:{b+1}], v{va} offset:{s*1024}')
        e(f'ds_read_b64_tr_b16 v[{b+2}:{b+3}], v{va} offset:{s*1024+4096}')
e('s_waitcnt vmcnt(1)')
tbl_check('L_tc1')
e('s_branch L_pollhw')
lab('L_pollh')
e(f's_sub_u32 s{sCNT}, s{sCNT}, 1')
e('s_cbranch_scc1 L_pollh_done')
hloads()
lab('L_pollhw')
e('s_waitcnt vmcnt(0)')
e(f'v_cmp_ne_u64 vcc, s[{sT64}:{sT64+1}], v[{vG+2}:{vG+3}]')
e('s_cbranch_vccnz L_pollh')
lab('L_pollh_done')
e(f'ds_write_b64 v{vHW}, v[{vG}:{vG+1}]')
stamp(7)
e(f's_mov_b64 exec, s[{sLO}:{sLO+1}]')
e('s_waitcnt lgkmcnt(0)')
e('s_barrier')
for s in range(4): e(f'ds_read_b128 v[{vH+4*s}:{vH+4*s+3}], v{vHR} offset:{64*s}')
e(f's_mov_b64 exec, s[{sHI}:{sHI+1}]')
for s in range(4): e(f'ds_read_b128 v[{vH+16+4*s}:{vH+16+4*s+3}], v{vHR} offset:{64*s}')
e('s_mov_b64 exec, -1')
for k in range(8):
    sub, s = k >> 2, k & 3
    e(f's_waitcnt lgkmcnt({7-k})')
    b = vWD + 8*s + 4*sub
    c = '0' if k == 0 else f'v[{vACC}:{vACC+3}]'
    e(f'v_mfma_f32_16x16x32_bf16 v[{vACC}:{vACC+3}], v[{b}:{b+3}], v[{vH+4*k}:{vH+4*k+3}], {c}')
e(f's_cmp_eq_u64 s[{sLOC}:{sLOC+1}], -1')
e('s_nop 6')
for r in range(4):
    e(f'v_bfi_b32 v{vP+r}, v{vFF}, s{sTI+r}, v{vACC+r}')
e('s_cbranch_scc0 L_far')
e(f'buffer_store_dwordx4 v[{vP}:{vP+3}], v{vPUB2}, s[{SW}:{SW+3}], 0 offen')
if 'cleanp' in opts:
    e(f's_cmp_eq_u32 s{sWV}, 0')
    e('s_cbranch_scc1 L_fin')
    pub1(' sc1')
lab('L_fin')
stamp(8)
e(f's_mov_b32 s{sCNT}, {POLL_MAX}')
def check(g):
    e(f'v_perm_b32 v{vP+4}, v{g+1}, v{g}, s{sSEL0}')
    e(f'v_perm_b32 v{vP+5}, v{g+3}, v{g+2}, s{sSEL0}')
    e(f'v_cmpx_eq_u64 vcc, s[{sEXP}:{sEXP+1}], v[{vP+4}:{vP+5}]')
def strip(g, first):
    for r in range(4): e(f'v_xor_b32 v{g+r}, s{sTB+r}, v{g+r}')
    if first: e(f'v_or_b32 v{vP+4}, v{g}, v{g+1}')
    else: e(f'v_or3_b32 v{vP+4}, v{vP+4}, v{g}, v{g+1}')
    e(f'v_or3_b32 v{vP+4}, v{vP+4}, v{g+2}, v{g+3}')
def strip_test(lbl):
    e(f'v_and_b32 v{vP+4}, 0x7f, v{vP+4}')
    e(f'v_cmp_ne_u32 vcc, 0, v{vP+4}')
    e(f's_cbranch_vccnz {lbl}')
def padd(a, b):
    e(f'v_pk_add_f32 v[{vG+4*a}:{vG+4*a+1}], v[{vG+4*a}:{vG+4*a+1}], v[{vG+4*b}:{vG+4*b+1}]')
    e(f'v_pk_add_f32 v[{vG+4*a+2}:{vG+4*a+3}], v[{vG+4*a+2}:{vG+4*a+3}], v[{vG+4*b+2}:{vG+4*b+3}]')
def yload():
    e(f'buffer_load_dwordx4 v[{vG+4}:{vG+7}], v{vY4}, s[{SW}:{SW+3}], s{sY} offen sc1')
e('s_mov_b32 exec_hi, 0x00ffffff')
yload()
e('s_mov_b32 exec_hi, -1')
lab('L_rchk')
strip(vRG, True)
strip_test('L_rpoll')
for r in range(4): e(f'v_mov_b32 v{vG+r}, 0')
e(f'v_and_b32 v{vRS}, 0xffff0000, v{vRG}')
e(f'v_lshlrev_b32 v{vXR}, 16, v{vXR}')
e(f'v_fma_f32 v{vXR}, v{vXR}, 0, v{vXR}')
e('s_mov_b32 exec_hi, 0x00ffffff')
e('s_branch L_poll2w')
lab('L_poll2')
e(f's_sub_u32 s{sCNT}, s{sCNT}, 1')
e('s_cbranch_scc1 L_poll2_done')
yload()
lab('L_poll2w')
e('s_waitcnt vmcnt(0)')
for r in range(4): e(f'v_xor_b32 v{vG+r}, s{sTB+r}, v{vG+4+r}')
e(f'v_or_b32 v{vP+4}, v{vG}, v{vG+1}')
e(f'v_or3_b32 v{vP+4}, v{vP+4}, v{vG+2}, v{vG+3}')
strip_test('L_poll2')
lab('L_poll2_done')
e('s_mov_b32 exec_hi, -1')
stamp(9)
e(f'v_permlane32_swap_b32 v{vG}, v{vG+2}')
e(f'v_permlane32_swap_b32 v{vG+1}, v{vG+3}')
e(f'v_add_f32 v{vG}, v{vG}, v{vG+2}')
e(f'v_add_f32 v{vG+1}, v{vG+1}, v{vG+3}')
e('s_nop 1')
e(f'v_permlane16_swap_b32 v{vG}, v{vG+1}')
e(f'v_add_f32 v{vG}, v{vG}, v{vG+1}')
for sh in (8, 4, 2):
    e('s_nop 1')
    e(f'v_add_f32_dpp v{vG}, v{vG}, v{vG} row_ror:{sh} row_mask:0xf bank_mask:0xf')
e(f'v_cvt_pk_bf16_f32 v{vG}, v{vG}, v{vG}')
e(f'v_lshlrev_b32 v{vG}, 16, v{vG}')
e(f'v_mul_f32 v{vG}, v{vG}, v{vRS}')
e(f'v_cvt_pk_bf16_f32 v{vG}, v{vG}, v{vG}')
e(f'v_lshlrev_b32 v{vG}, 16, v{vG}')
e(f'v_add_f32 v{vG}, v{vG}, v{vXR}')
e(f'v_cvt_pk_bf16_f32 v{vG}, v{vG}, v{vG}')
e('s_mov_b32 exec_lo, 0x00030003'); e('s_mov_b32 exec_hi, 0x00030003')
e(f'buffer_store_short v{vG}, v{vOUT}, s[{SO}:{SO+3}], 0 offen{OUTSC}')
e(f's_or_b32 s{sTMP}, s{sTASK}, s{sWV}')
e('s_cbranch_scc1 L_fin_done')
e('s_mov_b64 exec, 1')
e(f'v_mov_b32 v{vT1}, s{sTAG}')
e(f'buffer_store_dword v{vT1}, v{vL16}, s[{SW}:{SW+3}], 0 offen')
lab('L_fin_done')
if 'echo' in opts:
    i_, j_ = map(int, opts['echo'].split(','))
    e('s_waitcnt vmcnt(0)')
    stamp(10)
    e(f's_cmp_lg_u32 s{sWV}, 0')
    e('s_cbranch_scc1 L_end')
    e(f's_cmp_lg_u32 s2, {opts.get("ewg", 68)}')
    e('s_cbranch_scc1 L_end')
    e('s_waitcnt lgkmcnt(0)')
    e(f's_sub_u32 s96, s{68+2*i_}, s{68+2*j_}')
    e(f's_mul_i32 s96, s96, {opts.get("ek", 2)}')
    e('s_min_u32 s96, s96, 20000')
    if 'eloc' in opts:
        e(f's_cmp_eq_u64 s[{sLOC}:{sLOC+1}], -1')
        e('s_cselect_b32 s96, 0, 1000')
    lab('L_echo')
    e('s_memrealtime s[98:99]')
    e('s_waitcnt lgkmcnt(0)')
    e('s_sub_u32 s98, s98, s88')
    e('s_cmp_lt_u32 s98, s96')
    e('s_cbranch_scc1 L_echo')
if STAMPS and 'echo' not in opts:
    e('s_waitcnt vmcnt(0)')
    stamp(10)
    e('s_waitcnt lgkmcnt(0)')
    n = 13
    e('s_mov_b64 exec, 1')
    e(f's_lshl_b32 s{sTMP}, s2, 2')
    e(f's_add_u32 s{sTMP}, s{sTMP}, s{sWV}')
    e(f's_lshl_b32 s{sTMP}, s{sTMP}, 6')
    e(f's_add_u32 s{sTMP}, s{sTMP}, {STAMPBASE}')
    for i in range(n):
        e(f'v_mov_b32 v{vT1}, s{SB(i)}')
        e(f'buffer_store_dword v{vT1}, v{vL16}, s[{SW}:{SW+3}], s{sTMP} offen offset:{4*i}')
        e('s_nop 0')
lab('L_end')
e('s_endpgm')
lab('L_far')
e(f'buffer_store_dwordx4 v[{vP}:{vP+3}], v{vPUB2}, s[{SW}:{SW+3}], 0 offen sc1')
e('s_branch L_fin')
lab('L_rpoll')
e(f's_sub_u32 s{sCNT}, s{sCNT}, 1')
e('s_cbranch_scc1 L_fin_done')
e(f'buffer_load_dwordx4 v[{vRG}:{vRG+3}], v{vRB}, s[{SW}:{SW+3}], 0 offen offset:{RBASE} sc1')
e('s_waitcnt vmcnt(0)')
e('s_branch L_rchk')

lab('L_reduce')
e(f's_bfe_u32 s{sHB}, s{sTAG+1}, 0x10002')
e(f's_xor_b32 s{sHB}, s{sHB}, {opts.get("flip", 0)}')
e(f's_lshl_b32 s{sHB}, s{sHB}, 13')
if 'sswap' in opts: e(f's_xor_b32 s{sHB}, s{sHB}, 0x2000')
e(f's_xor_b32 s{sHA}, s{sHB}, 0x2000')
e(f'v_mov_b32 v{vGR+4}, s{sT64}'); e(f'v_mov_b32 v{vGR+5}, s{sT64+1}')
e(f's_mov_b32 s{sCNT}, {POLL_MAX}')
e(f's_mov_b32 s{sTMP}, 0xbfb8aa3b')
e(f's_mov_b32 s{sTMP2}, 0xffff0000')
lab('L_poll1')
e(f's_cmp_lg_u32 s{sCNT}, {POLL_MAX - KFALL}')
e('s_cbranch_scc1 L_poll1b')
pub1(' sc1')
lab('L_poll1b')
def ld1(i, so, imm):
    e(f'buffer_load_dwordx4 v[{vG+4*i}:{vG+4*i+3}], v{vQ}, s[{SW}:{SW+3}], s{so} offen offset:{imm} sc1')
e(f's_sub_u32 s{sCNT}, s{sCNT}, 1')
e('s_cbranch_scc1 L_poll1_done')
ld1(0, sQ, 0); ld1(1, sQ2, 0); ld1(2, sQ, 128); ld1(3, sQ2, 128)
for i in range(4):
    e(f's_waitcnt vmcnt({3-i})')
    strip(vG + 4*i, i == 0)
    if i == 1: padd(0, 1)
strip_test('L_poll1')
lab('L_poll1_done')
stamp(11)
padd(2, 3)
e(f's_cmp_lg_u32 s{sK3}, 3')
e('s_cbranch_scc1 L_act')
for i in (0, 1, 2, 3, 8, 9, 10, 11):
    e(f'v_add_f32_dpp v{vG+i}, v{vG+i}, v{vG+i} row_ror:8 row_mask:0xf bank_mask:0xf')
lab('L_act')
R = vG; U = vG + 8; P = vP
e(f'v_cvt_pk_bf16_f32 v{P}, v{R}, v{R+1}')
e(f'v_cvt_pk_bf16_f32 v{P+1}, v{R+2}, v{R+3}')
e(f'v_lshlrev_b32 v{R}, 16, v{P}')
e(f'v_and_b32 v{R+1}, s{sTMP2}, v{P}')
e(f'v_lshlrev_b32 v{R+2}, 16, v{P+1}')
e(f'v_and_b32 v{R+3}, s{sTMP2}, v{P+1}')
for r in range(4): e(f'v_mul_f32 v{P+r}, s{sTMP}, v{R+r}')
for r in range(4): e(f'v_exp_f32 v{P+r}, v{P+r}')
e(f'v_cvt_pk_bf16_f32 v{P+6}, v{U}, v{U+1}')
e(f'v_cvt_pk_bf16_f32 v{P+7}, v{U+2}, v{U+3}')
e(f'v_pk_add_f32 v[{P}:{P+1}], v[{P}:{P+1}], 1.0 op_sel_hi:[1,0]')
e(f'v_pk_add_f32 v[{P+2}:{P+3}], v[{P+2}:{P+3}], 1.0 op_sel_hi:[1,0]')
for r in range(4): e(f'v_rcp_f32 v{P+r}, v{P+r}')
e(f'v_lshlrev_b32 v{U}, 16, v{P+6}')
e(f'v_and_b32 v{U+1}, s{sTMP2}, v{P+6}')
e(f'v_lshlrev_b32 v{U+2}, 16, v{P+7}')
e(f'v_and_b32 v{U+3}, s{sTMP2}, v{P+7}')
e(f'v_pk_mul_f32 v[{P}:{P+1}], v[{P}:{P+1}], v[{R}:{R+1}]')
e(f'v_pk_mul_f32 v[{P+2}:{P+3}], v[{P+2}:{P+3}], v[{R+2}:{R+3}]')
e(f'v_cvt_pk_bf16_f32 v{P+4}, v{P}, v{P+1}')
e(f'v_cvt_pk_bf16_f32 v{P+5}, v{P+2}, v{P+3}')
e(f'v_lshlrev_b32 v{P}, 16, v{P+4}')
e(f'v_and_b32 v{P+1}, s{sTMP2}, v{P+4}')
e(f'v_lshlrev_b32 v{P+2}, 16, v{P+5}')
e(f'v_and_b32 v{P+3}, s{sTMP2}, v{P+5}')
e(f'v_pk_mul_f32 v[{P}:{P+1}], v[{P}:{P+1}], v[{U}:{U+1}]')
e(f'v_pk_mul_f32 v[{P+2}:{P+3}], v[{P+2}:{P+3}], v[{U+2}:{U+3}]')
e(f'v_cvt_pk_bf16_f32 v{vGR+2}, v{P}, v{P+1}')
e(f'v_cvt_pk_bf16_f32 v{vGR+3}, v{P+2}, v{P+3}')
e(f'buffer_store_dwordx4 v[{vGR+2}:{vGR+5}], v{vHP}, s[{SW}:{SW+3}], s{sHA} offen {HS}')
e(f'buffer_store_dwordx4 v[{vGR+2}:{vGR+5}], v{vHP}, s[{SW}:{SW+3}], s{sHB} offen {HS}')
stamp(12)
if 'norbar' not in opts: e('s_barrier')
if 'f1prod' not in opts: yprefetch()
tbl_load()
e(f'buffer_load_ushort v{vXR}, v{vOUT}, s[{SX}:{SX+3}], 0 offen')
e(f'buffer_load_dwordx4 v[{vRG}:{vRG+3}], v{vRB}, s[{SW}:{SW+3}], 0 offen offset:{RBASE} sc1')
e('s_waitcnt vmcnt(0)')
tbl_check('L_tc2')
e('s_branch L_fin')

lab('L_router')
e(f's_load_dwordx2 s[{SR}:{SR+1}], s[0:1], 8')
srdc(SR, 2048)
common_consts()
e(f's_lshl1_add_u32 s{sKK}, s{sSLOT}, s{sWV}')
e(f's_lshl_b32 s{sTMP2}, s{sKK}, 11')
e(f's_mov_b32 s{sP}, {PBASE + 7*16384 + 8192}')
e('s_waitcnt lgkmcnt(0)')
e(f's_load_dword s{sTAG}, s[{SW}:{SW+1}], 0')
e(f's_cmp_lg_u32 s{sWV}, 3')
e('s_cbranch_scc1 L_noprobe')
e(f's_lshl_b32 s{sV+2}, s{sSLOT}, 9')
e(f's_add_u32 s{sV+2}, s{sV+2}, {PROBE1}')
e(f's_add_u32 s{sV+3}, s{sV+2}, 4096')
e('s_mov_b64 exec, 0xffffffff')
for r in range(4): e(f'v_mov_b32 v{vG+4+r}, 0')
e(f'buffer_store_dwordx4 v[{vG+4}:{vG+7}], v{vL16}, s[{SW}:{SW+3}], s{sV+2} offen sc1')
e(f'buffer_store_dwordx4 v[{vG+4}:{vG+7}], v{vL16}, s[{SW}:{SW+3}], s{sV+3} offen sc1')
e('s_mov_b64 exec, -1')
lab('L_noprobe')
e(f'buffer_load_dwordx4 v[{vRX}:{vRX+3}], v{vL16}, s[{SX}:{SX+3}], s{sTMP2} offen')
e(f'buffer_load_dwordx4 v[{vRX+4}:{vRX+7}], v{vL16}, s[{SX}:{SX+3}], s{sTMP2} offen offset:1024')
e(f'buffer_load_dwordx4 v[{vRX+8}:{vRX+11}], v{vL16}, s[{SR}:{SR+3}], 0 offen')
e(f'buffer_load_dwordx4 v[{vRX+12}:{vRX+15}], v{vL16}, s[{SR}:{SR+3}], 0 offen offset:1024')
e(f'v_mov_b32 v{vRS}, 0')
rsetup()
if 'wpre' in opts:
    e(f'buffer_load_dword v{vTA}, v{vHP}, s[{SW}:{SW+3}], 0 offen')
    e(f's_mov_b32 s{sTMP}, 0x2000')
    e(f'buffer_load_dword v{vTA}, v{vHP}, s[{SW}:{SW+3}], s{sTMP} offen')
e('s_waitcnt vmcnt(0) lgkmcnt(0)')
common_tag()
e('s_barrier')
e(f's_cmp_lg_u32 s{sWV}, 3')
e('s_cbranch_scc1 L_noprobe2')
e('s_mov_b64 exec, 1')
e(f's_and_b32 s{sV}, s{sSLOT}, 1')
e(f's_cselect_b32 s{sV+4}, s{sV+3}, s{sV+2}')
e(f's_cselect_b32 s{sV+5}, s{sV+2}, s{sV+3}')
e(f's_bfe_u32 s{sV+1}, s{sTAG+1}, 0x10002')
e(f's_xor_b32 s{sV}, s{sV}, s{sV+1}')
e(f's_mov_b32 s{sV+6}, 0')
for j in range(NPR):
    a_, b_ = (sV+4, sV+5) if j % 2 == 0 else (sV+5, sV+4)
    e(f'v_mov_b32 v{vG+1}, 1')
    e(f'buffer_load_dword v{vG}, v{vL16}, s[{SW}:{SW+3}], s{a_} offen offset:{128*j} sc1')
    e(f'buffer_load_dword v{vG+1}, v{vL16}, s[{SW}:{SW+3}], s{b_} offen offset:{128*j} sc1')
    e('s_waitcnt vmcnt(1)')
    for _ in range(int(opts.get('nd', 2))):
        e(f'ds_read_b32 v{vG+2}, v{vL16}')
        e('s_waitcnt lgkmcnt(0)')
    e(f'v_readfirstlane_b32 s{sV+1}, v{vG+1}')
    e('s_waitcnt vmcnt(0)')
    e(f's_xor_b32 s{sV+1}, s{sV+1}, s{sV}')
    if j % 2: e(f's_xor_b32 s{sV+1}, s{sV+1}, 1')
    e(f's_lshl1_add_u32 s{sV+6}, s{sV+1}, s{sV+6}')
e(f's_sub_u32 s{sV+6}, s{sV+6}, {NPR}')
e(f'v_mov_b32 v{vG+2}, s{sTAG}')
e(f'v_mov_b32 v{vG+3}, s{sV+6}')
e(f's_lshl_b32 s{sV+2}, s{sSLOT}, 3')
e(f'buffer_store_dwordx2 v[{vG+2}:{vG+3}], v{vL16}, s[{SW}:{SW+3}], s{sV+2} offen offset:{VBASE} sc1')
e('s_mov_b64 exec, -1')
lab('L_noprobe2')
e(f's_cmp_gt_u32 s{sWV}, 1')
e('s_cbranch_scc1 L_rdone')
for i in range(8):
    e(f'v_dot2c_f32_bf16 v{vRS}, v{vRX+i}, v{vRX+8+i}')
e('s_nop 2')
for sh in (1, 2, 4, 8):
    e(f'v_add_f32_dpp v{vRS}, v{vRS}, v{vRS} row_ror:{sh} row_mask:0xf bank_mask:0xf')
    e('s_nop 1')
e(f'v_mov_b32 v{vT1}, v{vRS}')
e('s_nop 1')
e(f'v_permlane16_swap_b32 v{vRS}, v{vT1}')
e(f'v_add_f32 v{vRS}, v{vRS}, v{vT1}')
e(f'v_mov_b32 v{vT1}, v{vRS}')
e('s_nop 1')
e(f'v_permlane32_swap_b32 v{vRS}, v{vT1}')
e(f'v_add_f32 v{vRS}, v{vRS}, v{vT1}')
e(f'v_cvt_pk_bf16_f32 v{vRS}, v{vRS}, v{vRS}')
e(f'v_lshlrev_b32 v{vRS}, 16, v{vRS}')
e(f'v_mul_f32 v{vRS}, 0xbfb8aa3b, v{vRS}')
e(f'v_exp_f32 v{vRS}, v{vRS}')
e('s_nop 0')
e(f'v_add_f32 v{vRS}, 1.0, v{vRS}')
e(f'v_rcp_f32 v{vRS}, v{vRS}')
e('s_nop 0')
e(f'v_cvt_pk_bf16_f32 v{vRS}, v{vRS}, v{vRS}')
e(f'v_bfi_b32 v{vP}, v{vFF}, s{sTI}, v{vRS}')
for r in range(1, 4): e(f'v_mov_b32 v{vP+r}, s{sTB+r}')
e(f's_lshl_b32 s{sTMP}, s{sKK}, 4')
e('s_mov_b64 exec, 1')
e(f'buffer_store_dwordx4 v[{vP}:{vP+3}], v{vL16}, s[{SW}:{SW+3}], s{sTMP} offen offset:{RBASE} sc1')
e('s_mov_b64 exec, -1')
lab('L_rdone')
e('s_barrier')
e('s_branch L_reduce')
lab('L_codeend')
o += ['.section .rodata,"a"', '.p2align 6', f'.amdhsa_kernel {NAME}',
      f'  .amdhsa_next_free_vgpr {NV}', '  .amdhsa_next_free_sgpr 100', f'  .amdhsa_accum_offset {NV}',
      '  .amdhsa_group_segment_fixed_size 0', '  .amdhsa_kernarg_size 64', '  .amdhsa_user_sgpr_count 2',
      '  .amdhsa_user_sgpr_kernarg_segment_ptr 1', '  .amdhsa_system_sgpr_workgroup_id_x 1',
      '  .amdhsa_float_denorm_mode_32 3',
      '.end_amdhsa_kernel']
print('\n'.join(o))
```

```python
import sys
opts = dict(a.split('=') if '=' in a else (a, '1') for a in sys.argv[1:])
opts.setdefault('nopre', '1'); opts.setdefault('wpre', '1'); opts.setdefault('niss', '[2,2,2,1,1,0,0,0,0]')
STAMPS = 'stamps' in opts
NT1 = '' if 'nont1' in opts else ' nt'
NT2 = '' if 'nont2' in opts else ' nt'
FSC = ' ' + opts.get('fsc', 'none').replace('+', ' ').replace('none', '')
OUTSC = ' ' + opts.get('outsc', '').replace('+', ' ')
TS = '' if 'tplain' in opts else ' sc1'
HS = opts.get('hs', 'sc1').replace('+', ' '); HL = opts.get('hl', 'sc1').replace('+', ' ')
NAME = 'standalone__moe_arch_mod__decode_kernel'
NWG = 256
LDS_X = 65536
LDS_H = LDS_X
DREG = {(0, 0): 0, (0, 1): 73728, (1, 0): 16384, (1, 1): 32768}
LDS_TOTAL = 108800
RBASE = 1024
VBASE = 512
PROBE1 = 15*16384 + 12288
NPR = int(opts.get('npr', 2))
TBASE = 2048
PBASE = 4096
YBASE = PBASE + 56 * 16384
YS = 3584
HBASE = 0x1C4000
STAMPBASE = 3 << 20
WS_SIZE = 4 << 20
OOB = 0x10000000
assert HBASE >= YBASE + 256 * YS and HBASE + 14 * 16384 <= (2 << 20)
POLL_MAX = 1 << 20
STAGES = eval(opts.get('stages', '[[0,1],[2,3],[4,5],[6,7],[8,9],[10,11],[12,13],[14],[15]]'))
PRO = int(opts.get('pro', 10))
NISS = eval(opts.get('niss', '[2,2,2,2,1,0,0,0,0]'))
PW = int(opts.get('pw', 2))
KB = int(opts.get('kb', 1))
KFALL = int(opts.get('kfall', 40))


DOC = """
; ---------------------------------------------------------------------------------------------------------
; ---------------------------------------------------------------------------------------------------------
"""
o = []
def e(s): o.append('    ' + s)
def lab(s): o.append(s + ':')
nstamp = [0]
SB = lambda i: 68 + 2*i if i < 12 else 30
def stamp(i):
    if 'estamp' in opts and (i == 0 or i == int(opts['estamp'])):
        e('s_memrealtime s[88:89]')
    if STAMPS:
        nstamp[0] = max(nstamp[0], i + 1)
        e(f's_memrealtime s[{SB(i)}:{SB(i)+1}]')

hdr = open('standalone__moe_arch_mod__decode.s.ref').read().split('\n')
for l in hdr:
    if l.startswith('; @launch'):
        o.append(f'; @launch grid=({NWG},1,1) block=(256,1,1) lds={LDS_TOTAL}')
        break
    o.append(l)
o += DOC.strip().split('\n')
o += ['.amdgcn_target "amdgcn-amd-amdhsa--gfx950"', '.text', f'.globl {NAME}', '.p2align 8',
      f'.type {NAME},@function', f'{NAME}:']

SM, SD, SX, SW, SO, SR = 4, 8, 12, 16, 20, 24
sTAG = 28
sEXP = 30
sTB = 32
sCT, sMEM, sC3, sWV, sTMP, sTMP2, sP, sCNT, sTASK, sROW0, sQ, sKK, sSEL0, sMW, sXCD, sSLOT = range(36, 52)
sLO, sHI = 52, 54
sNOP2, sMD, sMX, sPOS, sQ2, sK3 = 56, 57, 58, 59, 60, 61
sLOC = 62
sT64 = 64
sY = 66; sTROW = 67; sMA = 3; sH = 27; sCB = 96; sHA = 97; sHB = 98; sV = 72; sTI = 92
vL, vT0, vT1, vT2, vA, vB, vX, vD, vRD1, vRDA, vL16, vTR, vPUB2, vFF, vHP, vP1 = range(1, 17)
vWV = 17; vOUT = 18; vXR = 19; vRS = 20; vXL = 21; vRA = 22; vRDB = 23
vXF = 24
vACC = 32
vW = 48
vWD = 64
vG = 96
vP = 128
vPP = 140
vGR = 144
vQ = 150; vTA = 151; vTB = 152; vY4 = 154; vHW = 155; vHR = 156; vPF = 157; vRB = 158
vH = 160
vRG = 192
vRX = 64
NV = 196

def srdc(s, sz):
    e(f's_mov_b32 s{s+2}, {sz}'); e(f's_mov_b32 s{s+3}, 0x20000')
def common_tag():
    e(f's_mul_i32 s{sTAG}, s{sTAG}, 1664525')
    e(f's_add_u32 s{sTAG}, s{sTAG}, 1013904223')
    e(f'v_mov_b32 v{vTB}, s{sTAG}')
    e(f'v_mov_b32 v{vTB+1}, s{sTAG+1}')
    e(f'v_lshlrev_b32 v{vT1}, 22, v0')
    e(f's_lshl_b32 s{sTMP}, s{sTASK}, 3')
    e(f'buffer_store_dwordx2 v[{vTB}:{vTB+1}], v{vT1}, s[{SW}:{SW+3}], s{sTMP} offen offset:{TBASE}{TS}')
    for r in range(4):
        e(f's_bfe_u32 s{sTB+r}, s{sTAG}, {hex(0x70000 + 7*r)}')
        e(f's_or_b32 s{sTI+r}, s{sTB+r}, 0x80')
    e(f's_mov_b32 s{sT64}, s{sTAG}')
    e(f's_mul_i32 s{sT64+1}, s{sTAG}, 0x9e3779b1')
def common_consts():
    srdc(SO, 16384)
    e(f's_mov_b32 s{sLO}, 0x00ff00ff'); e(f's_mov_b32 s{sLO+1}, 0x00ff00ff')
    e(f's_not_b64 s[{sHI}:{sHI+1}], s[{sLO}:{sLO+1}]')
    e(f'v_mov_b32 v{vFF}, 0xff')
    e(f's_lshl_b32 s{sTMP}, s{sXCD}, 2')
    e(f's_lshr_b32 s{sCB}, {opts.get("perm", "0x76243510")}, s{sTMP}')
    e(f's_and_b32 s{sCB}, s{sCB}, 7')
    e(f's_lshl_b32 s{sTASK}, s{sCB}, 5')
    e(f's_add_u32 s{sTASK}, s{sTASK}, s{sSLOT}')
    e(f's_getreg_b32 s{sTAG+1}, hwreg(HW_REG_XCC_ID, 0, 4)')
    e(f's_lshl_b32 s{sTROW}, s{sCB}, 8')
    e(f'v_and_b32 v{vTR}, 31, v{vL}')
    e(f'v_lshlrev_b32 v{vTR}, 3, v{vTR}')
    e(f's_mul_i32 s{sY}, s{sTASK}, {YS}')
    e(f's_add_u32 s{sY}, s{sY}, {YBASE}')
    e(f'v_and_b32 v{vT1}, 7, v{vL}')
    e(f'v_lshlrev_b32 v{vRA}, 4, v{vT1}')
    e(f'v_and_b32 v{vT1}, 1, v{vL}')
    e(f'v_lshl_add_u32 v{vT1}, v{vWV}, 1, v{vT1}')
    e(f'v_lshlrev_b32 v{vRB}, 4, v{vT1}')
    e(f'v_lshlrev_b32 v{vOUT}, 11, v{vT1}')
    e(f'v_lshrrev_b32 v{vT1}, 4, v{vL}')
    e(f'v_lshl_add_u32 v{vOUT}, v{vT1}, 1, v{vOUT}')
    e(f's_lshl_b32 s{sTMP}, s{sTASK}, 3')
    e(f'v_add_u32 v{vOUT}, s{sTMP}, v{vOUT}')
    e(f'v_lshrrev_b32 v{vT1}, 1, v{vL}')
    e(f'v_lshl_add_u32 v{vY4}, v{vT1}, 7, v{vRB}')
    e(f'v_and_b32 v{vP1}, 0x37f, v{vL16}')

def rsetup():
    e(f's_lshl_b32 s{sTMP}, s{sSLOT}, 2')
    e(f's_lshr_b32 s{sQ}, 0x3520, s{sTMP}')
    e(f's_and_b32 s{sQ}, s{sQ}, 15')
    e(f's_lshl3_add_u32 s{sQ}, s{sXCD}, s{sQ}')
    e(f's_lshr_b32 s{sTMP2}, 0x0121, s{sTMP}')
    e(f's_lshr_b32 s{sQ2}, 0x0888, s{sTMP}')
    e(f's_lshl2_add_u32 s{sTMP}, s{sTMP}, 7')
    e(f's_cmp_eq_u32 s{sXCD}, 7')
    e(f's_cselect_b32 s{sQ}, s{sTMP}, s{sQ}')
    e(f's_cselect_b32 s{sTMP2}, s{sQ2}, s{sTMP2}')
    e(f's_cselect_b32 s{sK3}, 0, s{sSLOT}')
    e(f's_and_b32 s{sTMP2}, s{sTMP2}, 15')
    e(f's_lshl_b32 s{sTMP}, s{sTMP2}, 1')
    e(f's_cmp_eq_u32 s{sK3}, 3')
    e(f's_cselect_b32 s{sTMP}, 1, s{sTMP}')
    e(f'v_bfe_u32 v{vT0}, v{vL}, 3, 1')
    e(f'v_mul_u32_u24 v{vT1}, s{sTMP}, v{vT0}')
    e(f'v_lshl_add_u32 v{vQ}, v{vT1}, 13, v{vP1}')
    e(f'v_mul_u32_u24 v{vT0}, s{sTMP2}, v{vT0}')
    e(f'v_add_u32 v{vT0}, s{sQ}, v{vT0}')
    e(f'v_lshrrev_b32 v{vT1}, 2, v{vT0}')
    e(f'v_lshl_add_u32 v{vHP}, v{vT1}, 14, v{vRA}')
    e(f'v_and_b32 v{vT1}, 3, v{vT0}')
    e(f'v_lshl_add_u32 v{vHP}, v{vT1}, 11, v{vHP}')
    e(f'v_lshrrev_b32 v{vT1}, 4, v{vL}')
    e(f'v_lshl_add_u32 v{vHP}, v{vT1}, 7, v{vHP}')
    e(f's_lshl_b32 s{sTMP}, s{sWV}, 9')
    e(f's_add_u32 s{sTMP}, s{sTMP}, {HBASE}')
    e(f'v_add_u32 v{vHP}, s{sTMP}, v{vHP}')
    e(f's_lshl4_add_u32 s{sQ}, s{sQ}, s{sWV}')
    e(f's_lshl_b32 s{sQ}, s{sQ}, 10')
    e(f's_add_u32 s{sQ}, s{sQ}, {PBASE}')
    e(f's_add_u32 s{sQ2}, s{sQ}, 4096')
    e(f'v_min_u32 v{vPF}, 55, v{vL}')
    e(f's_lshl2_add_u32 s{sTMP}, s{sSLOT}, s{sWV}')
    e(f's_mul_i32 s{sTMP}, s{sTMP}, 56')
    e(f'v_add_lshl_u32 v{vPF}, v{vPF}, s{sTMP}, 7')
def rprefetch():
    for so, imm in ((sQ, 0), (sQ2, 0), (sQ, 128), (sQ2, 128)):
        e(f'buffer_load_dword v{vTA}, v{vQ}, s[{SW}:{SW+3}], s{so} offen offset:{imm}')
    if 'nopre' not in opts:
        e(f's_mov_b32 s{sTMP}, {HBASE}')
        e(f'buffer_load_dword v{vTA}, v{vPF}, s[{SW}:{SW+3}], s{sTMP} offen')
    if 'f1early' in opts: yprefetch()
def yprefetch():
    e(f's_mul_i32 s{sTMP}, s{sCB}, {32*YS}')
    e(f's_add_u32 s{sTMP}, s{sTMP}, {YBASE}')
    e(f'buffer_load_dword v{vTA}, v{vPF}, s[{SW}:{SW+3}], s{sTMP} offen')

stamp(0)
e(f's_and_b32 s{sTMP}, s2, 8')
e(f's_add_u32 s{sTMP}, s{sTMP}, 16')
e(f's_load_dwordx2 s[{SM}:{SM+1}], s[0:1], s{sTMP}')
e(f's_load_dwordx2 s[{SX}:{SX+1}], s[0:1], 0')
e(f's_load_dwordx2 s[{SW}:{SW+1}], s[0:1], 56')
e(f's_load_dwordx2 s[{SD}:{SD+1}], s[0:1], 32')
e(f's_load_dwordx2 s[{SO}:{SO+1}], s[0:1], 40')
e(f's_cmp_ge_u32 s2, {NWG}')
e('s_cbranch_scc1 L_end')
if 'nocpf' not in opts:
    e(f's_getpc_b64 s[{sT64}:{sT64+1}]')
    lab('L_pc')
    e(f'v_cmp_gt_u32 vcc, (L_codeend-L_pc)/128, v0')
    e(f's_and_saveexec_b64 s[{sLOC}:{sLOC+1}], vcc')
    e('s_cbranch_execz L_nocpf')
    e(f'v_lshlrev_b32 v{vT0}, 7, v0')
    e(f'global_load_dword v{vTA}, v{vT0}, s[{sT64}:{sT64+1}] offset:124')
    lab('L_nocpf')
    e(f's_mov_b64 exec, s[{sLOC}:{sLOC+1}]')
e(f'v_lshrrev_b32 v{vWV}, 6, v0')
e(f'v_and_b32 v{vL}, 63, v0')
e(f'v_readfirstlane_b32 s{sWV}, v{vWV}')
e(f's_and_b32 s{sXCD}, s2, 7')
e(f's_lshr_b32 s{sSLOT}, s2, 3')
e(f's_lshr_b32 s{sPOS}, s2, 5')
srdc(SM, 1024*3584*2); srdc(SX, 16384); srdc(SW, WS_SIZE)
e(f'v_lshlrev_b32 v{vL16}, 4, v{vL}')
e(f's_cmp_eq_u32 s{sXCD}, 7')
e('s_cbranch_scc1 L_x7')
e(f's_cmp_lt_u32 s{sPOS}, 5')
e(f's_subb_u32 s{sPOS}, s{sPOS}, 1')
e(f's_cmp_lt_u32 s{sSLOT}, 8')
e(f's_cselect_b32 s{sPOS}, 3, s{sPOS}')
e(f's_cselect_b32 s{sC3}, 1, 0')
e(f's_lshl3_add_u32 s{sCT}, s{sXCD}, s{sPOS}')
e('s_branch L_dec')
lab('L_x7')
e(f's_cmp_lt_u32 s{sSLOT}, 4')
e('s_cbranch_scc1 L_router')
e(f's_lshl3_add_u32 s{sCT}, s{sPOS}, -1')
e(f's_mov_b32 s{sC3}, 0')
lab('L_dec')
e(f's_lshl2_add_u32 s{sTMP}, s{sC3}, 3')
e(f's_and_b32 s{sMEM}, s{sSLOT}, s{sTMP}')
e(f's_lshr_b32 s{sKK}, s{sMEM}, 1')
e(f's_or_b32 s{sTMP}, s{sMEM}, 1')
e(f's_cmp_lg_u32 s{sC3}, 0')
e(f's_cselect_b32 s{sROW0}, s{sKK}, s{sTMP}')
e(f'v_lshrrev_b32 v{vT1}, 5, v{vL}')
e(f'v_bfe_u32 v{vT2}, v{vL}, 3, 2')
e(f'v_lshl_add_u32 v{vT0}, v{vT1}, 3, v{vT2}')
e(f'v_lshrrev_b32 v{vT2}, 3, v{vL}')
e(f'v_and_b32 v{vT2}, 6, v{vT2}')
e(f'v_sub_u32 v{vT2}, v{vL}, v{vT2}')
e(f'v_and_b32 v{vT2}, 7, v{vT2}')
e(f'v_lshlrev_b32 v{vT2}, 4, v{vT2}')
e(f's_and_b32 s{sTMP}, s{sWV}, 2')
e(f's_add_u32 s{sTMP}, s{sTMP}, s{sWV}')
e(f's_lshl_b32 s{sTMP2}, s{sROW0}, 6')
e(f's_add_u32 s{sTMP}, s{sTMP}, s{sTMP2}')
e(f's_mul_i32 s{sTMP}, s{sTMP}, {4*7168}')
e(f's_lshl_b32 s{sTMP2}, s{sCT}, 7')
e(f's_add_u32 s{sTMP}, s{sTMP}, s{sTMP2}')
e(f'v_mul_u32_u24 v{vB}, 7168, v{vT0}')
e(f'v_add3_u32 v{vB}, v{vB}, v{vT2}, s{sTMP}')
e(f's_cmp_lg_u32 s{sC3}, 0')
e(f's_cselect_b32 s{sTMP}, 0, {256*7168}')
e(f'v_subrev_u32 v{vA}, s{sTMP}, v{vB}')
e(f's_lshl_b32 s{sMW}, s{sWV}, 14')
e(f's_lshl_b32 s{sTMP2}, s{sC3}, 13')
e(f's_add_u32 s{sMA}, s{sMW}, s{sTMP2}')

cur_m0 = [None]
def set_m0(key, expr_reg, add):
    if cur_m0[0] == (key, add): return False
    cur_m0[0] = (key, add)
    if add: e(f's_add_u32 m0, s{expr_reg}, {add}')
    else: e(f's_mov_b32 m0, s{expr_reg}')
    return True
def issue(item):
    k, i = item
    if k == 'F':
        if i == 0: e(f'buffer_load_dword v{vTA}, v{vP1}, s[{SW}:{SW+3}], s{sP} offen{FSC}')
        elif i == 2: e(f'buffer_load_dword v{vTA}, v{vL16}, s[{SW}:{SW+3}], s{sH} offen{FSC}')
        else: e(f'buffer_load_dword v{vTA}, v{vPUB2}, s[{SW}:{SW+3}], 0 offen{FSC}')
        return
    if k == 'W':
        ch = set_m0('W', sMW, (i >> 2) * 4096) if i >= 8 else set_m0('A', sMA, (i >> 2) * 4096)
        imm = (i & 3) * 1024
        so = (i & 7) * 32 * 7168 - imm
        v, srd, nt = (vA if i < 8 else vB), SM, NT1
    elif k == 'D':
        gp, e4, chh = i >> 2, (i >> 1) & 1, i & 1
        ch = set_m0('D', sMD, DREG[(gp, chh)] + e4 * 4096)
        imm = 0
        so = (16*gp + 4*e4) * 2048 + chh * 128
        v, srd, nt = vD, SD, NT2
    else:
        ch = set_m0('X', sMX, i * 4096)
        imm = 0; so = 0
        v, srd, nt = (vXL if i == 0 else vX), SX, ''
    if so == 0:
        sof = '0'
        if ch: e('s_nop 0')
    else:
        e(f's_mov_b32 s{sTMP}, {so}'); sof = f's{sTMP}'
    e(f'buffer_load_dwordx4 v{v}, s[{srd}:{srd+3}], {sof} offen offset:{imm}{nt} lds')

def addr_x():
    e(f'v_and_b32 v{vT1}, 7, v{vL}')
    e(f'v_lshlrev_b32 v{vX}, 11, v{vT1}')
    e(f'v_and_b32 v{vT1}, 8, v{vL}')
    e(f'v_lshl_add_u32 v{vX}, v{vT1}, 3, v{vX}')
    e(f'v_and_b32 v{vT1}, 48, v{vL}')
    e(f's_lshl2_add_u32 s{sTMP}, s{sROW0}, s{sWV}')
    e(f's_lshl_b32 s{sTMP}, s{sTMP}, 7')
    e(f'v_add3_u32 v{vX}, v{vX}, v{vT1}, s{sTMP}')
    e(f's_cmp_lg_u32 s{sC3}, 0')
    e(f's_cselect_b32 s{sTMP}, 0, 512')
    e(f'v_subrev_u32 v{vXL}, s{sTMP}, v{vX}')
    e(f's_lshl_b32 s{sMX}, s{sWV}, 10')
    e(f's_add_u32 s{sMX}, s{sMX}, {LDS_X}')

FS = [('F', 0)] + ([] if 'nopre' in opts else [('F', 2)]) + ([('F', 1)] if 'f1prod' in opts else [])
FPOS = int(opts.get('fpos', 16))
NDR = max(0, PRO + sum(NISS) - 16 - len(FS))
if 'dold' in opts:
    DORD = [0, 2, 4, 6][:NDR] + [1, 3, 5, 7] + [0, 2, 4, 6][NDR:]
    BEARLY = [1, 3, 5, 7][:KB]
    assert KB <= 2 and NDR <= 1
else:
    DORD = [1, 3, 5, 7, 0, 2, 4, 6] if KB + NDR <= 2 else [1, 0, 3, 5, 7, 2, 4, 6]
    BEARLY = DORD[NDR:NDR+KB]
    assert KB + NDR <= 2 or (NDR >= 2 and KB + NDR == 3)
assert sum(NISS[:4]) + PRO <= 16 + len(FS)
stream = [('W', s) for s in range(FPOS)] + FS + [('W', s) for s in range(FPOS, 16)] + [('D', u) for u in DORD]
sched = []; pos = PRO
for i_, st in enumerate(STAGES):
    n = NISS[i_]
    sched.append(stream[pos:pos+n]); pos = min(pos + n, len(stream))
tail_items = stream[pos:]
H = int(opts.get('h', 4))
e(f's_mov_b32 m0, s{sMA}')
e('s_waitcnt lgkmcnt(0)')
stamp(1)
cur_m0[0] = ('A', 0)
issued = stream[:H]
for it in issued: issue(it)
e(f's_load_dword s{sTAG}, s[{SW}:{SW+1}], 0')
addr_x()
issue(('X', 0)); issue(('X', 1))
assert PRO >= 8
for it in stream[H:8]: issue(it)
rest = stream[8:PRO]
assert all(k == 'W' for k, _ in rest)
if rest:
    e(f's_cmp_lg_u32 s{sC3}, 0')
    e('s_cbranch_scc1 L_pre')
    for it in rest: issue(it)
issued = issued + [('X', 0), ('X', 1)] + stream[H:PRO] + [('T', 0)]
lab('L_pre')
cur_m0[0] = None
stamp(2)
common_consts()
srdc(SD, 3584*1024*2)
e(f's_sub_u32 s{sK3}, s{sSLOT}, 4')
e(f's_cselect_b32 s{sNOP2}, {OOB}, 0')
e(f's_cselect_b32 s{sK3}, 0, s{sK3}')
e(f's_lshl2_add_u32 s{sTMP}, s{sK3}, s{sWV}')
e(f's_lshl_b32 s{sTMP}, s{sTMP}, 16')
e(f's_add_u32 s{sTMP}, s{sTMP}, s{sTROW}')
e(f's_add_u32 s{sTMP}, s{sTMP}, s{sNOP2}')
e(f'v_lshlrev_b32 v{vD}, 11, v{vT0}')
e(f'v_add3_u32 v{vD}, v{vD}, v{vT2}, s{sTMP}')
e(f's_lshl_b32 s{sMD}, s{sWV}, 10')
if 'tlbw' in opts:
    e('s_mov_b64 exec, 1')
    e(f's_mov_b32 s{sTMP}, {7*32*7168}')
    e(f'buffer_load_dword v{vTA}, v{vB}, s[{SM}:{SM+3}], s{sTMP} offen')
    e(f'buffer_load_dword v{vTA}, v{vD}, s[{SD}:{SD+3}], 0 offen')
    e(f'buffer_load_ushort v{vTA}, v{vOUT}, s[{SO}:{SO+3}], 0 offen')
    e('s_mov_b64 exec, -1')
    issued = issued[:-1] + [('Z', 0), ('Z', 1), ('Z', 2), ('T', 0)]
e(f'v_bfe_u32 v{vT1}, v{vL}, 2, 3')
e(f'v_lshlrev_b32 v{vT0}, 7, v{vT1}')
e(f'v_and_b32 v{vT2}, 1, v{vL}')
e(f'v_lshl_add_u32 v{vT0}, v{vT2}, 3, v{vT0}')
e(f'v_and_b32 v{vT1}, 6, v{vT1}')
e(f'v_bfe_u32 v{vT2}, v{vL}, 1, 1')
e(f'v_add_u32 v{vT1}, v{vT1}, v{vT2}')
e(f'v_lshl_add_u32 v{vT2}, v{vWV}, 1, v{vT1}')
e(f'v_and_b32 v{vT2}, 7, v{vT2}')
e(f'v_lshl_add_u32 v{vRD1}, v{vT2}, 4, v{vT0}')
e(f'v_lshrrev_b32 v{vT2}, 5, v{vL}')
e(f'v_lshl_add_u32 v{vRD1}, v{vT2}, 15, v{vRD1}')
e(f's_cmp_gt_u32 s{sWV}, 1')
e(f's_cselect_b32 s{sTMP}, {DREG[(0,1)]}, 0')
e(f's_mov_b32 s{sTMP2}, {DREG[(1,0)] - DREG[(0,0)]}')
e(f's_cselect_b32 s{sTMP2}, {DREG[(1,1)] - DREG[(0,1)]}, s{sTMP2}')
e(f'v_mul_lo_u32 v{vT2}, v{vT2}, s{sTMP2}')
e(f'v_add3_u32 v{vT0}, v{vT0}, v{vT2}, s{sTMP}')
e(f'v_lshl_add_u32 v{vT1}, v{vWV}, 2, v{vT1}')
e(f'v_and_b32 v{vT2}, 7, v{vT1}')
e(f'v_lshl_add_u32 v{vRDA}, v{vT2}, 4, v{vT0}')
e(f'v_add_u32 v{vT1}, 2, v{vT1}')
e(f'v_and_b32 v{vT2}, 7, v{vT1}')
e(f'v_lshl_add_u32 v{vRDB}, v{vT2}, 4, v{vT0}')
e(f'v_add_u32 v{vXL}, {LDS_X}, v{vL16}')
e(f's_lshl2_add_u32 s{sP}, s{sCT}, s{sKK}')
e(f's_lshl2_add_u32 s{sP}, s{sP}, s{sWV}')
e(f's_lshl_b32 s{sP}, s{sP}, 10')
e(f's_and_b32 s{sTMP2}, s{sMEM}, 1')
e(f's_lshl_b32 s{sTMP2}, s{sTMP2}, 7')
e(f's_add_u32 s{sP}, s{sP}, s{sTMP2}')
e(f's_add_u32 s{sP}, s{sP}, {PBASE}')
e(f's_lshl2_add_u32 s{sH}, s{sK3}, s{sWV}')
e(f's_and_b32 s{sTMP}, s{sH}, 0x78')
e(f's_add_u32 s{sH}, s{sH}, s{sTMP}')
e(f's_lshl_b32 s{sH}, s{sH}, 10')
e(f's_bfe_u32 s{sTMP}, s{sTAG+1}, 0x10002')
e(f's_xor_b32 s{sTMP}, s{sTMP}, {opts.get("flip", 0)}')
e(f's_lshl_b32 s{sTMP}, s{sTMP}, 13')
e(f's_add_u32 s{sH}, s{sH}, s{sTMP}')
e(f's_add_u32 s{sH}, s{sH}, {HBASE}')
e(f'v_mul_u32_u24 v{vHR}, 17, v{vRA}')
e(f'v_add_u32 v{vHR}, {LDS_H}, v{vHR}')
e(f'v_lshl_add_u32 v{vHW}, v{vWV}, 6, v{vHR}')
e(f'v_and_b32 v{vT1}, 56, v{vL}')
e(f'v_add_u32 v{vHW}, v{vHW}, v{vT1}')
e(f'v_and_b32 v{vT1}, 48, v{vL}')
e(f'v_add_u32 v{vHR}, v{vHR}, v{vT1}')
for i in range(32): e(f'v_mov_b32 v{vH+i}, 0')
e(f'v_bfe_u32 v{vT0}, v{vL}, 3, 1')
e(f'v_lshrrev_b32 v{vT2}, 4, v{vL}')
e(f'v_lshl_add_u32 v{vPUB2}, v{vT0}, 2, v{vT2}')
e(f'v_mul_u32_u24 v{vPUB2}, {YS}, v{vPUB2}')
e(f's_lshl2_add_u32 s{sTMP}, s{sCB}, s{sWV}')
e(f's_mul_i32 s{sTMP}, s{sTMP}, {8*YS}')
e(f's_lshl_b32 s{sTMP2}, s{sK3}, 7')
e(f's_add_u32 s{sTMP}, s{sTMP}, s{sTMP2}')
e(f's_add_u32 s{sTMP}, s{sTMP}, s{sNOP2}')
e(f's_add_u32 s{sTMP}, s{sTMP}, {YBASE}')
e(f'v_add3_u32 v{vPUB2}, v{vPUB2}, v{vRA}, s{sTMP}')
for i in range(8): e(f'v_mov_b32 v{vACC+i}, 0')
e(f's_cmp_eq_u32 s{sNOP2}, 0')
e('s_cbranch_scc1 L_nors')
rsetup()
if 'wpre' in opts:
    e(f'buffer_load_dword v{vTA}, v{vHP}, s[{SW}:{SW+3}], 0 offen')
    e(f's_mov_b32 s{sTMP}, 0x2000')
    e(f'buffer_load_dword v{vTA}, v{vHP}, s[{SW}:{SW+3}], s{sTMP} offen')
lab('L_nors')
e('s_waitcnt lgkmcnt(0)')
if 'estamp' in opts: stamp(21)
common_tag()
iB = [i for i, st in enumerate(STAGES) if st[0] == 8][0]
if KB:
    e(f's_and_b32 s{sTMP}, s{sCB}, 3')
    e(f's_cmp_eq_u32 s{sTMP}, 1')
    e('s_cbranch_scc0 L_nob')
    cur_m0[0] = None
    for u in BEARLY: issue(('D', u))
    lab('L_nob')
e(f's_cmp_lg_u32 s{sC3}, 0')
e('s_cbranch_scc0 L_compA')
cur_m0[0] = None
pre = [x for sc_ in sched[:iB] for x in sc_]
assert ('W', 15) in pre + issued
nonw = [x for x in pre if x[0] != 'W']
for it in nonw: issue(it)
e(f's_waitcnt vmcnt({min(4, 8 - H) + len(nonw)})')
e('s_branch L_compB')
lab('L_compA')
cur_m0[0] = None
for si, stage in enumerate(STAGES):
    if stage[0] == 8:
        lab('L_compB'); cur_m0[0] = None
        upto = list(issued)
    idx = max(issued.index(('W', stage[-1])), issued.index(('X', int(stage[-1] >= 8))))
    e(f's_waitcnt vmcnt({len([x for x in issued[idx+1:] if x[0] != chr(84)])})')
    for it in sched[si]: issue(it); issued.append(it)
    e('s_barrier')
    if stage[0] == 8: stamp(3)
    if stage[0] == 0 and 'estamp' in opts: stamp(20)
    if stage[0] == 6 and 'echo' in opts: stamp(13)
    ts = sorted(set(s >> 1 for s in stage))
    for t in ts:
        if (2*t) in stage:
            e(f'ds_read_b128 v[{vXF+4*(t&1)}:{vXF+4*(t&1)+3}], v{vXL} offset:{t*1024}')
    for i, s in enumerate(stage):
        b = vW + 4*i
        e(f'ds_read_b64_tr_b16 v[{b}:{b+1}], v{vRD1} offset:{s*1024}')
        e(f'ds_read_b64_tr_b16 v[{b+2}:{b+3}], v{vRD1} offset:{16384+s*1024}')
    for i, s in enumerate(stage):
        b = vW + 4*i
        e(f's_waitcnt lgkmcnt({2*(len(stage)-1-i)})')
        acc = vACC + 4*(s & 1); t = s >> 1
        xf = vXF + 4*(t & 1)
        e(f'v_mfma_f32_16x16x32_bf16 v[{acc}:{acc+3}], v[{b}:{b+3}], v[{xf}:{xf+3}], v[{acc}:{acc+3}]')
stamp(4)
e(f's_mov_b32 s{sCNT}, {POLL_MAX}')
e('s_nop 6')
for r in range(4):
    e(f'v_add_f32_dpp v{vPP+r}, v{vACC+4+r}, v{vACC+r} row_ror:8 row_mask:0xf bank_mask:0xf')
for r in range(4):
    e(f'v_bfi_b32 v{vPP+r}, v{vFF}, s{sTI+r}, v{vPP+r}')
def pub1(sc):
    e(f's_mov_b64 exec, s[{sLO}:{sLO+1}]')
    e(f'buffer_store_dwordx4 v[{vPP}:{vPP+3}], v{vL16}, s[{SW}:{SW+3}], s{sP} offen{sc}')
    e('s_mov_b64 exec, -1')
pub1('')
stamp(5)
e(f's_cmp_lg_u32 s{sNOP2}, 0')
e('s_cbranch_scc1 L_reduce')
seq = issued[issued.index(('W', 15))+1:] + [('S', 0)]
if 'puback' in opts: e('s_waitcnt vmcnt(0)')
if 'nopubbar' not in opts: e('s_barrier')
def tbl_load():
    e(f'buffer_load_dwordx2 v[{vTB}:{vTB+1}], v{vTR}, s[{SW}:{SW+3}], s{sTROW} offen offset:{TBASE} sc1')
def tbl_check(lbl):
    e(f'v_cmp_eq_u64 s[{sLOC}:{sLOC+1}], s[{sTAG}:{sTAG+1}], v[{vTB}:{vTB+1}]')
    if 'nolocal' in opts: e(f's_mov_b64 s[{sLOC}:{sLOC+1}], 0')
    e(f's_cmp_eq_u64 s[{sLOC}:{sLOC+1}], -1')
    e(f's_cbranch_scc1 {lbl}')
    pub1(' sc1')
    lab(lbl)
def small_loads():
    tbl_load(); seq.append(('T', 1))
    e(f'buffer_load_ushort v{vXR}, v{vOUT}, s[{SX}:{SX+3}], 0 offen'); seq.append(('R', 0))
    e(f'buffer_load_dwordx4 v[{vRG}:{vRG+3}], v{vRB}, s[{SW}:{SW+3}], 0 offen offset:{RBASE} sc1'); seq.append(('R', 1))
if 'smalllast' not in opts: small_loads()
if KB:
    assert tail_items[:KB] == [('D', u) for u in BEARLY], tail_items
    e(f's_and_b32 s{sTMP}, s{sCB}, 3')
    e(f's_cmp_eq_u32 s{sTMP}, 1')
    e('s_cbranch_scc1 L_skipb')
for n_, it in enumerate(tail_items):
    if KB and n_ == KB: lab('L_skipb'); cur_m0[0] = None
    if 'dwin' in opts and n_ >= int(opts['dwin']): e(f's_waitcnt vmcnt({int(opts["dwin"])-1})')
    issue(it); seq.append(it)
if 'smalllast' in opts: small_loads()
afterD = len(seq) - 1 - seq.index(('D', DORD[-1]))
e(f's_waitcnt vmcnt({afterD + int(opts.get("vw", 4))})')
e(f's_load_dwordx8 s[{sV}:{sV+7}], s[{SW}:{SW+1}], {VBASE}')
e(f's_mov_b32 s{sTMP2}, 0')
e('s_waitcnt lgkmcnt(0)')
for i in range(4):
    e(f's_cmp_eq_u32 s{sV+2*i}, s{sTAG}')
    e(f's_cselect_b32 s{sTMP}, s{sV+2*i+1}, 0')
    e(f's_add_i32 s{sTMP2}, s{sTMP2}, s{sTMP}')
e(f's_cmp_{"lt" if opts.get("flip", "0") == "1" else "gt"}_i32 s{sTMP2}, 0')
e(f's_cselect_b32 s{sTMP}, 0x2000, 0')
e(f's_xor_b32 s{sH}, s{sH}, s{sTMP}')
e(f's_waitcnt vmcnt({afterD + PW})')
def hloads():
    e(f'buffer_load_dwordx4 v[{vG}:{vG+3}], v{vL16}, s[{SW}:{SW+3}], s{sH} offen {HL}')
hloads()
e(f's_waitcnt vmcnt({afterD + 1})')
e('s_barrier')
stamp(6)
for s in range(4):
    for sub, va in ((0, vRDA), (1, vRDB)):
        b = vWD + 8*s + 4*sub
        e(f'ds_read_b64_tr_b16 v[{b}:{b+1}], v{va} offset:{s*1024}')
        e(f'ds_read_b64_tr_b16 v[{b+2}:{b+3}], v{va} offset:{s*1024+4096}')
e('s_waitcnt vmcnt(1)')
tbl_check('L_tc1')
e('s_branch L_pollhw')
lab('L_pollh')
e(f's_sub_u32 s{sCNT}, s{sCNT}, 1')
e('s_cbranch_scc1 L_pollh_done')
hloads()
lab('L_pollhw')
e('s_waitcnt vmcnt(0)')
e(f'v_cmp_ne_u64 vcc, s[{sT64}:{sT64+1}], v[{vG+2}:{vG+3}]')
e('s_cbranch_vccnz L_pollh')
lab('L_pollh_done')
e(f'ds_write_b64 v{vHW}, v[{vG}:{vG+1}]')
stamp(7)
e(f's_mov_b64 exec, s[{sLO}:{sLO+1}]')
e('s_waitcnt lgkmcnt(0)')
e('s_barrier')
for s in range(4): e(f'ds_read_b128 v[{vH+4*s}:{vH+4*s+3}], v{vHR} offset:{64*s}')
e(f's_mov_b64 exec, s[{sHI}:{sHI+1}]')
for s in range(4): e(f'ds_read_b128 v[{vH+16+4*s}:{vH+16+4*s+3}], v{vHR} offset:{64*s}')
e('s_mov_b64 exec, -1')
for k in range(8):
    sub, s = k >> 2, k & 3
    e(f's_waitcnt lgkmcnt({7-k})')
    b = vWD + 8*s + 4*sub
    c = '0' if k == 0 else f'v[{vACC}:{vACC+3}]'
    e(f'v_mfma_f32_16x16x32_bf16 v[{vACC}:{vACC+3}], v[{b}:{b+3}], v[{vH+4*k}:{vH+4*k+3}], {c}')
e(f's_cmp_eq_u64 s[{sLOC}:{sLOC+1}], -1')
e('s_nop 6')
for r in range(4):
    e(f'v_bfi_b32 v{vP+r}, v{vFF}, s{sTI+r}, v{vACC+r}')
e('s_cbranch_scc0 L_far')
e(f'buffer_store_dwordx4 v[{vP}:{vP+3}], v{vPUB2}, s[{SW}:{SW+3}], 0 offen')
if 'cleanp' in opts:
    e(f's_cmp_eq_u32 s{sWV}, 0')
    e('s_cbranch_scc1 L_fin')
    pub1(' sc1')
lab('L_fin')
stamp(8)
e(f's_mov_b32 s{sCNT}, {POLL_MAX}')
def check(g):
    e(f'v_perm_b32 v{vP+4}, v{g+1}, v{g}, s{sSEL0}')
    e(f'v_perm_b32 v{vP+5}, v{g+3}, v{g+2}, s{sSEL0}')
    e(f'v_cmpx_eq_u64 vcc, s[{sEXP}:{sEXP+1}], v[{vP+4}:{vP+5}]')
def strip(g, first):
    for r in range(4): e(f'v_xor_b32 v{g+r}, s{sTB+r}, v{g+r}')
    if first: e(f'v_or_b32 v{vP+4}, v{g}, v{g+1}')
    else: e(f'v_or3_b32 v{vP+4}, v{vP+4}, v{g}, v{g+1}')
    e(f'v_or3_b32 v{vP+4}, v{vP+4}, v{g+2}, v{g+3}')
def strip_test(lbl):
    e(f'v_and_b32 v{vP+4}, 0x7f, v{vP+4}')
    e(f'v_cmp_ne_u32 vcc, 0, v{vP+4}')
    e(f's_cbranch_vccnz {lbl}')
def padd(a, b):
    e(f'v_pk_add_f32 v[{vG+4*a}:{vG+4*a+1}], v[{vG+4*a}:{vG+4*a+1}], v[{vG+4*b}:{vG+4*b+1}]')
    e(f'v_pk_add_f32 v[{vG+4*a+2}:{vG+4*a+3}], v[{vG+4*a+2}:{vG+4*a+3}], v[{vG+4*b+2}:{vG+4*b+3}]')
def yload():
    e(f'buffer_load_dwordx4 v[{vG+4}:{vG+7}], v{vY4}, s[{SW}:{SW+3}], s{sY} offen sc1')
e('s_mov_b32 exec_hi, 0x00ffffff')
yload()
e('s_mov_b32 exec_hi, -1')
lab('L_rchk')
strip(vRG, True)
strip_test('L_rpoll')
for r in range(4): e(f'v_mov_b32 v{vG+r}, 0')
e(f'v_and_b32 v{vRS}, 0xffff0000, v{vRG}')
e(f'v_lshlrev_b32 v{vXR}, 16, v{vXR}')
e(f'v_fma_f32 v{vXR}, v{vXR}, 0, v{vXR}')
e('s_mov_b32 exec_hi, 0x00ffffff')
e('s_branch L_poll2w')
lab('L_poll2')
e(f's_sub_u32 s{sCNT}, s{sCNT}, 1')
e('s_cbranch_scc1 L_poll2_done')
yload()
lab('L_poll2w')
e('s_waitcnt vmcnt(0)')
for r in range(4): e(f'v_xor_b32 v{vG+r}, s{sTB+r}, v{vG+4+r}')
e(f'v_or_b32 v{vP+4}, v{vG}, v{vG+1}')
e(f'v_or3_b32 v{vP+4}, v{vP+4}, v{vG+2}, v{vG+3}')
strip_test('L_poll2')
lab('L_poll2_done')
e('s_mov_b32 exec_hi, -1')
stamp(9)
e(f'v_permlane32_swap_b32 v{vG}, v{vG+2}')
e(f'v_permlane32_swap_b32 v{vG+1}, v{vG+3}')
e(f'v_add_f32 v{vG}, v{vG}, v{vG+2}')
e(f'v_add_f32 v{vG+1}, v{vG+1}, v{vG+3}')
e('s_nop 1')
e(f'v_permlane16_swap_b32 v{vG}, v{vG+1}')
e(f'v_add_f32 v{vG}, v{vG}, v{vG+1}')
for sh in (8, 4, 2):
    e('s_nop 1')
    e(f'v_add_f32_dpp v{vG}, v{vG}, v{vG} row_ror:{sh} row_mask:0xf bank_mask:0xf')
e(f'v_cvt_pk_bf16_f32 v{vG}, v{vG}, v{vG}')
e(f'v_lshlrev_b32 v{vG}, 16, v{vG}')
e(f'v_mul_f32 v{vG}, v{vG}, v{vRS}')
e(f'v_cvt_pk_bf16_f32 v{vG}, v{vG}, v{vG}')
e(f'v_lshlrev_b32 v{vG}, 16, v{vG}')
e(f'v_add_f32 v{vG}, v{vG}, v{vXR}')
e(f'v_cvt_pk_bf16_f32 v{vG}, v{vG}, v{vG}')
e('s_mov_b32 exec_lo, 0x00030003'); e('s_mov_b32 exec_hi, 0x00030003')
e(f'buffer_store_short v{vG}, v{vOUT}, s[{SO}:{SO+3}], 0 offen{OUTSC}')
e(f's_or_b32 s{sTMP}, s{sTASK}, s{sWV}')
e('s_cbranch_scc1 L_fin_done')
e('s_mov_b64 exec, 1')
e(f'v_mov_b32 v{vT1}, s{sTAG}')
e(f'buffer_store_dword v{vT1}, v{vL16}, s[{SW}:{SW+3}], 0 offen')
lab('L_fin_done')
if 'echo' in opts:
    i_, j_ = map(int, opts['echo'].split(','))
    e('s_waitcnt vmcnt(0)')
    stamp(10)
    e(f's_cmp_lg_u32 s{sWV}, 0')
    e('s_cbranch_scc1 L_end')
    e(f's_cmp_lg_u32 s2, {opts.get("ewg", 68)}')
    e('s_cbranch_scc1 L_end')
    e('s_waitcnt lgkmcnt(0)')
    e(f's_sub_u32 s96, s{68+2*i_}, s{68+2*j_}')
    e(f's_mul_i32 s96, s96, {opts.get("ek", 2)}')
    e('s_min_u32 s96, s96, 20000')
    if 'eloc' in opts:
        e(f's_cmp_eq_u64 s[{sLOC}:{sLOC+1}], -1')
        e('s_cselect_b32 s96, 0, 1000')
    lab('L_echo')
    e('s_memrealtime s[98:99]')
    e('s_waitcnt lgkmcnt(0)')
    e('s_sub_u32 s98, s98, s88')
    e('s_cmp_lt_u32 s98, s96')
    e('s_cbranch_scc1 L_echo')
if STAMPS and 'echo' not in opts:
    e('s_waitcnt vmcnt(0)')
    stamp(10)
    e('s_waitcnt lgkmcnt(0)')
    n = 13
    e('s_mov_b64 exec, 1')
    e(f's_lshl_b32 s{sTMP}, s2, 2')
    e(f's_add_u32 s{sTMP}, s{sTMP}, s{sWV}')
    e(f's_lshl_b32 s{sTMP}, s{sTMP}, 6')
    e(f's_add_u32 s{sTMP}, s{sTMP}, {STAMPBASE}')
    for i in range(n):
        e(f'v_mov_b32 v{vT1}, s{SB(i)}')
        e(f'buffer_store_dword v{vT1}, v{vL16}, s[{SW}:{SW+3}], s{sTMP} offen offset:{4*i}')
        e('s_nop 0')
lab('L_end')
e('s_endpgm')
lab('L_far')
e(f'buffer_store_dwordx4 v[{vP}:{vP+3}], v{vPUB2}, s[{SW}:{SW+3}], 0 offen sc1')
e('s_branch L_fin')
lab('L_rpoll')
e(f's_sub_u32 s{sCNT}, s{sCNT}, 1')
e('s_cbranch_scc1 L_fin_done')
e(f'buffer_load_dwordx4 v[{vRG}:{vRG+3}], v{vRB}, s[{SW}:{SW+3}], 0 offen offset:{RBASE} sc1')
e('s_waitcnt vmcnt(0)')
e('s_branch L_rchk')

lab('L_reduce')
e(f's_bfe_u32 s{sHB}, s{sTAG+1}, 0x10002')
e(f's_xor_b32 s{sHB}, s{sHB}, {opts.get("flip", 0)}')
e(f's_lshl_b32 s{sHB}, s{sHB}, 13')
if 'sswap' in opts: e(f's_xor_b32 s{sHB}, s{sHB}, 0x2000')
e(f's_xor_b32 s{sHA}, s{sHB}, 0x2000')
e(f'v_mov_b32 v{vGR+4}, s{sT64}'); e(f'v_mov_b32 v{vGR+5}, s{sT64+1}')
e(f's_mov_b32 s{sCNT}, {POLL_MAX}')
e(f's_mov_b32 s{sTMP}, 0xbfb8aa3b')
e(f's_mov_b32 s{sTMP2}, 0xffff0000')
lab('L_poll1')
e(f's_cmp_lg_u32 s{sCNT}, {POLL_MAX - KFALL}')
e('s_cbranch_scc1 L_poll1b')
pub1(' sc1')
lab('L_poll1b')
def ld1(i, so, imm):
    e(f'buffer_load_dwordx4 v[{vG+4*i}:{vG+4*i+3}], v{vQ}, s[{SW}:{SW+3}], s{so} offen offset:{imm} sc1')
e(f's_sub_u32 s{sCNT}, s{sCNT}, 1')
e('s_cbranch_scc1 L_poll1_done')
ld1(0, sQ, 0); ld1(1, sQ2, 0); ld1(2, sQ, 128); ld1(3, sQ2, 128)
for i in range(4):
    e(f's_waitcnt vmcnt({3-i})')
    strip(vG + 4*i, i == 0)
    if i == 1: padd(0, 1)
strip_test('L_poll1')
lab('L_poll1_done')
stamp(11)
padd(2, 3)
e(f's_cmp_lg_u32 s{sK3}, 3')
e('s_cbranch_scc1 L_act')
for i in (0, 1, 2, 3, 8, 9, 10, 11):
    e(f'v_add_f32_dpp v{vG+i}, v{vG+i}, v{vG+i} row_ror:8 row_mask:0xf bank_mask:0xf')
lab('L_act')
R = vG; U = vG + 8; P = vP
e(f'v_cvt_pk_bf16_f32 v{P}, v{R}, v{R+1}')
e(f'v_cvt_pk_bf16_f32 v{P+1}, v{R+2}, v{R+3}')
e(f'v_lshlrev_b32 v{R}, 16, v{P}')
e(f'v_and_b32 v{R+1}, s{sTMP2}, v{P}')
e(f'v_lshlrev_b32 v{R+2}, 16, v{P+1}')
e(f'v_and_b32 v{R+3}, s{sTMP2}, v{P+1}')
for r in range(4): e(f'v_mul_f32 v{P+r}, s{sTMP}, v{R+r}')
for r in range(4): e(f'v_exp_f32 v{P+r}, v{P+r}')
e(f'v_cvt_pk_bf16_f32 v{P+6}, v{U}, v{U+1}')
e(f'v_cvt_pk_bf16_f32 v{P+7}, v{U+2}, v{U+3}')
e(f'v_pk_add_f32 v[{P}:{P+1}], v[{P}:{P+1}], 1.0 op_sel_hi:[1,0]')
e(f'v_pk_add_f32 v[{P+2}:{P+3}], v[{P+2}:{P+3}], 1.0 op_sel_hi:[1,0]')
for r in range(4): e(f'v_rcp_f32 v{P+r}, v{P+r}')
e(f'v_lshlrev_b32 v{U}, 16, v{P+6}')
e(f'v_and_b32 v{U+1}, s{sTMP2}, v{P+6}')
e(f'v_lshlrev_b32 v{U+2}, 16, v{P+7}')
e(f'v_and_b32 v{U+3}, s{sTMP2}, v{P+7}')
e(f'v_pk_mul_f32 v[{P}:{P+1}], v[{P}:{P+1}], v[{R}:{R+1}]')
e(f'v_pk_mul_f32 v[{P+2}:{P+3}], v[{P+2}:{P+3}], v[{R+2}:{R+3}]')
e(f'v_cvt_pk_bf16_f32 v{P+4}, v{P}, v{P+1}')
e(f'v_cvt_pk_bf16_f32 v{P+5}, v{P+2}, v{P+3}')
e(f'v_lshlrev_b32 v{P}, 16, v{P+4}')
e(f'v_and_b32 v{P+1}, s{sTMP2}, v{P+4}')
e(f'v_lshlrev_b32 v{P+2}, 16, v{P+5}')
e(f'v_and_b32 v{P+3}, s{sTMP2}, v{P+5}')
e(f'v_pk_mul_f32 v[{P}:{P+1}], v[{P}:{P+1}], v[{U}:{U+1}]')
e(f'v_pk_mul_f32 v[{P+2}:{P+3}], v[{P+2}:{P+3}], v[{U+2}:{U+3}]')
e(f'v_cvt_pk_bf16_f32 v{vGR+2}, v{P}, v{P+1}')
e(f'v_cvt_pk_bf16_f32 v{vGR+3}, v{P+2}, v{P+3}')
e(f'buffer_store_dwordx4 v[{vGR+2}:{vGR+5}], v{vHP}, s[{SW}:{SW+3}], s{sHA} offen {HS}')
e(f'buffer_store_dwordx4 v[{vGR+2}:{vGR+5}], v{vHP}, s[{SW}:{SW+3}], s{sHB} offen {HS}')
stamp(12)
if 'norbar' not in opts: e('s_barrier')
if 'f1prod' not in opts: yprefetch()
tbl_load()
e(f'buffer_load_ushort v{vXR}, v{vOUT}, s[{SX}:{SX+3}], 0 offen')
e(f'buffer_load_dwordx4 v[{vRG}:{vRG+3}], v{vRB}, s[{SW}:{SW+3}], 0 offen offset:{RBASE} sc1')
e('s_waitcnt vmcnt(0)')
tbl_check('L_tc2')
e('s_branch L_fin')

lab('L_router')
e(f's_load_dwordx2 s[{SR}:{SR+1}], s[0:1], 8')
srdc(SR, 2048)
common_consts()
e(f's_lshl1_add_u32 s{sKK}, s{sSLOT}, s{sWV}')
e(f's_and_b32 s{sKK}, s{sKK}, 7')
e(f's_lshl_b32 s{sTMP2}, s{sKK}, 11')
e(f's_mov_b32 s{sP}, {PBASE + 7*16384 + 8192}')
e('s_waitcnt lgkmcnt(0)')
e(f's_load_dword s{sTAG}, s[{SW}:{SW+1}], 0')
e(f's_cmp_lg_u32 s{sWV}, 3')
e('s_cbranch_scc1 L_noprobe')
e(f's_lshl_b32 s{sV+2}, s{sSLOT}, 10')
e(f's_add_u32 s{sV+2}, s{sV+2}, {PROBE1}')
e(f's_add_u32 s{sV+3}, s{sV+2}, 4096')
for r in range(4): e(f'v_mov_b32 v{vG+4+r}, 0')
e(f'buffer_store_dwordx4 v[{vG+4}:{vG+7}], v{vL16}, s[{SW}:{SW+3}], s{sV+2} offen sc1')
e(f'buffer_store_dwordx4 v[{vG+4}:{vG+7}], v{vL16}, s[{SW}:{SW+3}], s{sV+3} offen sc1')
lab('L_noprobe')
e(f'buffer_load_dwordx4 v[{vRX}:{vRX+3}], v{vL16}, s[{SX}:{SX+3}], s{sTMP2} offen')
e(f'buffer_load_dwordx4 v[{vRX+4}:{vRX+7}], v{vL16}, s[{SX}:{SX+3}], s{sTMP2} offen offset:1024')
e(f'buffer_load_dwordx4 v[{vRX+8}:{vRX+11}], v{vL16}, s[{SR}:{SR+3}], 0 offen')
e(f'buffer_load_dwordx4 v[{vRX+12}:{vRX+15}], v{vL16}, s[{SR}:{SR+3}], 0 offen offset:1024')
e(f'v_mov_b32 v{vRS}, 0')
rsetup()
if 'wpre' in opts:
    e(f'buffer_load_dword v{vTA}, v{vHP}, s[{SW}:{SW+3}], 0 offen')
    e(f's_mov_b32 s{sTMP}, 0x2000')
    e(f'buffer_load_dword v{vTA}, v{vHP}, s[{SW}:{SW+3}], s{sTMP} offen')
e('s_waitcnt vmcnt(0) lgkmcnt(0)')
common_tag()
e('s_barrier')
e(f's_cmp_lg_u32 s{sWV}, 3')
e('s_cbranch_scc1 L_noprobe2')
e(f'v_lshlrev_b32 v{vT2}, 7, v{vL}')
e('s_mov_b64 exec, 15')
e(f's_and_b32 s{sV}, s{sSLOT}, 1')
e(f's_cselect_b32 s{sV+4}, s{sV+3}, s{sV+2}')
e(f's_cselect_b32 s{sV+5}, s{sV+2}, s{sV+3}')
e(f's_bfe_u32 s{sV+1}, s{sTAG+1}, 0x10002')
e(f's_xor_b32 s{sV}, s{sV}, s{sV+1}')
e(f's_mov_b32 s{sV+6}, 0')
for j in range(NPR):
    a_, b_ = (sV+4, sV+5) if j % 2 == 0 else (sV+5, sV+4)
    e(f'v_mov_b32 v{vG+1}, 1')
    e(f'buffer_load_dword v{vG}, v{vT2}, s[{SW}:{SW+3}], s{a_} offen offset:{512*j} sc1')
    e(f'buffer_load_dword v{vG+1}, v{vT2}, s[{SW}:{SW+3}], s{b_} offen offset:{512*j} sc1')
    e('s_waitcnt vmcnt(1)')
    for _ in range(int(opts.get('nd', 0))):
        e(f'ds_read_b32 v{vG+2}, v{vL16}')
        e('s_waitcnt lgkmcnt(0)')
    e(f'v_cmp_ne_u32 vcc, 0, v{vG+1}')
    e('s_cmp_lg_u64 vcc, 0')
    e(f's_cselect_b32 s{sV+1}, 1, 0')
    e('s_waitcnt vmcnt(0)')
    e(f's_xor_b32 s{sV+1}, s{sV+1}, s{sV}')
    if j % 2: e(f's_xor_b32 s{sV+1}, s{sV+1}, 1')
    e(f's_lshl1_add_u32 s{sV+6}, s{sV+1}, s{sV+6}')
e(f's_sub_u32 s{sV+6}, s{sV+6}, {NPR}')
e(f'v_mov_b32 v{vG+2}, s{sTAG}')
e(f'v_mov_b32 v{vG+3}, s{sV+6}')
e(f's_lshl_b32 s{sV+2}, s{sSLOT}, 3')
e('s_mov_b64 exec, 1')
e(f'buffer_store_dwordx2 v[{vG+2}:{vG+3}], v{vL16}, s[{SW}:{SW+3}], s{sV+2} offen offset:{VBASE} sc1')
e('s_mov_b64 exec, -1')
lab('L_noprobe2')
e(f's_cmp_gt_u32 s{sWV}, 1')
e('s_cbranch_scc1 L_rdone')
for i in range(8):
    e(f'v_dot2c_f32_bf16 v{vRS}, v{vRX+i}, v{vRX+8+i}')
e('s_nop 2')
for sh in (1, 2, 4, 8):
    e(f'v_add_f32_dpp v{vRS}, v{vRS}, v{vRS} row_ror:{sh} row_mask:0xf bank_mask:0xf')
    e('s_nop 1')
e(f'v_mov_b32 v{vT1}, v{vRS}')
e('s_nop 1')
e(f'v_permlane16_swap_b32 v{vRS}, v{vT1}')
e(f'v_add_f32 v{vRS}, v{vRS}, v{vT1}')
e(f'v_mov_b32 v{vT1}, v{vRS}')
e('s_nop 1')
e(f'v_permlane32_swap_b32 v{vRS}, v{vT1}')
e(f'v_add_f32 v{vRS}, v{vRS}, v{vT1}')
e(f'v_cvt_pk_bf16_f32 v{vRS}, v{vRS}, v{vRS}')
e(f'v_lshlrev_b32 v{vRS}, 16, v{vRS}')
e(f'v_mul_f32 v{vRS}, 0xbfb8aa3b, v{vRS}')
e(f'v_exp_f32 v{vRS}, v{vRS}')
e('s_nop 0')
e(f'v_add_f32 v{vRS}, 1.0, v{vRS}')
e(f'v_rcp_f32 v{vRS}, v{vRS}')
e('s_nop 0')
e(f'v_cvt_pk_bf16_f32 v{vRS}, v{vRS}, v{vRS}')
e(f'v_bfi_b32 v{vP}, v{vFF}, s{sTI}, v{vRS}')
for r in range(1, 4): e(f'v_mov_b32 v{vP+r}, s{sTB+r}')
e(f's_lshl_b32 s{sTMP}, s{sKK}, 4')
e('s_mov_b64 exec, 1')
e(f'buffer_store_dwordx4 v[{vP}:{vP+3}], v{vL16}, s[{SW}:{SW+3}], s{sTMP} offen offset:{RBASE} sc1')
e('s_mov_b64 exec, -1')
lab('L_rdone')
e('s_barrier')
e('s_branch L_reduce')
lab('L_codeend')
o += ['.section .rodata,"a"', '.p2align 6', f'.amdhsa_kernel {NAME}',
      f'  .amdhsa_next_free_vgpr {NV}', '  .amdhsa_next_free_sgpr 100', f'  .amdhsa_accum_offset {NV}',
      '  .amdhsa_group_segment_fixed_size 0', '  .amdhsa_kernarg_size 64', '  .amdhsa_user_sgpr_count 2',
      '  .amdhsa_user_sgpr_kernarg_segment_ptr 1', '  .amdhsa_system_sgpr_workgroup_id_x 1',
      '  .amdhsa_float_denorm_mode_32 3',
      '.end_amdhsa_kernel']
print('\n'.join(o))
```

```python
import sys
opts = dict(a.split('=') if '=' in a else (a, '1') for a in sys.argv[1:])
opts.setdefault('nopre', '1'); opts.setdefault('wpre', '1'); opts.setdefault('niss', '[2,2,2,1,1,0,0,0,0]')
STAMPS = 'stamps' in opts
NT1 = '' if 'nont1' in opts else ' nt'
NT2 = '' if 'nont2' in opts else ' nt'
FSC = ' ' + opts.get('fsc', 'none').replace('+', ' ').replace('none', '')
OUTSC = ' ' + opts.get('outsc', '').replace('+', ' ')
TS = '' if 'tplain' in opts else ' sc1'
HS = opts.get('hs', 'sc1').replace('+', ' '); HL = opts.get('hl', 'sc1').replace('+', ' ')
NAME = 'standalone__moe_arch_mod__decode_kernel'
NWG = 256
LDS_X = 65536
LDS_H = LDS_X
DREG = {(0, 0): 0, (0, 1): 73728, (1, 0): 16384, (1, 1): 32768}
LDS_TOTAL = 108800
RBASE = 1024
VBASE = 512
PROBE1 = 15*16384 + 12288
NPR = int(opts.get('npr', 1))
TBASE = 2048
PBASE = 4096
YBASE = PBASE + 56 * 16384
YS = 3584
HBASE = 0x1C4000
STAMPBASE = 3 << 20
WS_SIZE = 4 << 20
OOB = 0x10000000
assert HBASE >= YBASE + 256 * YS and HBASE + 14 * 16384 <= (2 << 20)
POLL_MAX = 1 << 20
STAGES = eval(opts.get('stages', '[[0,1],[2,3],[4,5],[6,7],[8,9],[10,11],[12,13],[14],[15]]'))
PRO = int(opts.get('pro', 10))
NISS = eval(opts.get('niss', '[2,2,2,2,1,0,0,0,0]'))
PW = int(opts.get('pw', 3))
KB = int(opts.get('kb', 1))
KFALL = int(opts.get('kfall', 40))


DOC = """
; ---------------------------------------------------------------------------------------------------------
; ---------------------------------------------------------------------------------------------------------
"""
o = []
def e(s): o.append('    ' + s)
def lab(s): o.append(s + ':')
nstamp = [0]
SB = lambda i: 68 + 2*i if i < 12 else 30
def stamp(i):
    if 'estamp' in opts and (i == 0 or i == int(opts['estamp'])):
        e('s_memrealtime s[88:89]')
    if STAMPS:
        nstamp[0] = max(nstamp[0], i + 1)
        e(f's_memrealtime s[{SB(i)}:{SB(i)+1}]')

hdr = open('standalone__moe_arch_mod__decode.s.ref').read().split('\n')
for l in hdr:
    if l.startswith('; @launch'):
        o.append(f'; @launch grid=({NWG},1,1) block=(256,1,1) lds={LDS_TOTAL}')
        break
    o.append(l)
o += DOC.strip().split('\n')
o += ['.amdgcn_target "amdgcn-amd-amdhsa--gfx950"', '.text', f'.globl {NAME}', '.p2align 8',
      f'.type {NAME},@function', f'{NAME}:']

SM, SD, SX, SW, SO, SR = 4, 8, 12, 16, 20, 24
sTAG = 28
sEXP = 30
sTB = 32
sCT, sMEM, sC3, sWV, sTMP, sTMP2, sP, sCNT, sTASK, sROW0, sQ, sKK, sSEL0, sMW, sXCD, sSLOT = range(36, 52)
sLO, sHI = 52, 54
sNOP2, sMD, sMX, sPOS, sQ2, sK3 = 56, 57, 58, 59, 60, 61
sLOC = 62
sT64 = 64
sY = 66; sTROW = 67; sMA = 3; sH = 27; sCB = 96; sHA = 97; sHB = 98; sV = 72; sTI = 92
vL, vT0, vT1, vT2, vA, vB, vX, vD, vRD1, vRDA, vL16, vTR, vPUB2, vFF, vHP, vP1 = range(1, 17)
vWV = 17; vOUT = 18; vXR = 19; vRS = 20; vXL = 21; vRA = 22; vRDB = 23
vXF = 24
vACC = 32
vW = 48
vWD = 64
vG = 96
vP = 128
vPP = 140
vGR = 144
vQ = 150; vTA = 151; vTB = 152; vY4 = 154; vHW = 155; vHR = 156; vPF = 157; vRB = 158
vH = 160
vRG = 192
vRX = 64
NV = 196

def srdc(s, sz):
    e(f's_mov_b32 s{s+2}, {sz}'); e(f's_mov_b32 s{s+3}, 0x20000')
def common_tag():
    e(f's_mul_i32 s{sTAG}, s{sTAG}, 1664525')
    e(f's_add_u32 s{sTAG}, s{sTAG}, 1013904223')
    e(f'v_mov_b32 v{vTB}, s{sTAG}')
    e(f'v_mov_b32 v{vTB+1}, s{sTAG+1}')
    e(f'v_lshlrev_b32 v{vT1}, 22, v0')
    e(f's_lshl_b32 s{sTMP}, s{sTASK}, 3')
    e(f'buffer_store_dwordx2 v[{vTB}:{vTB+1}], v{vT1}, s[{SW}:{SW+3}], s{sTMP} offen offset:{TBASE}{TS}')
    for r in range(4):
        e(f's_bfe_u32 s{sTB+r}, s{sTAG}, {hex(0x70000 + 7*r)}')
        e(f's_or_b32 s{sTI+r}, s{sTB+r}, 0x80')
    e(f's_mov_b32 s{sT64}, s{sTAG}')
    e(f's_mul_i32 s{sT64+1}, s{sTAG}, 0x9e3779b1')
def common_consts():
    srdc(SO, 16384)
    e(f's_mov_b32 s{sLO}, 0x00ff00ff'); e(f's_mov_b32 s{sLO+1}, 0x00ff00ff')
    e(f's_not_b64 s[{sHI}:{sHI+1}], s[{sLO}:{sLO+1}]')
    e(f'v_mov_b32 v{vFF}, 0xff')
    e(f's_lshl_b32 s{sTMP}, s{sXCD}, 2')
    e(f's_lshr_b32 s{sCB}, {opts.get("perm", "0x76243510")}, s{sTMP}')
    e(f's_and_b32 s{sCB}, s{sCB}, 7')
    e(f's_lshl_b32 s{sTASK}, s{sCB}, 5')
    e(f's_add_u32 s{sTASK}, s{sTASK}, s{sSLOT}')
    e(f's_getreg_b32 s{sTAG+1}, hwreg(HW_REG_XCC_ID, 0, 4)')
    e(f's_lshl_b32 s{sTROW}, s{sCB}, 8')
    e(f'v_and_b32 v{vTR}, 31, v{vL}')
    e(f'v_lshlrev_b32 v{vTR}, 3, v{vTR}')
    e(f's_mul_i32 s{sY}, s{sTASK}, {YS}')
    e(f's_add_u32 s{sY}, s{sY}, {YBASE}')
    e(f'v_and_b32 v{vT1}, 7, v{vL}')
    e(f'v_lshlrev_b32 v{vRA}, 4, v{vT1}')
    e(f'v_and_b32 v{vT1}, 1, v{vL}')
    e(f'v_lshl_add_u32 v{vT1}, v{vWV}, 1, v{vT1}')
    e(f'v_lshlrev_b32 v{vRB}, 4, v{vT1}')
    e(f'v_lshlrev_b32 v{vOUT}, 11, v{vT1}')
    e(f'v_lshrrev_b32 v{vT1}, 4, v{vL}')
    e(f'v_lshl_add_u32 v{vOUT}, v{vT1}, 1, v{vOUT}')
    e(f's_lshl_b32 s{sTMP}, s{sTASK}, 3')
    e(f'v_add_u32 v{vOUT}, s{sTMP}, v{vOUT}')
    e(f'v_lshrrev_b32 v{vT1}, 1, v{vL}')
    e(f'v_lshl_add_u32 v{vY4}, v{vT1}, 7, v{vRB}')
    e(f'v_and_b32 v{vP1}, 0x37f, v{vL16}')

def rsetup():
    e(f's_lshl_b32 s{sTMP}, s{sSLOT}, 2')
    e(f's_lshr_b32 s{sQ}, 0x3520, s{sTMP}')
    e(f's_and_b32 s{sQ}, s{sQ}, 15')
    e(f's_lshl3_add_u32 s{sQ}, s{sXCD}, s{sQ}')
    e(f's_lshr_b32 s{sTMP2}, 0x0121, s{sTMP}')
    e(f's_lshr_b32 s{sQ2}, 0x0888, s{sTMP}')
    e(f's_lshl2_add_u32 s{sTMP}, s{sTMP}, 7')
    e(f's_cmp_eq_u32 s{sXCD}, 7')
    e(f's_cselect_b32 s{sQ}, s{sTMP}, s{sQ}')
    e(f's_cselect_b32 s{sTMP2}, s{sQ2}, s{sTMP2}')
    e(f's_cselect_b32 s{sK3}, 0, s{sSLOT}')
    e(f's_and_b32 s{sTMP2}, s{sTMP2}, 15')
    e(f's_lshl_b32 s{sTMP}, s{sTMP2}, 1')
    e(f's_cmp_eq_u32 s{sK3}, 3')
    e(f's_cselect_b32 s{sTMP}, 1, s{sTMP}')
    e(f'v_bfe_u32 v{vT0}, v{vL}, 3, 1')
    e(f'v_mul_u32_u24 v{vT1}, s{sTMP}, v{vT0}')
    e(f'v_lshl_add_u32 v{vQ}, v{vT1}, 13, v{vP1}')
    e(f'v_mul_u32_u24 v{vT0}, s{sTMP2}, v{vT0}')
    e(f'v_add_u32 v{vT0}, s{sQ}, v{vT0}')
    e(f'v_lshrrev_b32 v{vT1}, 2, v{vT0}')
    e(f'v_lshl_add_u32 v{vHP}, v{vT1}, 14, v{vRA}')
    e(f'v_and_b32 v{vT1}, 3, v{vT0}')
    e(f'v_lshl_add_u32 v{vHP}, v{vT1}, 11, v{vHP}')
    e(f'v_lshrrev_b32 v{vT1}, 4, v{vL}')
    e(f'v_lshl_add_u32 v{vHP}, v{vT1}, 7, v{vHP}')
    e(f's_lshl_b32 s{sTMP}, s{sWV}, 9')
    e(f's_add_u32 s{sTMP}, s{sTMP}, {HBASE}')
    e(f'v_add_u32 v{vHP}, s{sTMP}, v{vHP}')
    e(f's_lshl4_add_u32 s{sQ}, s{sQ}, s{sWV}')
    e(f's_lshl_b32 s{sQ}, s{sQ}, 10')
    e(f's_add_u32 s{sQ}, s{sQ}, {PBASE}')
    e(f's_add_u32 s{sQ2}, s{sQ}, 4096')
    e(f'v_min_u32 v{vPF}, 55, v{vL}')
    e(f's_lshl2_add_u32 s{sTMP}, s{sSLOT}, s{sWV}')
    e(f's_mul_i32 s{sTMP}, s{sTMP}, 56')
    e(f'v_add_lshl_u32 v{vPF}, v{vPF}, s{sTMP}, 7')
def rprefetch():
    for so, imm in ((sQ, 0), (sQ2, 0), (sQ, 128), (sQ2, 128)):
        e(f'buffer_load_dword v{vTA}, v{vQ}, s[{SW}:{SW+3}], s{so} offen offset:{imm}')
    if 'nopre' not in opts:
        e(f's_mov_b32 s{sTMP}, {HBASE}')
        e(f'buffer_load_dword v{vTA}, v{vPF}, s[{SW}:{SW+3}], s{sTMP} offen')
    if 'f1early' in opts: yprefetch()
def yprefetch():
    e(f's_mul_i32 s{sTMP}, s{sCB}, {32*YS}')
    e(f's_add_u32 s{sTMP}, s{sTMP}, {YBASE}')
    e(f'buffer_load_dword v{vTA}, v{vPF}, s[{SW}:{SW+3}], s{sTMP} offen')

stamp(0)
e(f's_and_b32 s{sTMP}, s2, 8')
e(f's_add_u32 s{sTMP}, s{sTMP}, 16')
e(f's_load_dwordx2 s[{SM}:{SM+1}], s[0:1], s{sTMP}')
e(f's_load_dwordx2 s[{SX}:{SX+1}], s[0:1], 0')
e(f's_load_dwordx2 s[{SW}:{SW+1}], s[0:1], 56')
e(f's_load_dwordx2 s[{SD}:{SD+1}], s[0:1], 32')
e(f's_load_dwordx2 s[{SO}:{SO+1}], s[0:1], 40')
e(f's_cmp_ge_u32 s2, {NWG}')
e('s_cbranch_scc1 L_end')
if 'nocpf' not in opts:
    e(f's_getpc_b64 s[{sT64}:{sT64+1}]')
    lab('L_pc')
    e(f'v_cmp_gt_u32 vcc, (L_codeend-L_pc)/128, v0')
    e(f's_and_saveexec_b64 s[{sLOC}:{sLOC+1}], vcc')
    e('s_cbranch_execz L_nocpf')
    e(f'v_lshlrev_b32 v{vT0}, 7, v0')
    e(f'global_load_dword v{vTA}, v{vT0}, s[{sT64}:{sT64+1}] offset:124')
    lab('L_nocpf')
    e(f's_mov_b64 exec, s[{sLOC}:{sLOC+1}]')
e(f'v_lshrrev_b32 v{vWV}, 6, v0')
e(f'v_and_b32 v{vL}, 63, v0')
e(f'v_readfirstlane_b32 s{sWV}, v{vWV}')
e(f's_and_b32 s{sXCD}, s2, 7')
e(f's_lshr_b32 s{sSLOT}, s2, 3')
e(f's_lshr_b32 s{sPOS}, s2, 5')
srdc(SM, 1024*3584*2); srdc(SX, 16384); srdc(SW, WS_SIZE)
e(f'v_lshlrev_b32 v{vL16}, 4, v{vL}')
e(f's_cmp_eq_u32 s{sXCD}, 7')
e('s_cbranch_scc1 L_x7')
e(f's_cmp_lt_u32 s{sPOS}, 5')
e(f's_subb_u32 s{sPOS}, s{sPOS}, 1')
e(f's_cmp_lt_u32 s{sSLOT}, 8')
e(f's_cselect_b32 s{sPOS}, 3, s{sPOS}')
e(f's_cselect_b32 s{sC3}, 1, 0')
e(f's_lshl3_add_u32 s{sCT}, s{sXCD}, s{sPOS}')
e('s_branch L_dec')
lab('L_x7')
e(f's_cmp_lt_u32 s{sSLOT}, 4')
e('s_cbranch_scc1 L_router')
e(f's_lshl3_add_u32 s{sCT}, s{sPOS}, -1')
e(f's_mov_b32 s{sC3}, 0')
lab('L_dec')
e(f's_lshl2_add_u32 s{sTMP}, s{sC3}, 3')
e(f's_and_b32 s{sMEM}, s{sSLOT}, s{sTMP}')
e(f's_lshr_b32 s{sKK}, s{sMEM}, 1')
e(f's_or_b32 s{sTMP}, s{sMEM}, 1')
e(f's_cmp_lg_u32 s{sC3}, 0')
e(f's_cselect_b32 s{sROW0}, s{sKK}, s{sTMP}')
e(f'v_lshrrev_b32 v{vT1}, 5, v{vL}')
e(f'v_bfe_u32 v{vT2}, v{vL}, 3, 2')
e(f'v_lshl_add_u32 v{vT0}, v{vT1}, 3, v{vT2}')
e(f'v_lshrrev_b32 v{vT2}, 3, v{vL}')
e(f'v_and_b32 v{vT2}, 6, v{vT2}')
e(f'v_sub_u32 v{vT2}, v{vL}, v{vT2}')
e(f'v_and_b32 v{vT2}, 7, v{vT2}')
e(f'v_lshlrev_b32 v{vT2}, 4, v{vT2}')
e(f's_and_b32 s{sTMP}, s{sWV}, 2')
e(f's_add_u32 s{sTMP}, s{sTMP}, s{sWV}')
e(f's_lshl_b32 s{sTMP2}, s{sROW0}, 6')
e(f's_add_u32 s{sTMP}, s{sTMP}, s{sTMP2}')
e(f's_mul_i32 s{sTMP}, s{sTMP}, {4*7168}')
e(f's_lshl_b32 s{sTMP2}, s{sCT}, 7')
e(f's_add_u32 s{sTMP}, s{sTMP}, s{sTMP2}')
e(f'v_mul_u32_u24 v{vB}, 7168, v{vT0}')
e(f'v_add3_u32 v{vB}, v{vB}, v{vT2}, s{sTMP}')
e(f's_cmp_lg_u32 s{sC3}, 0')
e(f's_cselect_b32 s{sTMP}, 0, {256*7168}')
e(f'v_subrev_u32 v{vA}, s{sTMP}, v{vB}')
e(f's_lshl_b32 s{sMW}, s{sWV}, 14')
e(f's_lshl_b32 s{sTMP2}, s{sC3}, 13')
e(f's_add_u32 s{sMA}, s{sMW}, s{sTMP2}')

cur_m0 = [None]
def set_m0(key, expr_reg, add):
    if cur_m0[0] == (key, add): return False
    cur_m0[0] = (key, add)
    if add: e(f's_add_u32 m0, s{expr_reg}, {add}')
    else: e(f's_mov_b32 m0, s{expr_reg}')
    return True
def issue(item):
    k, i = item
    if k == 'F':
        if i == 0: e(f'buffer_load_dword v{vTA}, v{vP1}, s[{SW}:{SW+3}], s{sP} offen{FSC}')
        elif i == 2: e(f'buffer_load_dword v{vTA}, v{vL16}, s[{SW}:{SW+3}], s{sH} offen{FSC}')
        else: e(f'buffer_load_dword v{vTA}, v{vPUB2}, s[{SW}:{SW+3}], 0 offen{FSC}')
        return
    if k == 'W':
        ch = set_m0('W', sMW, (i >> 2) * 4096) if i >= 8 else set_m0('A', sMA, (i >> 2) * 4096)
        imm = (i & 3) * 1024
        so = (i & 7) * 32 * 7168 - imm
        v, srd, nt = (vA if i < 8 else vB), SM, NT1
    elif k == 'D':
        gp, e4, chh = i >> 2, (i >> 1) & 1, i & 1
        ch = set_m0('D', sMD, DREG[(gp, chh)] + e4 * 4096)
        imm = 0
        so = (16*gp + 4*e4) * 2048 + chh * 128
        v, srd, nt = vD, SD, NT2
    else:
        ch = set_m0('X', sMX, i * 4096)
        imm = 0; so = 0
        v, srd, nt = (vXL if i == 0 else vX), SX, ''
    if so == 0:
        sof = '0'
        if ch: e('s_nop 0')
    else:
        e(f's_mov_b32 s{sTMP}, {so}'); sof = f's{sTMP}'
    e(f'buffer_load_dwordx4 v{v}, s[{srd}:{srd+3}], {sof} offen offset:{imm}{nt} lds')

def addr_x():
    e(f'v_and_b32 v{vT1}, 7, v{vL}')
    e(f'v_lshlrev_b32 v{vX}, 11, v{vT1}')
    e(f'v_and_b32 v{vT1}, 8, v{vL}')
    e(f'v_lshl_add_u32 v{vX}, v{vT1}, 3, v{vX}')
    e(f'v_and_b32 v{vT1}, 48, v{vL}')
    e(f's_lshl2_add_u32 s{sTMP}, s{sROW0}, s{sWV}')
    e(f's_lshl_b32 s{sTMP}, s{sTMP}, 7')
    e(f'v_add3_u32 v{vX}, v{vX}, v{vT1}, s{sTMP}')
    e(f's_cmp_lg_u32 s{sC3}, 0')
    e(f's_cselect_b32 s{sTMP}, 0, 512')
    e(f'v_subrev_u32 v{vXL}, s{sTMP}, v{vX}')
    e(f's_lshl_b32 s{sMX}, s{sWV}, 10')
    e(f's_add_u32 s{sMX}, s{sMX}, {LDS_X}')

FS = [('F', 0)] + ([] if 'nopre' in opts else [('F', 2)]) + ([('F', 1)] if 'f1prod' in opts else [])
FPOS = int(opts.get('fpos', 16))
NDR = max(0, PRO + sum(NISS) - 16 - len(FS))
if 'dold' in opts:
    DORD = [0, 2, 4, 6][:NDR] + [1, 3, 5, 7] + [0, 2, 4, 6][NDR:]
    BEARLY = [1, 3, 5, 7][:KB]
    assert KB <= 2 and NDR <= 1
else:
    DORD = [1, 3, 5, 7, 0, 2, 4, 6] if KB + NDR <= 2 else [1, 0, 3, 5, 7, 2, 4, 6]
    BEARLY = DORD[NDR:NDR+KB]
    assert KB + NDR <= 2 or (NDR >= 2 and KB + NDR == 3)
assert sum(NISS[:4]) + PRO <= 16 + len(FS)
stream = [('W', s) for s in range(FPOS)] + FS + [('W', s) for s in range(FPOS, 16)] + [('D', u) for u in DORD]
sched = []; pos = PRO
for i_, st in enumerate(STAGES):
    n = NISS[i_]
    sched.append(stream[pos:pos+n]); pos = min(pos + n, len(stream))
tail_items = stream[pos:]
H = int(opts.get('h', 4))
e(f's_mov_b32 m0, s{sMA}')
e('s_waitcnt lgkmcnt(0)')
stamp(1)
cur_m0[0] = ('A', 0)
issued = stream[:H]
for it in issued: issue(it)
e(f's_load_dword s{sTAG}, s[{SW}:{SW+1}], 0')
addr_x()
issue(('X', 0)); issue(('X', 1))
assert PRO >= 8
for it in stream[H:8]: issue(it)
rest = stream[8:PRO]
assert all(k == 'W' for k, _ in rest)
if rest:
    e(f's_cmp_lg_u32 s{sC3}, 0')
    e('s_cbranch_scc1 L_pre')
    for it in rest: issue(it)
issued = issued + [('X', 0), ('X', 1)] + stream[H:PRO] + [('T', 0)]
lab('L_pre')
cur_m0[0] = None
stamp(2)
common_consts()
srdc(SD, 3584*1024*2)
e(f's_sub_u32 s{sK3}, s{sSLOT}, 4')
e(f's_cselect_b32 s{sNOP2}, {OOB}, 0')
e(f's_cselect_b32 s{sK3}, 0, s{sK3}')
e(f's_lshl2_add_u32 s{sTMP}, s{sK3}, s{sWV}')
e(f's_lshl_b32 s{sTMP}, s{sTMP}, 16')
e(f's_add_u32 s{sTMP}, s{sTMP}, s{sTROW}')
e(f's_add_u32 s{sTMP}, s{sTMP}, s{sNOP2}')
e(f'v_lshlrev_b32 v{vD}, 11, v{vT0}')
e(f'v_add3_u32 v{vD}, v{vD}, v{vT2}, s{sTMP}')
e(f's_lshl_b32 s{sMD}, s{sWV}, 10')
if 'tlbw' in opts:
    e('s_mov_b64 exec, 1')
    e(f's_mov_b32 s{sTMP}, {7*32*7168}')
    e(f'buffer_load_dword v{vTA}, v{vB}, s[{SM}:{SM+3}], s{sTMP} offen')
    e(f'buffer_load_dword v{vTA}, v{vD}, s[{SD}:{SD+3}], 0 offen')
    e(f'buffer_load_ushort v{vTA}, v{vOUT}, s[{SO}:{SO+3}], 0 offen')
    e('s_mov_b64 exec, -1')
    issued = issued[:-1] + [('Z', 0), ('Z', 1), ('Z', 2), ('T', 0)]
e(f'v_bfe_u32 v{vT1}, v{vL}, 2, 3')
e(f'v_lshlrev_b32 v{vT0}, 7, v{vT1}')
e(f'v_and_b32 v{vT2}, 1, v{vL}')
e(f'v_lshl_add_u32 v{vT0}, v{vT2}, 3, v{vT0}')
e(f'v_and_b32 v{vT1}, 6, v{vT1}')
e(f'v_bfe_u32 v{vT2}, v{vL}, 1, 1')
e(f'v_add_u32 v{vT1}, v{vT1}, v{vT2}')
e(f'v_lshl_add_u32 v{vT2}, v{vWV}, 1, v{vT1}')
e(f'v_and_b32 v{vT2}, 7, v{vT2}')
e(f'v_lshl_add_u32 v{vRD1}, v{vT2}, 4, v{vT0}')
e(f'v_lshrrev_b32 v{vT2}, 5, v{vL}')
e(f'v_lshl_add_u32 v{vRD1}, v{vT2}, 15, v{vRD1}')
e(f's_cmp_gt_u32 s{sWV}, 1')
e(f's_cselect_b32 s{sTMP}, {DREG[(0,1)]}, 0')
e(f's_mov_b32 s{sTMP2}, {DREG[(1,0)] - DREG[(0,0)]}')
e(f's_cselect_b32 s{sTMP2}, {DREG[(1,1)] - DREG[(0,1)]}, s{sTMP2}')
e(f'v_mul_lo_u32 v{vT2}, v{vT2}, s{sTMP2}')
e(f'v_add3_u32 v{vT0}, v{vT0}, v{vT2}, s{sTMP}')
e(f'v_lshl_add_u32 v{vT1}, v{vWV}, 2, v{vT1}')
e(f'v_and_b32 v{vT2}, 7, v{vT1}')
e(f'v_lshl_add_u32 v{vRDA}, v{vT2}, 4, v{vT0}')
e(f'v_add_u32 v{vT1}, 2, v{vT1}')
e(f'v_and_b32 v{vT2}, 7, v{vT1}')
e(f'v_lshl_add_u32 v{vRDB}, v{vT2}, 4, v{vT0}')
e(f'v_add_u32 v{vXL}, {LDS_X}, v{vL16}')
e(f's_lshl2_add_u32 s{sP}, s{sCT}, s{sKK}')
e(f's_lshl2_add_u32 s{sP}, s{sP}, s{sWV}')
e(f's_lshl_b32 s{sP}, s{sP}, 10')
e(f's_and_b32 s{sTMP2}, s{sMEM}, 1')
e(f's_lshl_b32 s{sTMP2}, s{sTMP2}, 7')
e(f's_add_u32 s{sP}, s{sP}, s{sTMP2}')
e(f's_add_u32 s{sP}, s{sP}, {PBASE}')
e(f's_lshl2_add_u32 s{sH}, s{sK3}, s{sWV}')
e(f's_and_b32 s{sTMP}, s{sH}, 0x78')
e(f's_add_u32 s{sH}, s{sH}, s{sTMP}')
e(f's_lshl_b32 s{sH}, s{sH}, 10')
e(f's_bfe_u32 s{sTMP}, s{sTAG+1}, 0x10002')
e(f's_xor_b32 s{sTMP}, s{sTMP}, {opts.get("flip", 0)}')
e(f's_lshl_b32 s{sTMP}, s{sTMP}, 13')
e(f's_add_u32 s{sH}, s{sH}, s{sTMP}')
e(f's_add_u32 s{sH}, s{sH}, {HBASE}')
e(f'v_mul_u32_u24 v{vHR}, 17, v{vRA}')
e(f'v_add_u32 v{vHR}, {LDS_H}, v{vHR}')
e(f'v_lshl_add_u32 v{vHW}, v{vWV}, 6, v{vHR}')
e(f'v_and_b32 v{vT1}, 56, v{vL}')
e(f'v_add_u32 v{vHW}, v{vHW}, v{vT1}')
e(f'v_and_b32 v{vT1}, 48, v{vL}')
e(f'v_add_u32 v{vHR}, v{vHR}, v{vT1}')
for i in range(32): e(f'v_mov_b32 v{vH+i}, 0')
e(f'v_bfe_u32 v{vT0}, v{vL}, 3, 1')
e(f'v_lshrrev_b32 v{vT2}, 4, v{vL}')
e(f'v_lshl_add_u32 v{vPUB2}, v{vT0}, 2, v{vT2}')
e(f'v_mul_u32_u24 v{vPUB2}, {YS}, v{vPUB2}')
e(f's_lshl2_add_u32 s{sTMP}, s{sCB}, s{sWV}')
e(f's_mul_i32 s{sTMP}, s{sTMP}, {8*YS}')
e(f's_lshl_b32 s{sTMP2}, s{sK3}, 7')
e(f's_add_u32 s{sTMP}, s{sTMP}, s{sTMP2}')
e(f's_add_u32 s{sTMP}, s{sTMP}, s{sNOP2}')
e(f's_add_u32 s{sTMP}, s{sTMP}, {YBASE}')
e(f'v_add3_u32 v{vPUB2}, v{vPUB2}, v{vRA}, s{sTMP}')
for i in range(8): e(f'v_mov_b32 v{vACC+i}, 0')
e(f's_cmp_eq_u32 s{sNOP2}, 0')
e('s_cbranch_scc1 L_nors')
rsetup()
if 'wpre' in opts:
    e(f'buffer_load_dword v{vTA}, v{vHP}, s[{SW}:{SW+3}], 0 offen')
    e(f's_mov_b32 s{sTMP}, 0x2000')
    e(f'buffer_load_dword v{vTA}, v{vHP}, s[{SW}:{SW+3}], s{sTMP} offen')
lab('L_nors')
e('s_waitcnt lgkmcnt(0)')
if 'estamp' in opts: stamp(21)
common_tag()
iB = [i for i, st in enumerate(STAGES) if st[0] == 8][0]
if KB:
    e(f's_and_b32 s{sTMP}, s{sCB}, 3')
    e(f's_cmp_eq_u32 s{sTMP}, 1')
    e('s_cbranch_scc0 L_nob')
    cur_m0[0] = None
    for u in BEARLY: issue(('D', u))
    lab('L_nob')
e(f's_cmp_lg_u32 s{sC3}, 0')
e('s_cbranch_scc0 L_compA')
cur_m0[0] = None
pre = [x for sc_ in sched[:iB] for x in sc_]
assert ('W', 15) in pre + issued
nonw = [x for x in pre if x[0] != 'W']
for it in nonw: issue(it)
e(f's_waitcnt vmcnt({min(4, 8 - H) + len(nonw)})')
e('s_branch L_compB')
lab('L_compA')
cur_m0[0] = None
for si, stage in enumerate(STAGES):
    if stage[0] == 8:
        lab('L_compB'); cur_m0[0] = None
        upto = list(issued)
    idx = max(issued.index(('W', stage[-1])), issued.index(('X', int(stage[-1] >= 8))))
    e(f's_waitcnt vmcnt({len([x for x in issued[idx+1:] if x[0] != chr(84)])})')
    for it in sched[si]: issue(it); issued.append(it)
    e('s_barrier')
    if stage[0] == 8: stamp(3)
    if stage[0] == 0 and 'estamp' in opts: stamp(20)
    if stage[0] == 6 and 'echo' in opts: stamp(13)
    ts = sorted(set(s >> 1 for s in stage))
    for t in ts:
        if (2*t) in stage:
            e(f'ds_read_b128 v[{vXF+4*(t&1)}:{vXF+4*(t&1)+3}], v{vXL} offset:{t*1024}')
    for i, s in enumerate(stage):
        b = vW + 4*i
        e(f'ds_read_b64_tr_b16 v[{b}:{b+1}], v{vRD1} offset:{s*1024}')
        e(f'ds_read_b64_tr_b16 v[{b+2}:{b+3}], v{vRD1} offset:{16384+s*1024}')
    for i, s in enumerate(stage):
        b = vW + 4*i
        e(f's_waitcnt lgkmcnt({2*(len(stage)-1-i)})')
        acc = vACC + 4*(s & 1); t = s >> 1
        xf = vXF + 4*(t & 1)
        e(f'v_mfma_f32_16x16x32_bf16 v[{acc}:{acc+3}], v[{b}:{b+3}], v[{xf}:{xf+3}], v[{acc}:{acc+3}]')
stamp(4)
e(f's_mov_b32 s{sCNT}, {POLL_MAX}')
e('s_nop 6')
for r in range(4):
    e(f'v_add_f32_dpp v{vPP+r}, v{vACC+4+r}, v{vACC+r} row_ror:8 row_mask:0xf bank_mask:0xf')
for r in range(4):
    e(f'v_bfi_b32 v{vPP+r}, v{vFF}, s{sTI+r}, v{vPP+r}')
def pub1(sc):
    e(f's_mov_b64 exec, s[{sLO}:{sLO+1}]')
    e(f'buffer_store_dwordx4 v[{vPP}:{vPP+3}], v{vL16}, s[{SW}:{SW+3}], s{sP} offen{sc}')
    e('s_mov_b64 exec, -1')
pub1('')
stamp(5)
e(f's_cmp_lg_u32 s{sNOP2}, 0')
e('s_cbranch_scc1 L_reduce')
seq = issued[issued.index(('W', 15))+1:] + [('S', 0)]
if 'puback' in opts: e('s_waitcnt vmcnt(0)')
if 'nopubbar' not in opts: e('s_barrier')
def tbl_load():
    e(f'buffer_load_dwordx2 v[{vTB}:{vTB+1}], v{vTR}, s[{SW}:{SW+3}], s{sTROW} offen offset:{TBASE} sc1')
def tbl_check(lbl):
    e(f'v_cmp_eq_u64 s[{sLOC}:{sLOC+1}], s[{sTAG}:{sTAG+1}], v[{vTB}:{vTB+1}]')
    if 'nolocal' in opts: e(f's_mov_b64 s[{sLOC}:{sLOC+1}], 0')
    e(f's_cmp_eq_u64 s[{sLOC}:{sLOC+1}], -1')
    e(f's_cbranch_scc1 {lbl}')
    pub1(' sc1')
    lab(lbl)
def small_loads():
    tbl_load(); seq.append(('T', 1))
    e(f'buffer_load_ushort v{vXR}, v{vOUT}, s[{SX}:{SX+3}], 0 offen'); seq.append(('R', 0))
    e(f'buffer_load_dwordx4 v[{vRG}:{vRG+3}], v{vRB}, s[{SW}:{SW+3}], 0 offen offset:{RBASE} sc1'); seq.append(('R', 1))
if KB:
    assert tail_items[:KB] == [('D', u) for u in BEARLY], tail_items
    e(f's_and_b32 s{sTMP}, s{sCB}, 3')
    e(f's_cmp_eq_u32 s{sTMP}, 1')
    e('s_cbranch_scc1 L_skipb')
for n_, it in enumerate(tail_items):
    if KB and n_ == KB: lab('L_skipb'); cur_m0[0] = None
    if 'dwin' in opts and n_ >= int(opts['dwin']): e(f's_waitcnt vmcnt({int(opts["dwin"])-1})')
    issue(it); seq.append(it)
afterD = len(seq) - 1 - seq.index(('D', DORD[-1]))
e(f's_waitcnt vmcnt({afterD + int(opts.get("vw", 5))})')
e(f's_load_dwordx8 s[{sV}:{sV+7}], s[{SW}:{SW+1}], {VBASE}')
small_loads()
afterD = len(seq) - 1 - seq.index(('D', DORD[-1]))
e(f's_mov_b32 s{sTMP2}, 0')
e('s_waitcnt lgkmcnt(0)')
for i in range(4):
    e(f's_cmp_eq_u32 s{sV+2*i}, s{sTAG}')
    e(f's_cselect_b32 s{sTMP}, s{sV+2*i+1}, 0')
    e(f's_add_i32 s{sTMP2}, s{sTMP2}, s{sTMP}')
e(f's_cmp_{"lt" if opts.get("flip", "0") == "1" else "gt"}_i32 s{sTMP2}, 0')
e(f's_cselect_b32 s{sTMP}, 0x2000, 0')
e(f's_xor_b32 s{sH}, s{sH}, s{sTMP}')
e(f's_waitcnt vmcnt({afterD + PW})')
def hloads():
    e(f'buffer_load_dwordx4 v[{vG}:{vG+3}], v{vL16}, s[{SW}:{SW+3}], s{sH} offen {HL}')
hloads()
e(f's_waitcnt vmcnt({afterD + 1})')
e('s_barrier')
stamp(6)
for s in range(4):
    for sub, va in ((0, vRDA), (1, vRDB)):
        b = vWD + 8*s + 4*sub
        e(f'ds_read_b64_tr_b16 v[{b}:{b+1}], v{va} offset:{s*1024}')
        e(f'ds_read_b64_tr_b16 v[{b+2}:{b+3}], v{va} offset:{s*1024+4096}')
e('s_waitcnt vmcnt(1)')
tbl_check('L_tc1')
e('s_branch L_pollhw')
lab('L_pollh')
e(f's_sub_u32 s{sCNT}, s{sCNT}, 1')
e('s_cbranch_scc1 L_pollh_done')
hloads()
lab('L_pollhw')
e('s_waitcnt vmcnt(0)')
e(f'v_cmp_ne_u64 vcc, s[{sT64}:{sT64+1}], v[{vG+2}:{vG+3}]')
e('s_cbranch_vccnz L_pollh')
lab('L_pollh_done')
e(f'ds_write_b64 v{vHW}, v[{vG}:{vG+1}]')
stamp(7)
e(f's_mov_b64 exec, s[{sLO}:{sLO+1}]')
e('s_waitcnt lgkmcnt(0)')
e('s_barrier')
for s in range(4): e(f'ds_read_b128 v[{vH+4*s}:{vH+4*s+3}], v{vHR} offset:{64*s}')
e(f's_mov_b64 exec, s[{sHI}:{sHI+1}]')
for s in range(4): e(f'ds_read_b128 v[{vH+16+4*s}:{vH+16+4*s+3}], v{vHR} offset:{64*s}')
e('s_mov_b64 exec, -1')
for k in range(8):
    sub, s = k >> 2, k & 3
    e(f's_waitcnt lgkmcnt({7-k})')
    b = vWD + 8*s + 4*sub
    c = '0' if k == 0 else f'v[{vACC}:{vACC+3}]'
    e(f'v_mfma_f32_16x16x32_bf16 v[{vACC}:{vACC+3}], v[{b}:{b+3}], v[{vH+4*k}:{vH+4*k+3}], {c}')
e(f's_cmp_eq_u64 s[{sLOC}:{sLOC+1}], -1')
e('s_nop 6')
for r in range(4):
    e(f'v_bfi_b32 v{vP+r}, v{vFF}, s{sTI+r}, v{vACC+r}')
e('s_cbranch_scc0 L_far')
e(f'buffer_store_dwordx4 v[{vP}:{vP+3}], v{vPUB2}, s[{SW}:{SW+3}], 0 offen')
if 'cleanp' in opts:
    e(f's_cmp_eq_u32 s{sWV}, 0')
    e('s_cbranch_scc1 L_fin')
    pub1(' sc1')
lab('L_fin')
stamp(8)
e(f's_mov_b32 s{sCNT}, {POLL_MAX}')
def check(g):
    e(f'v_perm_b32 v{vP+4}, v{g+1}, v{g}, s{sSEL0}')
    e(f'v_perm_b32 v{vP+5}, v{g+3}, v{g+2}, s{sSEL0}')
    e(f'v_cmpx_eq_u64 vcc, s[{sEXP}:{sEXP+1}], v[{vP+4}:{vP+5}]')
def strip(g, first):
    for r in range(4): e(f'v_xor_b32 v{g+r}, s{sTB+r}, v{g+r}')
    if first: e(f'v_or_b32 v{vP+4}, v{g}, v{g+1}')
    else: e(f'v_or3_b32 v{vP+4}, v{vP+4}, v{g}, v{g+1}')
    e(f'v_or3_b32 v{vP+4}, v{vP+4}, v{g+2}, v{g+3}')
def strip_test(lbl):
    e(f'v_and_b32 v{vP+4}, 0x7f, v{vP+4}')
    e(f'v_cmp_ne_u32 vcc, 0, v{vP+4}')
    e(f's_cbranch_vccnz {lbl}')
def padd(a, b):
    e(f'v_pk_add_f32 v[{vG+4*a}:{vG+4*a+1}], v[{vG+4*a}:{vG+4*a+1}], v[{vG+4*b}:{vG+4*b+1}]')
    e(f'v_pk_add_f32 v[{vG+4*a+2}:{vG+4*a+3}], v[{vG+4*a+2}:{vG+4*a+3}], v[{vG+4*b+2}:{vG+4*b+3}]')
def yload():
    e(f'buffer_load_dwordx4 v[{vG+4}:{vG+7}], v{vY4}, s[{SW}:{SW+3}], s{sY} offen sc1')
e('s_mov_b32 exec_hi, 0x00ffffff')
yload()
e('s_mov_b32 exec_hi, -1')
lab('L_rchk')
strip(vRG, True)
strip_test('L_rpoll')
for r in range(4): e(f'v_mov_b32 v{vG+r}, 0')
e(f'v_and_b32 v{vRS}, 0xffff0000, v{vRG}')
e(f'v_lshlrev_b32 v{vXR}, 16, v{vXR}')
e(f'v_fma_f32 v{vXR}, v{vXR}, 0, v{vXR}')
e('s_mov_b32 exec_hi, 0x00ffffff')
e('s_branch L_poll2w')
lab('L_poll2')
e(f's_sub_u32 s{sCNT}, s{sCNT}, 1')
e('s_cbranch_scc1 L_poll2_done')
yload()
lab('L_poll2w')
e('s_waitcnt vmcnt(0)')
for r in range(4): e(f'v_xor_b32 v{vG+r}, s{sTB+r}, v{vG+4+r}')
e(f'v_or_b32 v{vP+4}, v{vG}, v{vG+1}')
e(f'v_or3_b32 v{vP+4}, v{vP+4}, v{vG+2}, v{vG+3}')
strip_test('L_poll2')
lab('L_poll2_done')
e('s_mov_b32 exec_hi, -1')
stamp(9)
e(f'v_permlane32_swap_b32 v{vG}, v{vG+2}')
e(f'v_permlane32_swap_b32 v{vG+1}, v{vG+3}')
e(f'v_add_f32 v{vG}, v{vG}, v{vG+2}')
e(f'v_add_f32 v{vG+1}, v{vG+1}, v{vG+3}')
e('s_nop 1')
e(f'v_permlane16_swap_b32 v{vG}, v{vG+1}')
e(f'v_add_f32 v{vG}, v{vG}, v{vG+1}')
for sh in (8, 4, 2):
    e('s_nop 1')
    e(f'v_add_f32_dpp v{vG}, v{vG}, v{vG} row_ror:{sh} row_mask:0xf bank_mask:0xf')
e(f'v_cvt_pk_bf16_f32 v{vG}, v{vG}, v{vG}')
e(f'v_lshlrev_b32 v{vG}, 16, v{vG}')
e(f'v_mul_f32 v{vG}, v{vG}, v{vRS}')
e(f'v_cvt_pk_bf16_f32 v{vG}, v{vG}, v{vG}')
e(f'v_lshlrev_b32 v{vG}, 16, v{vG}')
e(f'v_add_f32 v{vG}, v{vG}, v{vXR}')
e(f'v_cvt_pk_bf16_f32 v{vG}, v{vG}, v{vG}')
e('s_mov_b32 exec_lo, 0x00030003'); e('s_mov_b32 exec_hi, 0x00030003')
e(f'buffer_store_short v{vG}, v{vOUT}, s[{SO}:{SO+3}], 0 offen{OUTSC}')
e(f's_or_b32 s{sTMP}, s{sTASK}, s{sWV}')
e('s_cbranch_scc1 L_fin_done')
e('s_mov_b64 exec, 1')
e(f'v_mov_b32 v{vT1}, s{sTAG}')
e(f'buffer_store_dword v{vT1}, v{vL16}, s[{SW}:{SW+3}], 0 offen')
lab('L_fin_done')
if 'echo' in opts:
    i_, j_ = map(int, opts['echo'].split(','))
    e('s_waitcnt vmcnt(0)')
    stamp(10)
    e(f's_cmp_lg_u32 s{sWV}, 0')
    e('s_cbranch_scc1 L_end')
    e(f's_cmp_lg_u32 s2, {opts.get("ewg", 68)}')
    e('s_cbranch_scc1 L_end')
    e('s_waitcnt lgkmcnt(0)')
    e(f's_sub_u32 s96, s{68+2*i_}, s{68+2*j_}')
    e(f's_mul_i32 s96, s96, {opts.get("ek", 2)}')
    e('s_min_u32 s96, s96, 20000')
    if 'eloc' in opts:
        e(f's_cmp_eq_u64 s[{sLOC}:{sLOC+1}], -1')
        e('s_cselect_b32 s96, 0, 1000')
    lab('L_echo')
    e('s_memrealtime s[98:99]')
    e('s_waitcnt lgkmcnt(0)')
    e('s_sub_u32 s98, s98, s88')
    e('s_cmp_lt_u32 s98, s96')
    e('s_cbranch_scc1 L_echo')
if STAMPS and 'echo' not in opts:
    e('s_waitcnt vmcnt(0)')
    stamp(10)
    e('s_waitcnt lgkmcnt(0)')
    n = 13
    e('s_mov_b64 exec, 1')
    e(f's_lshl_b32 s{sTMP}, s2, 2')
    e(f's_add_u32 s{sTMP}, s{sTMP}, s{sWV}')
    e(f's_lshl_b32 s{sTMP}, s{sTMP}, 6')
    e(f's_add_u32 s{sTMP}, s{sTMP}, {STAMPBASE}')
    for i in range(n):
        e(f'v_mov_b32 v{vT1}, s{SB(i)}')
        e(f'buffer_store_dword v{vT1}, v{vL16}, s[{SW}:{SW+3}], s{sTMP} offen offset:{4*i}')
        e('s_nop 0')
lab('L_end')
e('s_endpgm')
lab('L_far')
e(f'buffer_store_dwordx4 v[{vP}:{vP+3}], v{vPUB2}, s[{SW}:{SW+3}], 0 offen sc1')
e('s_branch L_fin')
lab('L_rpoll')
e(f's_sub_u32 s{sCNT}, s{sCNT}, 1')
e('s_cbranch_scc1 L_fin_done')
e(f'buffer_load_dwordx4 v[{vRG}:{vRG+3}], v{vRB}, s[{SW}:{SW+3}], 0 offen offset:{RBASE} sc1')
e('s_waitcnt vmcnt(0)')
e('s_branch L_rchk')

lab('L_reduce')
e(f's_bfe_u32 s{sHB}, s{sTAG+1}, 0x10002')
e(f's_xor_b32 s{sHB}, s{sHB}, {opts.get("flip", 0)}')
e(f's_lshl_b32 s{sHB}, s{sHB}, 13')
if 'sswap' in opts: e(f's_xor_b32 s{sHB}, s{sHB}, 0x2000')
e(f's_xor_b32 s{sHA}, s{sHB}, 0x2000')
e(f'v_mov_b32 v{vGR+4}, s{sT64}'); e(f'v_mov_b32 v{vGR+5}, s{sT64+1}')
e(f's_mov_b32 s{sCNT}, {POLL_MAX}')
e(f's_mov_b32 s{sTMP}, 0xbfb8aa3b')
e(f's_mov_b32 s{sTMP2}, 0xffff0000')
lab('L_poll1')
e(f's_cmp_lg_u32 s{sCNT}, {POLL_MAX - KFALL}')
e('s_cbranch_scc1 L_poll1b')
pub1(' sc1')
lab('L_poll1b')
def ld1(i, so, imm):
    e(f'buffer_load_dwordx4 v[{vG+4*i}:{vG+4*i+3}], v{vQ}, s[{SW}:{SW+3}], s{so} offen offset:{imm} sc1')
e(f's_sub_u32 s{sCNT}, s{sCNT}, 1')
e('s_cbranch_scc1 L_poll1_done')
ld1(0, sQ, 0); ld1(1, sQ2, 0); ld1(2, sQ, 128); ld1(3, sQ2, 128)
for i in range(4):
    e(f's_waitcnt vmcnt({3-i})')
    strip(vG + 4*i, i == 0)
    if i == 1: padd(0, 1)
strip_test('L_poll1')
lab('L_poll1_done')
stamp(11)
padd(2, 3)
e(f's_cmp_lg_u32 s{sK3}, 3')
e('s_cbranch_scc1 L_act')
for i in (0, 1, 2, 3, 8, 9, 10, 11):
    e(f'v_add_f32_dpp v{vG+i}, v{vG+i}, v{vG+i} row_ror:8 row_mask:0xf bank_mask:0xf')
lab('L_act')
R = vG; U = vG + 8; P = vP
e(f'v_cvt_pk_bf16_f32 v{P}, v{R}, v{R+1}')
e(f'v_cvt_pk_bf16_f32 v{P+1}, v{R+2}, v{R+3}')
e(f'v_lshlrev_b32 v{R}, 16, v{P}')
e(f'v_and_b32 v{R+1}, s{sTMP2}, v{P}')
e(f'v_lshlrev_b32 v{R+2}, 16, v{P+1}')
e(f'v_and_b32 v{R+3}, s{sTMP2}, v{P+1}')
for r in range(4): e(f'v_mul_f32 v{P+r}, s{sTMP}, v{R+r}')
for r in range(4): e(f'v_exp_f32 v{P+r}, v{P+r}')
e(f'v_cvt_pk_bf16_f32 v{P+6}, v{U}, v{U+1}')
e(f'v_cvt_pk_bf16_f32 v{P+7}, v{U+2}, v{U+3}')
e(f'v_pk_add_f32 v[{P}:{P+1}], v[{P}:{P+1}], 1.0 op_sel_hi:[1,0]')
e(f'v_pk_add_f32 v[{P+2}:{P+3}], v[{P+2}:{P+3}], 1.0 op_sel_hi:[1,0]')
for r in range(4): e(f'v_rcp_f32 v{P+r}, v{P+r}')
e(f'v_lshlrev_b32 v{U}, 16, v{P+6}')
e(f'v_and_b32 v{U+1}, s{sTMP2}, v{P+6}')
e(f'v_lshlrev_b32 v{U+2}, 16, v{P+7}')
e(f'v_and_b32 v{U+3}, s{sTMP2}, v{P+7}')
e(f'v_pk_mul_f32 v[{P}:{P+1}], v[{P}:{P+1}], v[{R}:{R+1}]')
e(f'v_pk_mul_f32 v[{P+2}:{P+3}], v[{P+2}:{P+3}], v[{R+2}:{R+3}]')
e(f'v_cvt_pk_bf16_f32 v{P+4}, v{P}, v{P+1}')
e(f'v_cvt_pk_bf16_f32 v{P+5}, v{P+2}, v{P+3}')
e(f'v_lshlrev_b32 v{P}, 16, v{P+4}')
e(f'v_and_b32 v{P+1}, s{sTMP2}, v{P+4}')
e(f'v_lshlrev_b32 v{P+2}, 16, v{P+5}')
e(f'v_and_b32 v{P+3}, s{sTMP2}, v{P+5}')
e(f'v_pk_mul_f32 v[{P}:{P+1}], v[{P}:{P+1}], v[{U}:{U+1}]')
e(f'v_pk_mul_f32 v[{P+2}:{P+3}], v[{P+2}:{P+3}], v[{U+2}:{U+3}]')
e(f'v_cvt_pk_bf16_f32 v{vGR+2}, v{P}, v{P+1}')
e(f'v_cvt_pk_bf16_f32 v{vGR+3}, v{P+2}, v{P+3}')
e(f'buffer_store_dwordx4 v[{vGR+2}:{vGR+5}], v{vHP}, s[{SW}:{SW+3}], s{sHA} offen {HS}')
e(f'buffer_store_dwordx4 v[{vGR+2}:{vGR+5}], v{vHP}, s[{SW}:{SW+3}], s{sHB} offen {HS}')
stamp(12)
if 'norbar' not in opts: e('s_barrier')
if 'f1prod' not in opts: yprefetch()
tbl_load()
e(f'buffer_load_ushort v{vXR}, v{vOUT}, s[{SX}:{SX+3}], 0 offen')
e(f'buffer_load_dwordx4 v[{vRG}:{vRG+3}], v{vRB}, s[{SW}:{SW+3}], 0 offen offset:{RBASE} sc1')
e('s_waitcnt vmcnt(0)')
tbl_check('L_tc2')
e('s_branch L_fin')

lab('L_router')
e(f's_load_dwordx2 s[{SR}:{SR+1}], s[0:1], 8')
srdc(SR, 2048)
common_consts()
e(f's_lshl1_add_u32 s{sKK}, s{sSLOT}, s{sWV}')
e(f's_and_b32 s{sKK}, s{sKK}, 7')
e(f's_lshl_b32 s{sTMP2}, s{sKK}, 11')
e(f's_mov_b32 s{sP}, {PBASE + 7*16384 + 8192}')
e('s_waitcnt lgkmcnt(0)')
e(f's_load_dword s{sTAG}, s[{SW}:{SW+1}], 0')
e(f's_cmp_lg_u32 s{sWV}, 3')
e('s_cbranch_scc1 L_noprobe')
e(f's_lshl_b32 s{sV+2}, s{sSLOT}, 10')
e(f's_add_u32 s{sV+2}, s{sV+2}, {PROBE1}')
e(f's_add_u32 s{sV+3}, s{sV+2}, 4096')
for r in range(4): e(f'v_mov_b32 v{vG+4+r}, 0')
e(f'buffer_store_dwordx4 v[{vG+4}:{vG+7}], v{vL16}, s[{SW}:{SW+3}], s{sV+2} offen sc1')
e(f'buffer_store_dwordx4 v[{vG+4}:{vG+7}], v{vL16}, s[{SW}:{SW+3}], s{sV+3} offen sc1')
lab('L_noprobe')
e(f'buffer_load_dwordx4 v[{vRX}:{vRX+3}], v{vL16}, s[{SX}:{SX+3}], s{sTMP2} offen')
e(f'buffer_load_dwordx4 v[{vRX+4}:{vRX+7}], v{vL16}, s[{SX}:{SX+3}], s{sTMP2} offen offset:1024')
e(f'buffer_load_dwordx4 v[{vRX+8}:{vRX+11}], v{vL16}, s[{SR}:{SR+3}], 0 offen')
e(f'buffer_load_dwordx4 v[{vRX+12}:{vRX+15}], v{vL16}, s[{SR}:{SR+3}], 0 offen offset:1024')
e(f'v_mov_b32 v{vRS}, 0')
rsetup()
e('s_waitcnt lgkmcnt(0)')
common_tag()
e('s_waitcnt vmcnt(1)')
e('s_barrier')
e(f's_cmp_lg_u32 s{sWV}, 3')
e('s_cbranch_scc1 L_noprobe2')
e(f'v_lshlrev_b32 v{vT2}, 7, v{vL}')
e('s_mov_b64 exec, 15')
e(f's_and_b32 s{sV}, s{sSLOT}, 1')
e(f's_cselect_b32 s{sV+4}, s{sV+3}, s{sV+2}')
e(f's_cselect_b32 s{sV+5}, s{sV+2}, s{sV+3}')
e(f's_bfe_u32 s{sV+1}, s{sTAG+1}, 0x10002')
e(f's_xor_b32 s{sV}, s{sV}, s{sV+1}')
e(f's_mov_b32 s{sV+6}, 0')
for j in range(NPR):
    a_, b_ = (sV+4, sV+5) if j % 2 == 0 else (sV+5, sV+4)
    e(f'v_mov_b32 v{vG+1}, 1')
    e(f'buffer_load_dword v{vG}, v{vT2}, s[{SW}:{SW+3}], s{a_} offen offset:{512*j} sc1')
    e(f'buffer_load_dword v{vG+1}, v{vT2}, s[{SW}:{SW+3}], s{b_} offen offset:{512*j} sc1')
    e('s_waitcnt vmcnt(1)')
    for _ in range(int(opts.get('nd', 0))):
        e(f'ds_read_b32 v{vG+2}, v{vL16}')
        e('s_waitcnt lgkmcnt(0)')
    e(f'v_cmp_ne_u32 vcc, 0, v{vG+1}')
    e('s_cmp_lg_u64 vcc, 0')
    e(f's_cselect_b32 s{sV+1}, 1, 0')
    e('s_waitcnt vmcnt(0)')
    e(f's_xor_b32 s{sV+1}, s{sV+1}, s{sV}')
    if j % 2: e(f's_xor_b32 s{sV+1}, s{sV+1}, 1')
    e(f's_lshl1_add_u32 s{sV+6}, s{sV+1}, s{sV+6}')
e(f's_sub_u32 s{sV+6}, s{sV+6}, {NPR}')
e(f'v_mov_b32 v{vG+2}, s{sTAG}')
e(f'v_mov_b32 v{vG+3}, s{sV+6}')
e(f's_lshl_b32 s{sV+2}, s{sSLOT}, 3')
e('s_mov_b64 exec, 1')
e(f'buffer_store_dwordx2 v[{vG+2}:{vG+3}], v{vL16}, s[{SW}:{SW+3}], s{sV+2} offen offset:{VBASE} sc1')
e('s_mov_b64 exec, -1')
lab('L_noprobe2')
e(f's_cmp_gt_u32 s{sWV}, 1')
e('s_cbranch_scc1 L_rdone')
e('s_waitcnt vmcnt(0)')
for i in range(8):
    e(f'v_dot2c_f32_bf16 v{vRS}, v{vRX+i}, v{vRX+8+i}')
e('s_nop 2')
for sh in (1, 2, 4, 8):
    e(f'v_add_f32_dpp v{vRS}, v{vRS}, v{vRS} row_ror:{sh} row_mask:0xf bank_mask:0xf')
    e('s_nop 1')
e(f'v_mov_b32 v{vT1}, v{vRS}')
e('s_nop 1')
e(f'v_permlane16_swap_b32 v{vRS}, v{vT1}')
e(f'v_add_f32 v{vRS}, v{vRS}, v{vT1}')
e(f'v_mov_b32 v{vT1}, v{vRS}')
e('s_nop 1')
e(f'v_permlane32_swap_b32 v{vRS}, v{vT1}')
e(f'v_add_f32 v{vRS}, v{vRS}, v{vT1}')
e(f'v_cvt_pk_bf16_f32 v{vRS}, v{vRS}, v{vRS}')
e(f'v_lshlrev_b32 v{vRS}, 16, v{vRS}')
e(f'v_mul_f32 v{vRS}, 0xbfb8aa3b, v{vRS}')
e(f'v_exp_f32 v{vRS}, v{vRS}')
e('s_nop 0')
e(f'v_add_f32 v{vRS}, 1.0, v{vRS}')
e(f'v_rcp_f32 v{vRS}, v{vRS}')
e('s_nop 0')
e(f'v_cvt_pk_bf16_f32 v{vRS}, v{vRS}, v{vRS}')
e(f'v_bfi_b32 v{vP}, v{vFF}, s{sTI}, v{vRS}')
for r in range(1, 4): e(f'v_mov_b32 v{vP+r}, s{sTB+r}')
e(f's_lshl_b32 s{sTMP}, s{sKK}, 4')
e('s_mov_b64 exec, 1')
e(f'buffer_store_dwordx4 v[{vP}:{vP+3}], v{vL16}, s[{SW}:{SW+3}], s{sTMP} offen offset:{RBASE} sc1')
e('s_mov_b64 exec, -1')
lab('L_rdone')
e('s_barrier')
if 'wpre' in opts:
    e(f'buffer_load_dword v{vTA}, v{vHP}, s[{SW}:{SW+3}], 0 offen')
    e(f's_mov_b32 s{sTMP}, 0x2000')
    e(f'buffer_load_dword v{vTA}, v{vHP}, s[{SW}:{SW+3}], s{sTMP} offen')
e('s_branch L_reduce')
lab('L_codeend')
o += ['.section .rodata,"a"', '.p2align 6', f'.amdhsa_kernel {NAME}',
      f'  .amdhsa_next_free_vgpr {NV}', '  .amdhsa_next_free_sgpr 100', f'  .amdhsa_accum_offset {NV}',
      '  .amdhsa_group_segment_fixed_size 0', '  .amdhsa_kernarg_size 64', '  .amdhsa_user_sgpr_count 2',
      '  .amdhsa_user_sgpr_kernarg_segment_ptr 1', '  .amdhsa_system_sgpr_workgroup_id_x 1',
      '  .amdhsa_float_denorm_mode_32 3',
      '.end_amdhsa_kernel']
print('\n'.join(o))
```
